```python
import torch

def _softmax(x, axis=-1):
    return torch.softmax(x, dim=axis)
def _gelu(x):
    return torch.nn.functional.gelu(x, approximate="tanh")
def _silu(x):
    return torch.nn.functional.silu(x)
def _sigmoid(x):
    return torch.sigmoid(x)
def _layernorm(x, axis=-1, eps=1e-5):
    m = x.mean(dim=axis, keepdim=True)
    v = x.var(dim=axis, keepdim=True, unbiased=False)
    return (x - m) / torch.sqrt(v + eps)
def _scatter_add(tgt, idx, src, axis=0):
    return tgt.clone().index_add_(axis, idx, src)
def _segment_sum(src, seg, n):
    out = torch.zeros((n,) + src.shape[1:], dtype=src.dtype)
    return out.index_add_(0, seg, src)
def _pad(x, pw):
    flat = tuple(v for pair in reversed(pw) for v in pair)
    return torch.nn.functional.pad(x, flat)

kernel_name = 'parallel_sum__sliding_local_dilated__dense_activation_silu__prompt'

def setup_inputs():

    _w = (lambda a: (lambda t: t.to(torch.bfloat16) if t.is_floating_point() else t)(torch.as_tensor(a)))
    def _A_setup():
        B, S, D = 1, 2048, 640
        return {
            "x": _w((lambda *s: torch.randn(*s, dtype=torch.bfloat16) * 0.05)(B, S, D)),
            "wqkv": _w((lambda *s: torch.randn(*s, dtype=torch.bfloat16) * 0.05)(D, 3 * D)),
            "wo": _w((lambda *s: torch.randn(*s, dtype=torch.bfloat16) * 0.05)(D, D)),
        }
    _A_in = _A_setup()

    def _B_setup():
        B, S, D, F = 1, 2048, 640, 1536
        return {
            "x": _w((lambda *s: torch.randn(*s, dtype=torch.bfloat16) * 0.05)(B, S, D)),
            "w1": _w((lambda *s: torch.randn(*s, dtype=torch.bfloat16) * 3.2)(D, F) * (D ** -0.5)),
            "w2": _w((lambda *s: torch.randn(*s, dtype=torch.bfloat16) * 0.4)(F, D) * (F ** -0.5)),
        }
    _B_in = _B_setup()

    return {
        "A_x": _A_in["x"],
        "A_wqkv": _A_in["wqkv"],
        "A_wo": _A_in["wo"],
        "B_x": _B_in["x"],
        "B_w1": _B_in["w1"],
        "B_w2": _B_in["w2"],
    }

def reference(A_x, A_wqkv, A_wo, B_x, B_w1, B_w2):
    def _A_ref(x, wqkv, wo):
        B, S, D = x.shape
        H = 32; Dh = D // H
        W, dil = 8, 2
        qkv = (lambda x, *d: x.permute(*d))((x @ wqkv).reshape(B, S, 3, H, Dh), 2, 0, 3, 1, 4)
        q, k, v = qkv[0], qkv[1], qkv[2]
        scale = Dh ** -0.5
        pos = torch.arange(S)
        off = torch.arange(W) * dil
        idx = pos[:, None] - off[None, :]
        mask = idx >= 0
        idx_c = torch.where(mask, idx, 0).reshape(-1)
        kg = k[:, :, idx_c, :].reshape(B, H, S, W, Dh)
        vg = v[:, :, idx_c, :].reshape(B, H, S, W, Dh)
        logits = torch.einsum("bhsd,bhswd->bhsw", q, kg) * scale
        logits = torch.where(mask[None, None, :, :], logits, -1e9)
        attn = _softmax(logits, axis=-1)
        o = torch.einsum("bhsw,bhswd->bhsd", attn, vg)
        return (lambda x, *d: x.permute(*d))(o, 0, 2, 1, 3).reshape(B, S, D) @ wo

    def _B_ref(x, w1, w2):
        h = torch.einsum("bsd,df->bsf", x, w1)
        h = _silu(h)
        out = torch.einsum("bsf,fd->bsd", h, w2)
        return out

    x = A_x
    xn = _layernorm(x, axis=-1)
    return x + _A_ref(xn, A_wqkv, A_wo) + _B_ref(xn, B_w1, B_w2)
```

```python
import re
TRANS = ("v_exp_f32","v_log_f32","v_rcp_f32","v_rsq_f32","v_sqrt_f32","v_sin_f32","v_cos_f32")
def regs(tok):
    tok = tok.strip()
    tok = re.sub(r"^-|^neg\(|^abs\(|\)$|\|", "", tok)
    m = re.fullmatch(r"([vsa])(\d+)", tok)
    if m: return [(m.group(1), int(m.group(2)))]
    m = re.fullmatch(r"([vsa])\[(\d+):(\d+)\]", tok)
    if m: return [(m.group(1), i) for i in range(int(m.group(2)), int(m.group(3)) + 1)]
    if tok in ("vcc",): return [("s", "vcc")]
    if tok in ("vcc_lo", "vcc_hi"): return [("s", "vcc")]
    if tok == "m0": return [("s", "m0")]
    if tok in ("exec", "exec_lo", "exec_hi"): return [("s", "exec")]
    return []
class I:
    def __init__(self, line):
        self.line = line
        t = line.split(";")[0].strip()
        self.is_label = t.endswith(":") or t.startswith(".") or t == ""
        self.kind = "none"; self.dst = []; self.src = []; self.op = ""; self.srcC = []; self.dpp = False; self.data = []
        if self.is_label: return
        p = t.split(None, 1); self.op = op = p[0]
        rest = p[1] if len(p) > 1 else ""
        rest = re.sub(r"\s+(op_sel|op_sel_hi|neg_lo|neg_hi|quad_perm):\[[^\]]*\]", "", rest)
        ops = [x.strip() for x in rest.split(",")]
        if ops:
            last = ops[-1].split()
            mods = last[1:] if last else []
            ops[-1] = last[0] if last else ""
        else: mods = []
        self.mods = mods
        R = [regs(o) for o in ops]
        flat = lambda l: [x for y in l for x in y]
        if op.startswith("v_mfma"):
            self.kind = "mfma"; self.dst = R[0]; self.src = R[1] + R[2]; self.srcC = R[3]
        elif op.startswith("v_"):
            self.kind = "trans" if op.replace("_e32","").replace("_e64","") in TRANS else "valu"
            self.dst = R[0]; self.src = flat(R[1:])
            if op.startswith(("v_fmac", "v_dot2c")) : self.src += R[0]
            if "_dpp" in op: self.dpp = True; self.src += R[0]
            if op.startswith(("v_permlane", "v_swap")): self.dst = R[0] + R[1]; self.src = R[0] + R[1]
            if op.startswith(("v_add_co", "v_sub_co", "v_addc_co", "v_subb_co")): self.dst = R[0] + R[1]; self.src = flat(R[2:])
        elif op.startswith("ds_"):
            self.kind = "ds"
            if "read" in op or "rtn" in op or "bpermute" in op or "swizzle" in op: self.dst = R[0]; self.src = flat(R[1:])
            else: self.src = flat(R)
        elif op.startswith(("buffer_", "global_")):
            self.kind = "vmem"
            if "lds" in mods: self.src = flat(R) + [("s", "m0")]; self.ldsdma = True
            elif "load" in op: self.dst = R[0]; self.src = flat(R[1:])
            else:
                self.src = flat(R)
                if "x4" in op or "x3" in op: self.data = R[0]
        elif op.startswith("s_"):
            self.kind = "salu"
            if op in ("s_nop",): self.kind = "nop"; self.n = int(ops[0], 0) + 1
            elif op.startswith(("s_cmp", "s_waitcnt", "s_barrier", "s_cbranch", "s_branch", "s_endpgm", "s_sleep", "s_setprio", "s_bitcmp")): self.src = flat(R)
            else: self.dst = R[0]; self.src = flat(R[1:])
            if "saveexec" in op: self.dst = self.dst + [("s", "exec")]
def need(prev, cur):
    pd = set(prev.dst); n = 0
    cs = set(cur.src); cd = set(cur.dst); cc = set(cur.srcC)
    if prev.kind in ("valu", "trans"):
        vd = {r for r in pd if r[0] in "va"}; sd = {r for r in pd if r[0] == "s"}
        if cur.kind == "mfma" and vd & (cs | cc): n = max(n, 2)
        if cur.kind in ("valu", "trans"):
            if cur.dpp and vd & cs: n = max(n, 2)
            if cur.op.startswith("v_permlane") and vd & cs: n = max(n, 2)
            if cur.op.startswith(("v_readfirstlane", "v_readlane")) and vd & cs: n = max(n, 1)
            if sd & cs: n = max(n, 4 if cur.op.startswith(("v_readlane", "v_writelane")) else 2)
            if prev.kind == "trans" and cur.kind == "valu" and vd & cs: n = max(n, 1)
        if prev.kind == "trans" and cur.kind in ("ds", "vmem") and vd & cs: n = max(n, 1)
        if cur.kind == "vmem" and sd & cs: n = max(n, 5)
        if cur.kind == "salu" and sd & cs: n = max(n, 2)
    if prev.kind == "mfma":
        p8 = "32x32" in prev.op
        full = 12 if p8 else 8
        if cur.kind == "mfma":
            if pd & cs: n = max(n, full)
            if pd & cc and (set(prev.dst) != cc or prev.op != cur.op): n = max(n, 10 if p8 else 6)
            if pd & cd and not (pd & cc): n = max(n, full)
        elif cur.kind in ("valu", "trans", "ds", "vmem"):
            if pd & (cs | cd): n = max(n, full)
        if cur.kind in ("valu", "trans", "ds", "vmem") and set(prev.srcC) & cd: n = max(n, 7 if p8 else 3)
    if prev.kind == "salu" and ("s", "m0") in pd and cur.kind == "vmem" and ("s", "m0") in cs: n = max(n, 1)
    if prev.kind == "vmem" and prev.data and set(prev.data) & cd: n = max(n, 2)
    return n
def fix(lines, window=14):
    out = []; hist = []
    nins = 0
    for ln in lines:
        ins = I(ln)
        if ins.is_label: out.append(ln); continue
        dist = 0; req = 0
        for p in reversed(hist[-window:]):
            k = need(p, ins)
            if k > dist: req = max(req, k - dist)
            dist += p.n if p.kind == "nop" else 1
            if dist > window: break
        if req:
            nop = I(f"s_nop {req-1}"); out.append(f"  s_nop {req-1}"); hist.append(nop); nins += 1
        out.append(ln); hist.append(ins)
    return out, nins
```

```python
import sys, math, struct
from asmlib import NAME, kd, head, TARGET
import hz

def f2u(x): return struct.unpack("<I", struct.pack("<f", x))[0]

SLOT = 49152; XREG = 18432
S1 = 32768; S2 = 147456
L_STAT = S2
L_CS = S2 + 1280
L_DUMMY = S2 + 2304
L_REC = S2 + 3328
REC = 272
A2_BLK = 9216; A2_RT = 8 * A2_BLK
FLAG_BASE = 128 * A2_RT
STAMP_BASE = FLAG_BASE + 65536
WS_BYTES = STAMP_BASE + 256 * 8 * 128
ONE2 = 0x3f803f80
NEGBIG = f2u(-1.0e30)
LOG2E = math.log2(math.e)

SRD0, SRD1, SRD2, SRDWS, SRDDBG, SRDOUT, SRDX = 4, 8, 12, 16, 20, 24, 28
P_X, P_WQKV, P_WO, P_W1, P_W2, P_OUT, P_DBG, P_WS = 32, 34, 36, 40, 42, 44, 46, 48
SO = [50, 51, 52, 53, 54, 55]; STEP = [56, 56, 57, 57, 57, 58]; DD = [60, 61, 62, 63, 64, 65]
S_WSLOT, S_RSLOT, S_IT, S_W, S_MT, S_NT, S_TG, S_H, S_CT, S_RT0, S_NONCE = 66, 67, 68, 69, 70, 71, 72, 73, 74, 75, 76
S_B2H, S_B2O, S_DELTA, S_XCD = 77, 78, 79, 80
T0, T1, T2, T3, T4, T5 = 81, 82, 83, 84, 85, 86
S_M0, S_M1 = 88, 90
S_TS = 92

V_LANE, V_L16, V_B2, V_B2L, V_G, V_I = 1, 2, 3, 4, 5, 6
V_X0, V_X1, V_ST0, V_ST1, V_W0, V_W1, V_W2, V_LSEL, V_LT = 7, 8, 9, 10, 11, 12, 13, 14, 15
ACC = 16
SETA, SETB = 96, 132
STF = [168, 172]
V_DMA = [176, 176, 177, 178, 179, 180]
V_SQ = [182, 183, 184, 185]
V_T = [186, 187, 188, 189]
V_ONES = 192
V_CS = 196
BH = 160

SPIN = 0x8000
class G:
    def __init__(self, diag=False, lead=6, n_attn=4, n_mlp=6, **opt):
        self.o = opt
        self.L = []; self.diag = diag; self.lead = lead; self.n_attn = n_attn; self.n_mlp = n_mlp
        self.vm = 0; self.uid = 0
    def e(self, s):
        for ln in s.strip("\n").split("\n"):
            ln = ln.strip()
            if not ln: continue
            self.L.append(ln if ln.endswith(":") else "  " + ln)
    def lab(self, p):
        self.uid += 1; return f"L_{p}_{self.uid}"
    def srd(self, r, ptr, nbytes):
        self.e(f"s_mov_b32 s{r}, s{ptr}\ns_mov_b32 s{r+1}, s{ptr+1}\ns_mov_b32 s{r+2}, {nbytes}\ns_mov_b32 s{r+3}, 0x20000")
    def stamp(self, idx):
        if not self.diag: return
        self.e(f"""s_memrealtime s[{S_TS}:{S_TS+1}]
s_memtime s[{S_TS+2}:{S_TS+3}]
s_waitcnt lgkmcnt(0)
v_writelane_b32 v{V_LANE-1}, s{S_TS}, {idx}
v_writelane_b32 v{V_LANE-1}, s{S_TS+2}, {idx+16}""")
    def vmreset(self): self.vm = 0
    def vmop(self, s):
        self.e(s); self.vm += 1; return self.vm
    def vmwait(self, op, extra=""):
        n = self.vm - op
        self.e(f"s_waitcnt vmcnt({min(n, 63)}) {extra}".strip())

    def dma(self, i):
        srd = [SRD0, SRD0, SRD1, SRD1, SRD1, SRD2][i]
        return [f"s_add_u32 m0, s{S_WSLOT}, s{DD[i]}",
                f"buffer_load_dwordx4 v{V_DMA[i]}, s[{srd}:{srd+3}], s{SO[i]} offen lds",
                f"s_add_u32 s{SO[i]}, s{SO[i]}, s{STEP[i]}"]
    def next_wslot(self):
        return [f"s_add_u32 s{S_WSLOT}, s{S_WSLOT}, {SLOT}", f"s_cmp_eq_u32 s{S_WSLOT}, {3*SLOT}", f"s_cselect_b32 s{S_WSLOT}, 0, s{S_WSLOT}"]

    def phase(self, mf, reads, valus, dmas, tail=()):
        reads = list(reads); valus = list(valus); dm = list(dmas); tail = list(tail)
        n = len(mf)
        dpos = {}
        if dm:
            for k in range(len(dm)): dpos[1 + (k * (n - 3)) // len(dm)] = k
        pend = None
        for idx, m in enumerate(mf):
            self.e(m)
            budget = 2
            if pend is not None:
                self.e(pend[1]);
                for x in pend[2:]: self.e(x)
                pend = None
            if reads:
                r = reads.pop(0)
                for x in r[:-1]: self.e(x); budget -= 1
                self.e(r[-1])
            elif tail and budget > 0:
                while tail and budget > 0:
                    x = tail.pop(0); self.e(x)
                    if x.startswith("v_"): budget -= 1
            while valus and budget > 0:
                self.e(valus.pop(0)); budget -= 1
            if idx in dpos:
                pend = dm[dpos[idx]]; self.e(pend[0])
        assert pend is None and not reads
        for x in valus + tail: self.e(x)

    def stat_ops(self, fr, sq, sm=None):
        o = []
        for k in range(4):
            a, b = V_T[2 * (k & 1)], V_T[2 * (k & 1) + 1]
            o += [f"v_lshlrev_b32 v{a}, 16, v{fr+k}", f"v_and_b32 v{b}, 0xffff0000, v{fr+k}",
                  f"v_fmac_f32 v{sq}, v{a}, v{a}", f"v_fmac_f32 v{sq+1}, v{b}, v{b}"]
            if sm is not None: o += [f"v_add_f32 v{sm}, v{sm}, v{a}", f"v_add_f32 v{sm+1}, v{sm+1}, v{b}"]
        return o

    def p1_mfmas(self, kind, S):
        o = []
        if kind[0] == "m":
            for j in range(4):
                for t in range(3):
                    d = ACC + 16 * (j + 1) + 4 * t
                    o.append(f"v_mfma_f32_16x16x32_bf16 v[{d}:{d+3}], v[{S+20+4*t}:{S+23+4*t}], v[{S+4*(j+1)}:{S+4*(j+1)+3}], v[{d}:{d+3}]")
            for t in range(3):
                d = V_CS + 4 * t
                o.append(f"v_mfma_f32_16x16x32_bf16 v[{d}:{d+3}], v[{S+20+4*t}:{S+23+4*t}], v[{V_ONES}:{V_ONES+3}], v[{d}:{d+3}]")
        else:
            for j in (range(5) if kind == "a0" else range(1, 5)):
                for f in range(4):
                    d = ACC + 16 * j + 4 * f
                    w = f"v[{S+20+4*f}:{S+23+4*f}]"; x = f"v[{S+4*j}:{S+4*j+3}]"
                    a, b = (x, w) if f == 2 else (w, x)
                    o.append(f"v_mfma_f32_16x16x32_bf16 v[{d}:{d+3}], {a}, {b}, v[{d}:{d+3}]")
        return o
    def p1_reads(self, kind, S, kk):
        xs = []; ws = []
        vx = [V_X0, V_X1][kk]; vs = [V_ST0, V_ST1][kk]
        for j in (range(5) if kind == "a0" else range(1, 5)):
            xs.append([f"ds_read_b128 v[{S+4*j}:{S+4*j+3}], v{vx} offset:{2048*j}"])
        if kind[0] == "m":
            for t in range(3):
                for hf in range(2):
                    r = S + 20 + 4 * t + 2 * hf
                    ws.append([f"ds_read_b64_tr_b16 v[{r}:{r+1}], v{V_W0+t} offset:{(hf*16+kk*32)*384}"])
        else:
            for f in range(4):
                for hf in range(2):
                    r = S + 20 + 4 * f + 2 * hf
                    ro = (hf * 16 + kk * 32) * 480
                    if f < 3:
                        ws.append([f"ds_read_b64_tr_b16 v[{r}:{r+1}], v{V_W0} offset:{ro + 160*f}"])
                    else:
                        ws.append([f"s_add_u32 s{T0}, s{S_RSLOT}, {ro}", f"v_mad_u32_u24 v{V_LT}, v{V_LSEL}, s{T0}, v{V_W1}",
                                   f"ds_read_b64_tr_b16 v[{r}:{r+1}], v{V_LT}"])
        st = STF[0] if S == SETA else STF[1]
        o = [xs[0]] + ws + xs[1:] + [[f"ds_read_b128 v[{st}:{st+3}], v{vs}"]]
        return o
    def p1_stats(self, kind, S):
        st = STF[0] if S == SETA else STF[1]
        if kind[0] == "m": return self.stat_ops(st, V_SQ[0], V_SQ[2])
        o = self.stat_ops(st, V_SQ[0])
        if kind == "a0": o += self.stat_ops(S, V_SQ[2])
        return o
    def ring_adv(self, kind):
        regs = [V_X0, V_X1, V_ST0, V_ST1, V_W0] + ([V_W1, V_W2] if kind[0] == "m" else [])
        o = [f"s_cmp_eq_u32 s{S_RSLOT}, {2*SLOT}", f"s_cselect_b32 s{S_DELTA}, {(-2*SLOT) & 0xffffffff}, {SLOT}"]
        o = [f"s_cmp_eq_u32 s{S_RSLOT}, {2*SLOT}", f"s_cselect_b32 s{S_DELTA}, s{T4}, s{T5}",
             f"s_add_u32 s{S_RSLOT}, s{S_RSLOT}, s{S_DELTA}"]
        o += [f"v_add_u32 v{r}, s{S_DELTA}, v{r}" for r in regs]
        return o

    def b2_rowoff(self, n):
        if n < 16: return 48 * (n >> 2) + 8 * (n & 3)
        m = n - 16; ks = m >> 2; u = m & 3
        return 96 * ks + 32 + 48 * (u & 1) + 8 * (u >> 1)
    def b2_dma(self, n, ldsreg, ldsoff):
        if n < 24:
            srd, base, ro, v = SRD0, S_B2H, self.b2_rowoff(n), V_B2
        elif n < 32:
            m = n - 24; ks = m >> 2; u = m & 3
            srd, base, ro, v = SRD1, S_B2O, 40 * ks + 20 * (u & 1) + 8 * (u >> 1), V_B2
        else:
            srd, base, ro, v = SRD1, S_B2O, 16 + 40 * (n - 32), V_B2L
        return [f"s_add_u32 m0, s{ldsreg}, {ldsoff}", f"s_add_u32 s{T0}, s{base}, {ro*1280}",
                f"buffer_load_dwordx4 v{v}, s[{srd}:{srd+3}], s{T0} offen lds"]

    def main_loop(self, kind):
        nd = 5 if kind[0] == "m" else 6
        top, mid, sw8, sw9, back = [self.lab(x) for x in ("top", "mid", "sw8", "sw9", "back")]
        self.e(f"s_waitcnt vmcnt({2*nd}) lgkmcnt(0)\ns_barrier")
        self.stamp(1)
        for r in self.p1_reads(kind, SETA, 0):
            for x in r: self.e(x)
        mode = self.o.get("dmamode", 0)
        if not self.o.get("nodma") and (mode == 1 or (mode == 2 and kind in ("a1", "m1"))):
            self.e(f"s_waitcnt lgkmcnt(0)")
            self.phase(self.p1_mfmas(kind, SETA), self.p1_reads(kind, SETB, 1), self.p1_stats(kind, SETA), [], tail=self.ring_adv(kind))
        self.e(f"s_mov_b32 s{S_IT}, 0\ns_branch {mid}")
        self.e(f"{sw8}:\ns_cmp_eq_u32 s{S_IT}, 9\ns_cbranch_scc1 {sw9}")
        for r in (SRD0, SRD1, SRD2): self.e(f"s_mov_b32 s{r}, s{P_W2}\ns_mov_b32 s{r+1}, s{P_W2+1}\ns_mov_b32 s{r+2}, {1536*1280}")
        for r in sorted(set(V_DMA)): self.e(f"v_mov_b32 v{r}, v{V_B2}")
        self.e(f"s_mul_i32 s{T0}, s{S_W}, 6144")
        for i in range(nd):
            self.e(f"s_add_u32 s{DD[i]}, s{T0}, {1024*i}\ns_add_u32 s{SO[i]}, s{S_B2H}, {self.b2_rowoff(i)*1280}")
        self.e(f"s_branch {back}\n{sw9}:")
        for i in range(nd):
            self.e(f"s_add_u32 s{SO[i]}, s{S_B2H}, {self.b2_rowoff(6+i)*1280}")
        self.e(f"s_branch {back}")
        self.e(".p2align 6")
        self.e(f"{top}:\ns_waitcnt vmcnt({nd}) lgkmcnt(0)\ns_barrier")
        dall = [self.dma(i) for i in range(nd)]
        if self.o.get("nodma"): dall = []
        mode = self.o.get("dmamode", 0)
        if mode == 0: d1, d2 = dall, []
        elif mode == 1: d1, d2 = dall[:(nd+1)//2], dall[(nd+1)//2:]
        elif mode == 2: d1, d2 = (dall, []) if kind in ("a0", "m0") else ([], dall)
        st1 = [] if self.o.get("nostats") else self.p1_stats(kind, SETB)
        st2 = [] if self.o.get("nostats") else self.p1_stats(kind, SETA)
        m1, m2 = self.p1_mfmas(kind, SETB), self.p1_mfmas(kind, SETA)
        if self.o.get("nomfma"): m1 = ["s_nop 0"] * len(m1); m2 = ["s_nop 0"] * len(m2)
        r1, r2 = self.p1_reads(kind, SETA, 0), self.p1_reads(kind, SETB, 1)
        if self.o.get("noreads"): r1 = []; r2 = []
        self.phase(m1, r1, st1, d1)
        if d2:
            self.e(f"s_waitcnt lgkmcnt(0)")
            self.phase(m2, r2, st2, d2, tail=self.ring_adv(kind))
            for x in self.next_wslot(): self.e(x)
            self.e(f"{mid}:")
        else:
            for x in self.next_wslot(): self.e(x)
            self.e(f"{mid}:\ns_waitcnt lgkmcnt(0)")
            self.phase(m2, r2, st2, [], tail=self.ring_adv(kind))
        self.d2 = d2
        self.e(f"s_add_u32 s{S_IT}, s{S_IT}, 1\ns_cmp_ge_u32 s{S_IT}, 8\ns_cbranch_scc0 {top}")
        self.e(f"s_cmp_lt_u32 s{S_IT}, 10\ns_cbranch_scc1 {sw8}")
        fin = self.lab("fin")
        self.e(f"s_branch {fin}\n{back}:\ns_branch {top}\n{fin}:")
        self.e(f"s_waitcnt lgkmcnt(0)\ns_barrier")
        self.vmreset()
        self.e(f"s_mul_i32 s{T1}, s{S_W}, 6144\ns_add_u32 s{T2}, s{T1}, {2*SLOT}\ns_add_u32 s{T1}, s{T1}, {SLOT}\ns_lshl_b32 s{T3}, s{S_W}, 12")
        self.e(f"s_mov_b32 s{SRD1}, s{P_WO}\ns_mov_b32 s{SRD1+1}, s{P_WO+1}\ns_mov_b32 s{SRD1+2}, {640*1280}")
        dm = []
        if kind[0] == "m":
            dm += [self.b2_dma(5, T1, 5120), self.b2_dma(11, T2, 5120)]
        self.r1ab = len(dm)
        dm += [self.b2_dma(12 + i, T3, 1024 * i) for i in range(4)]
        dm2 = [[d[0] + "\n" + d[1], d[2]] for d in dm]
        self.phase(self.p1_mfmas(kind, SETB), [], self.p1_stats(kind, SETB), dm2)
        self.vm = len(dm); self.r1c = self.vm
        self.nonce_op = self.vmop(f"buffer_load_dword v{V_LT}, off, s[{SRDDBG}:{SRDDBG+3}], 0 sc1")
        self.stamp(2)

    def trb_addr(self, sreg, dst):
        return [f"v_add_u32 v{dst+t}, s{sreg}, v{V_X0+t}" for t in range(4)]
    def p2_lane_init(self):
        a, b = V_T[0], V_T[1]
        self.e(f"""v_lshrrev_b32 v{a}, 2, v{V_LANE}
v_lshlrev_b32 v{V_X0}, 7, v{a}
v_bfe_u32 v{b}, v{V_LANE}, 3, 2
v_lshl_add_u32 v{V_X0}, v{b}, 5, v{V_X0}
v_and_b32 v{b}, 3, v{V_LANE}
v_lshl_add_u32 v{V_X0}, v{b}, 3, v{V_X0}
v_xor_b32 v{V_X1}, 32, v{V_X0}
v_xor_b32 v{V_ST0}, 64, v{V_X0}
v_xor_b32 v{V_ST1}, 0x60, v{V_X0}""")
    def b2_reads(self, half, areg, off, dstbase=BH, ks=None, both=False):
        ks = (half >> 1) if ks is None else ks
        o = []
        for t in range(4):
            r = dstbase + 16 * ks + 4 * t + 2 * (half & 1)
            o.append(f"ds_read_b64_tr_b16 v[{r}:{r+1}], v{areg+t} offset:{off}")
            if both: o.append(f"ds_read_b64_tr_b16 v[{r+2}:{r+3}], v{areg+t} offset:{off}")
        return o
    AR = 11
    def b2_step1(self):
        self.vmwait(self.r1ab)
        for x in self.trb_addr(T1, self.AR): self.e(x)
        for hh in range(3):
            for x in self.b2_reads(hh, self.AR, 2048 * hh): self.e(x)
        for x in self.trb_addr(T2, self.AR): self.e(x)
        for hh in range(3, 6):
            for x in self.b2_reads(hh, self.AR, 2048 * (hh - 3)): self.e(x)
        self.e("s_waitcnt lgkmcnt(0)")
        for n in range(16, 28):
            d = self.b2_dma(n, T1 if n < 22 else T2, 1024 * ((n - 16) % 6))
            self.e(d[0]); self.e(d[1]); self.r2a = self.vmop(d[2])
            if n == 23: self.r2h = self.vm
    def b2_step2(self):
        self.vmwait(self.r1c)
        for x in self.trb_addr(T3, self.AR): self.e(x)
        for hh in (6, 7):
            for x in self.b2_reads(hh, self.AR, 2048 * (hh - 6)): self.e(x)
        self.e("s_waitcnt lgkmcnt(0)")
        for n in range(28, 32):
            d = self.b2_dma(n, T3, 1024 * (n - 28))
            self.e(d[0]); self.e(d[1]); self.vmop(d[2])
    def b2_step3(self):
        for x in self.trb_addr(T1, self.AR): self.e(x)
        for hh in (8, 9, 10):
            for x in self.b2_reads(hh, self.AR, 2048 * (hh - 8)): self.e(x)
        for x in self.trb_addr(T2, self.AR): self.e(x)
        for x in self.b2_reads(11, self.AR, 0): self.e(x)
        self.e("s_waitcnt lgkmcnt(0)")
        for n in (32, 33):
            d = self.b2_dma(n, T1, 1024 * (n - 32))
            self.e(d[0]); self.e(d[1]); self.vmop(d[2])

    def ln_stats(self, s1, s2, na, nb):
        self.e(f"""v_mul_f32 v{s1}, {hex(f2u(1.0/640))}, v{s1}
v_mul_f32 v{s2}, {hex(f2u(1.0/640))}, v{s2}
v_fma_f32 v{s2}, -v{s1}, v{s1}, v{s2}
v_max_f32 v{s2}, 0, v{s2}
v_cvt_pk_bf16_f32 v{na}, v{s1}, v{s2}
v_lshlrev_b32 v{s1}, 16, v{na}
v_and_b32 v{s2}, 0xffff0000, v{na}
v_xor_b32 v{s1}, 0x80000000, v{s1}
v_add_f32 v{s2}, {hex(f2u(1e-5))}, v{s2}
v_cvt_pk_bf16_f32 v{na}, v{s2}, v{s2}
v_and_b32 v{s2}, 0xffff0000, v{na}
v_sqrt_f32 v{s2}, v{s2}
v_cvt_pk_bf16_f32 v{na}, v{s2}, v{s2}
v_and_b32 v{s2}, 0xffff0000, v{na}
v_rcp_f32 v{s2}, v{s2}""")
    def xgroup_sum(self, r, t):
        self.e(f"""v_mov_b32 v{t}, v{r}
v_permlane16_swap_b32 v{r}, v{t}
v_add_f32 v{r}, v{r}, v{t}
v_mov_b32 v{t}, v{r}
v_permlane32_swap_b32 v{r}, v{t}
v_add_f32 v{r}, v{r}, v{t}""")

    def publish(self, typ):
        self.e("s_waitcnt vmcnt(0)")
        ok, lp = self.lab("nok"), self.lab("nlp")
        self.e(f"""s_mov_b32 s{T0}, 0
{lp}:
v_readfirstlane_b32 s{S_NONCE}, v{V_LT}
s_cmp_lg_u32 s{S_NONCE}, 0
s_cbranch_scc1 {ok}
s_add_u32 s{T0}, s{T0}, 1
s_cmp_gt_u32 s{T0}, {SPIN}
s_cbranch_scc1 {ok}
s_sleep 2
buffer_load_dword v{V_LT}, off, s[{SRDDBG}:{SRDDBG+3}], 0 sc1
s_waitcnt vmcnt(0)
s_branch {lp}
{ok}:
s_barrier""")
        self.vmreset()
        sk = self.lab("nofl")
        self.e(f"""s_cmp_lg_u32 s{S_W}, 0
s_cbranch_scc1 {sk}
s_lshl_b32 s{T0}, s{S_MT}, 3
s_add_u32 s{T0}, s{T0}, s{S_NT}
s_lshl_b32 s{T0}, s{T0}, 7
s_add_u32 s{T0}, s{T0}, {FLAG_BASE + typ*16384}
s_mov_b64 exec, 1
buffer_store_dword v{V_LT}, off, s[{SRDWS}:{SRDWS+3}], s{T0} sc1
s_mov_b64 exec, -1
{sk}:""")
        self.stamp(4)

    def attn_pre(self, kind):
        q0, q1, q2, q3 = V_SQ; t0, t1, t2, t3 = V_T
        self.p2_lane_init()
        self.e(f"v_add_f32 v{q0}, v{q0}, v{q1}")
        self.xgroup_sum(q0, t0)
        ls = [self.lab("sel") for _ in range(4)]
        self.e(f"v_mov_b32 v{q1}, v{ACC+16+12}")
        for hh in (1, 2, 3):
            self.e(f"s_cmp_eq_u32 s{S_H}, {hh}\ns_cselect_b64 s[{S_M0}:{S_M0+1}], -1, 0\nv_cndmask_b32 v{q1}, v{q1}, v{ACC+16*(1+hh)+12}, s[{S_M0}:{S_M0+1}]")
        self.ln_stats(q1, q0, t0, t1)
        self.e(f"""s_lshl_b32 s{T0}, s{S_W}, 6
s_add_u32 s{T0}, s{T0}, {L_STAT + 64}
v_lshl_add_u32 v{t0}, v{V_I}, 2, s{T0}
s_mov_b32 exec_lo, 0
s_mov_b32 exec_hi, 0xffff0000
ds_write2_b32 v{t0}, v{q1}, v{q0} offset0:0 offset1:160
s_mov_b64 exec, -1""")
        if kind == "a0":
            self.e(f"v_add_f32 v{q2}, v{q2}, v{q3}")
            self.xgroup_sum(q2, t0)
            self.e(f"v_mov_b32 v{q3}, v{ACC+12}")
            self.ln_stats(q3, q2, t0, t1)
            self.e(f"""v_lshlrev_b32 v{t0}, 2, v{V_I}
v_add_u32 v{t0}, {L_STAT}, v{t0}
s_mov_b32 exec_lo, 0
s_mov_b32 exec_hi, 0xffff0000
ds_write2_b32 v{t0}, v{q3}, v{q2} offset0:0 offset1:160
s_mov_b64 exec, -1""")
            self.e(f"""s_lshl_b32 s{T0}, s{S_H}, 8
s_add_u32 s{T0}, s{T0}, {L_CS}
v_lshl_add_u32 v{t0}, v{V_G}, 4, s{T0}
v_lshl_add_u32 v{t1}, v{V_I}, 2, s{T0}
s_mov_b32 exec_lo, 0x00010001
s_mov_b32 exec_hi, 0x00010001
ds_write_b128 v{t0}, v[{ACC}:{ACC+3}]
ds_write_b128 v{t0}, v[{ACC+4}:{ACC+7}] offset:64
ds_write_b128 v{t0}, v[{ACC+12}:{ACC+15}] offset:192
s_mov_b64 exec, 0xffff
ds_write_b32 v{t1}, v{ACC+8} offset:128
s_mov_b64 exec, -1
s_mul_i32 s{T0}, s{S_H}, 3072
s_add_u32 s{T0}, s{T0}, {S1}
v_add_u32 v{t0}, s{T0}, v{V_L16}""")
            for f in (1, 2, 3):
                r = ACC + 64 + 4 * f
                self.e(f"ds_write_b128 v{t0}, v[{r}:{r+3}] offset:{1024*(f-1)}")
        self.e("s_waitcnt lgkmcnt(0)\ns_barrier")
        if kind == "a1":
            self.e(f"""s_mul_i32 s{T0}, s{S_H}, 3072
s_add_u32 s{T0}, s{T0}, {S1}
v_add_u32 v{t0}, s{T0}, v{V_L16}""")
            for f in (1, 2, 3):
                r = ACC + 4 * f
                self.e(f"ds_read_b128 v[{r}:{r+3}], v{t0} offset:{1024*(f-1)}")

    def attn_epi(self):
        QA = 96; VA = 106; CS = 146
        VOP = 224; MC = 234; MP = 238; MP0 = 242; MB = 246; ON = 248; VC = 252; t0, t1, t2 = 253, 254, 255
        self.e(f"""s_lshl_b32 s{T0}, s{S_TG}, 8
s_add_u32 s{T0}, s{T0}, {L_STAT}
v_lshl_add_u32 v{t0}, v{V_I}, 2, s{T0}
v_lshl_add_u32 v{t1}, v{V_G}, 4, s{T0}""")
        for j in range(5):
            self.e(f"ds_read2_b32 v[{QA+2*j}:{QA+2*j+1}], v{t0} offset0:{16*j} offset1:{160+16*j}")
            self.e(f"ds_read_b128 v[{VA+8*j}:{VA+8*j+3}], v{t1} offset:{64*j}")
            self.e(f"ds_read_b128 v[{VA+8*j+4}:{VA+8*j+7}], v{t1} offset:{640+64*j}")
        self.e(f"""s_lshl_b32 s{T0}, s{S_H}, 8
s_add_u32 s{T0}, s{T0}, {L_CS}
v_lshl_add_u32 v{t0}, v{V_G}, 4, s{T0}
v_lshl_add_u32 v{t1}, v{V_I}, 2, s{T0}
ds_read_b128 v[{CS}:{CS+3}], v{t0}
ds_read_b128 v[{CS+4}:{CS+7}], v{t0} offset:64
ds_read_b128 v[{CS+8}:{CS+11}], v{t0} offset:192
ds_read_b32 v{CS+12}, v{t1} offset:128""")
        self.e(f"v_lshlrev_b32 v{t2}, 2, v{V_G}\nv_sub_u32 v{t2}, v{V_I}, v{t2}\nv_mov_b32 v{VC}, {hex(NEGBIG)}\nv_mov_b32 v{MB}, 0\nv_mov_b32 v{MB+1}, 0")
        self.e(f"s_and_b32 s{T0}, s{S_MT}, 7\ns_or_b32 s{T0}, s{T0}, s{S_TG}\ns_cmp_eq_u32 s{T0}, 0\ns_cselect_b64 s[{S_M1}:{S_M1+1}], 0, -1")
        for r in range(4):
            self.e(f"""v_subrev_u32 v{t0}, {r}, v{t2}
v_cmp_gt_u32 s[{S_M0}:{S_M0+1}], 8, v{t0}
v_cndmask_b32 v{MC+r}, v{VC}, 0, s[{S_M0}:{S_M0+1}]
v_mov_b32 v{t1}, {hex(0xffff << (16*(r&1)))}
v_cndmask_b32 v{t1}, 0, v{t1}, s[{S_M0}:{S_M0+1}]
v_or_b32 v{MB+(r>>1)}, v{MB+(r>>1)}, v{t1}
v_cmp_gt_i32 s[{S_M0}:{S_M0+1}], -8, v{t0}
v_cndmask_b32 v{MP+r}, v{VC}, 0, s[{S_M0}:{S_M0+1}]
v_cndmask_b32 v{MP0+r}, v{VC}, v{MP+r}, s[{S_M1}:{S_M1+1}]
v_mov_b32 v{ON+r}, {hex(ONE2)}""")
        self.e(f"v_mov_b32 v{VC}, {hex(f2u(20**-0.5 * LOG2E))}")
        self.b2_step1()
        self.e(f"""s_mul_i32 s{T0}, s{S_W}, {5*REC}
s_add_u32 s{T0}, s{T0}, {L_REC}
v_lshlrev_b32 v{t0}, 6, v{V_G}
v_lshl_add_u32 v{t0}, v{V_I}, 3, v{t0}
v_add_u32 v{t0}, s{T0}, v{t0}
v_lshl_add_u32 v{t1}, v{V_I}, 3, s{T0}
s_add_u32 s{T0}, s{T0}, 256
v_mov_b32 v{t2}, s{T0}
s_mov_b32 s{S_M0}, 0xffff0000
s_mov_b32 s{S_M0+1}, 0
v_cndmask_b32 v{t1}, v{t2}, v{t1}, s[{S_M0}:{S_M0+1}]""")
        for j in range(5):
            A = ACC + 16 * j
            for f, cs in ((3, CS + 8), (1, CS + 4), (0, CS)):
                if j == 0 and f == 0: continue
                for r in range(4): self.e(f"v_fmac_f32 v{A+4*f+r}, v{QA+2*j}, v{cs+r}")
                for r in range(4): self.e(f"v_mul_f32 v{A+4*f+r}, v{QA+2*j+1}, v{A+4*f+r}")
            self.e(f"v_cvt_pk_bf16_f32 v{A+4}, v{A+4}, v{A+5}\nv_cvt_pk_bf16_f32 v{A+5}, v{A+6}, v{A+7}")
            self.e(f"v_cvt_pk_bf16_f32 v{A+6}, v{A+12}, v{A+13}\nv_cvt_pk_bf16_f32 v{A+7}, v{A+14}, v{A+15}")
            self.e(f"s_mov_b32 exec_lo, 0xffff\ns_mov_b32 exec_hi, 0xffff\nds_write_b64 v{t0}, v[{A+6}:{A+7}] offset:{REC*j}\ns_mov_b64 exec, -1")
            if j:
                self.e(f"v_cvt_pk_bf16_f32 v{A}, v{A}, v{A+1}\nv_cvt_pk_bf16_f32 v{A+1}, v{A+2}, v{A+3}")
                self.e(f"ds_read_b64 v[{A+2}:{A+3}], v{t1} offset:{REC*j}")
            for r in range(4): self.e(f"v_fmac_f32 v{A+8+r}, v{VA+8*j+r}, v{CS+12}")
            for r in range(4): self.e(f"v_mul_f32 v{A+8+r}, v{VA+8*j+4+r}, v{A+8+r}")
            self.e(f"v_cvt_pk_bf16_f32 v{VOP+2*j}, v{A+8}, v{A+9}\nv_cvt_pk_bf16_f32 v{VOP+2*j+1}, v{A+10}, v{A+11}")
        VL = 96; MX = 112; OL = 116; RR = 120; RL = 124
        self.e(f"""v_lshrrev_b32 v{t0}, 2, v{V_LANE}
v_lshlrev_b32 v{t0}, 3, v{t0}
v_add_u32 v{t0}, s{T0}, v{t0}
v_subrev_u32 v{t0}, 0x80, v{t0}""")
        for j in range(1, 5):
            m = 0x11111111 << (j - 1)
            self.e(f"""s_mov_b32 s{S_M0}, {hex(m)}
s_mov_b32 s{S_M0+1}, {hex(m)}
v_cndmask_b32 v{t1}, v{t2}, v{t0}, s[{S_M0}:{S_M0+1}]
ds_read_b64_tr_b16 v[{VL+4*(j-1)}:{VL+4*(j-1)+1}], v{t1} offset:{REC*(j-1)}
ds_read_b64_tr_b16 v[{VL+4*(j-1)+2}:{VL+4*(j-1)+3}], v{t1} offset:{REC*j}""")
        self.e("s_waitcnt lgkmcnt(8)")
        for j in range(1, 5):
            A = ACC + 16 * j; P = A - 16
            mp = MP0 if j == 1 else MP
            self.e(f"v_mfma_f32_16x16x32_bf16 v[{A+8}:{A+11}], v[{A+4}:{A+7}], v[{A}:{A+3}], v[{MC}:{MC+3}]")
            self.e(f"v_mfma_f32_16x16x32_bf16 v[{A+12}:{A+15}], v[{P+4}:{P+7}], v[{A}:{A+3}], v[{mp}:{mp+3}]")
        self.b2_step2()
        for j in range(1, 5):
            A = ACC + 16 * j
            for r in range(4): self.e(f"v_max_f32 v{A+8+r}, v{A+8+r}, v{A+12+r}")
            self.e(f"v_max3_f32 v{MX+j-1}, v{A+8}, v{A+9}, v{A+10}\nv_max_f32 v{MX+j-1}, v{MX+j-1}, v{A+11}")
        m0, m1, m2, m3 = MX, MX + 1, MX + 2, MX + 3
        self.e(f"""v_permlane16_swap_b32 v{m0}, v{m1}
v_permlane16_swap_b32 v{m2}, v{m3}
v_max_f32 v{m0}, v{m0}, v{m1}
v_max_f32 v{m2}, v{m2}, v{m3}
v_permlane32_swap_b32 v{m0}, v{m2}
v_max_f32 v{m0}, v{m0}, v{m2}
v_mul_f32 v{m0}, v{m0}, v{VC}
v_mov_b32 v{m2}, v{m0}
v_permlane32_swap_b32 v{m0}, v{m2}
v_mov_b32 v{m1}, v{m0}
v_mov_b32 v{m3}, v{m2}
v_permlane16_swap_b32 v{m0}, v{m1}
v_permlane16_swap_b32 v{m2}, v{m3}""")
        for j in range(1, 5):
            A = ACC + 16 * j
            for r in range(4): self.e(f"v_fma_f32 v{A+8+r}, v{A+8+r}, v{VC}, -v{MX+j-1}")
            for r in range(4): self.e(f"v_exp_f32 v{A+8+r}, v{A+8+r}")
            self.e(f"""v_cvt_pk_bf16_f32 v{A+12}, v{A+8}, v{A+9}
v_cvt_pk_bf16_f32 v{A+13}, v{A+10}, v{A+11}
v_and_b32 v{A+14}, v{A+12}, v{MB}
v_and_b32 v{A+15}, v{A+13}, v{MB+1}
v_xor_b32 v{A+12}, v{A+12}, v{A+14}
v_xor_b32 v{A+13}, v{A+13}, v{A+15}""")
            V = VOP + 2 * (j - 1)
            self.e(f"v_mfma_f32_16x16x32_bf16 v[{A+4}:{A+7}], v[{ON}:{ON+3}], v[{A+12}:{A+15}], 0")
            self.e(f"v_mfma_f32_16x16x32_bf16 v[{A}:{A+3}], v[{V}:{V+3}], v[{A+12}:{A+15}], 0")
            c = "0" if j == 1 else f"v[{OL}:{OL+3}]"
            self.e(f"v_mfma_f32_16x16x32_bf16 v[{OL}:{OL+3}], v[{VL+4*(j-1)}:{VL+4*(j-1)+3}], v[{A+12}:{A+15}], {c}")
        self.e(f"""v_and_b32 v{t0}, 31, v{V_LANE}
v_lshlrev_b32 v{t0}, 4, v{t0}
v_lshrrev_b32 v{t1}, 5, v{V_LANE}
s_mov_b32 s{T0}, {A2_RT}
v_mad_u32_u24 v{t0}, v{t1}, s{T0}, v{t0}
v_lshlrev_b32 v{t1}, 4, v{V_I}
v_mad_u32_u24 v{t1}, v{V_G}, s{T0}, v{t1}
s_lshl_b32 s{T0}, s{S_MT}, 1
s_add_u32 s{T0}, s{T0}, s{S_TG}
s_lshl_b32 s{T0}, s{T0}, 5
s_add_u32 s{T0}, s{T0}, s{S_NT}
s_mul_i32 s{T0}, s{T0}, {A2_BLK}
s_lshl_b32 s{T4}, s{S_H}, 9
s_add_u32 s{T4}, s{T4}, s{T0}
s_add_u32 s{T4}, s{T4}, 6144
s_lshl_b32 s{T5}, s{S_H}, 8
s_add_u32 s{T5}, s{T5}, s{T0}
s_add_u32 s{T5}, s{T5}, 8192""")
        for j in range(1, 5):
            A = ACC + 16 * j
            self.e(f"v_rcp_f32 v{RR+j-1}, v{A+4}")
        for pr in range(2):
            D = 128 + 4 * pr
            for u in range(2):
                j = 1 + 2 * pr + u; A = ACC + 16 * j
                for r in range(4): self.e(f"v_mul_f32 v{A+r}, v{A+r}, v{RR+j-1}")
                self.e(f"v_cvt_pk_bf16_f32 v{D+2*u}, v{A}, v{A+1}\nv_cvt_pk_bf16_f32 v{D+2*u+1}, v{A+2}, v{A+3}")
                self.e(f"v_mov_b32_dpp v{RL}, v{RR+j-1} quad_perm:[0,1,2,3] row_mask:{hex(1<<(j-1))} bank_mask:0xf")
            self.e(f"v_permlane32_swap_b32 v{D}, v{D+2}\nv_permlane32_swap_b32 v{D+1}, v{D+3}")
            self.vmop(f"buffer_store_dwordx4 v[{D}:{D+3}], v{t0}, s[{SRDWS}:{SRDWS+3}], s{T4} offen sc1")
            if pr == 0: self.e(f"s_add_u32 s{T4}, s{T4}, {2*A2_RT}")
        for r in range(4): self.e(f"v_mul_f32 v{OL+r}, v{OL+r}, v{RL}")
        self.e(f"v_cvt_pk_bf16_f32 v136, v{OL}, v{OL+1}\nv_cvt_pk_bf16_f32 v137, v{OL+2}, v{OL+3}\nv_mov_b32 v138, 0\nv_mov_b32 v139, 0")
        self.vmop(f"buffer_store_dwordx4 v[136:139], v{t1}, s[{SRDWS}:{SRDWS+3}], s{T5} offen sc1")
        self.stamp(3)

    def mlp_epi(self):
        q0, q1, q2, q3 = V_SQ; t0, t1, t2, t3 = V_T
        self.p2_lane_init()
        self.e(f"v_add_f32 v{q0}, v{q0}, v{q1}\nv_add_f32 v{q2}, v{q2}, v{q3}")
        self.xgroup_sum(q0, t0); self.xgroup_sum(q2, t1)
        self.ln_stats(q2, q0, t0, t1)
        self.e(f"""s_lshl_b32 s{T0}, s{S_W}, 6
s_add_u32 s{T0}, s{T0}, {L_STAT}
v_lshl_add_u32 v{t0}, v{V_I}, 2, s{T0}
s_mov_b64 exec, 0xffff
ds_write2_b32 v{t0}, v{q2}, v{q0} offset0:0 offset1:160
s_mov_b64 exec, -1""")
        CS = 96; QA = 108; A2 = 116; E = 120; D = 136; a0, a1 = 253, 254
        for r in range(12): self.e(f"v_mov_b32 v{CS+r}, v{V_CS+r}")
        self.e(f"""s_waitcnt lgkmcnt(0)
s_barrier
s_lshl_b32 s{T0}, s{S_TG}, 8
s_add_u32 s{T0}, s{T0}, {L_STAT}
v_lshl_add_u32 v{a0}, v{V_I}, 2, s{T0}""")
        for j in range(4):
            self.e(f"ds_read2_b32 v[{QA+2*j}:{QA+2*j+1}], v{a0} offset0:{16*j} offset1:{160+16*j}")
        self.b2_step1()
        self.e(f"""v_and_b32 v{a0}, 31, v{V_LANE}
v_lshlrev_b32 v{a0}, 4, v{a0}
v_lshrrev_b32 v{a1}, 5, v{V_LANE}
s_mov_b32 s{T0}, {A2_RT}
v_mad_u32_u24 v{a0}, v{a1}, s{T0}, v{a0}
s_lshl_b32 s{T0}, s{S_MT}, 1
s_add_u32 s{T0}, s{T0}, s{S_TG}
s_lshl_b32 s{T0}, s{T0}, 5
s_add_u32 s{T0}, s{T0}, s{S_NT}
s_mul_i32 s{T0}, s{T0}, {A2_BLK}
s_lshl_b32 s{T4}, s{S_H}, 10
s_add_u32 s{T4}, s{T4}, s{T0}
s_lshl_b32 s{T5}, s{S_H}, 9
s_add_u32 s{T5}, s{T5}, s{T0}
s_add_u32 s{T5}, s{T5}, 4096""")
        for j in range(4): self.e(f"v_mul_f32 v{A2+j}, {hex(f2u(-LOG2E))}, v{QA+2*j+1}")
        for j in range(4):
            A = ACC + 16 * (j + 1)
            Dn = D + 8 * (j & 1); Ds = D + 16
            for r in range(12): self.e(f"v_fmac_f32 v{A+r}, v{QA+2*j}, v{CS+r}")
            for r in range(12): self.e(f"v_mul_f32 v{E+r}, v{A2+j}, v{A+r}")
            for r in range(12): self.e(f"v_exp_f32 v{E+r}, v{E+r}")
            for r in range(12): self.e(f"v_mul_f32 v{A+r}, v{QA+2*j+1}, v{A+r}")
            for r in range(12): self.e(f"v_add_f32 v{E+r}, 1.0, v{E+r}")
            for r in range(12): self.e(f"v_rcp_f32 v{E+r}, v{E+r}")
            for r in range(12): self.e(f"v_mul_f32 v{A+r}, v{A+r}, v{E+r}")
            for r in range(4): self.e(f"v_cvt_pk_bf16_f32 v{Dn+r}, v{A+2*r}, v{A+2*r+1}")
            self.vmop(f"buffer_store_dwordx4 v[{Dn}:{Dn+3}], v{V_L16}, s[{SRDWS}:{SRDWS+3}], s{T4} offen sc1")
            self.e(f"s_add_u32 s{T4}, s{T4}, {A2_RT}")
            Dd = Ds + 4 * (j >> 1)
            for r in range(2): self.e(f"v_cvt_pk_bf16_f32 v{Dd+2*(j&1)+r}, v{A+8+2*r}, v{A+9+2*r}")
            if j & 1:
                self.e(f"v_permlane32_swap_b32 v{Dd}, v{Dd+2}\nv_permlane32_swap_b32 v{Dd+1}, v{Dd+3}")
                self.vmop(f"buffer_store_dwordx4 v[{Dd}:{Dd+3}], v{a0}, s[{SRDWS}:{SRDWS+3}], s{T5} offen sc1")
                self.e(f"s_add_u32 s{T5}, s{T5}, {2*A2_RT}")
            if j == 1: self.b2_step2()
        self.stamp(3)

    def poll(self, vaddr, vdst, typ, first_op=None):
        lp, ok = self.lab("pl"), self.lab("pok")
        ld = f"buffer_load_dword v{vdst}, v{vaddr}, s[{SRDWS}:{SRDWS+3}], s{T4} offen sc1"
        if first_op is None:
            self.e(f"s_mov_b32 s{T4}, {FLAG_BASE + typ*16384}")
            first_op = self.vmop(ld)
        self.vmwait(first_op)
        self.e(f"""s_mov_b32 s{T0}, 0
{lp}:
v_cmp_ne_u32 vcc, s{S_NONCE}, v{vdst}
s_cbranch_vccz {ok}
s_add_u32 s{T0}, s{T0}, 1
s_cmp_gt_u32 s{T0}, {SPIN}
s_cbranch_scc1 {ok}
s_sleep 1
{ld}
s_waitcnt vmcnt(0)
s_branch {lp}
{ok}:""")
    def p2(self, n):
        STG = 112; NS = 12
        V_FA, V_FD, V_O = 3, 4, 15
        V_FA, V_FD = 5, 6
        XR = 240; RW = 246; RRD = 250; V_OUT = 251; TMP = 208
        self.b2_step3()
        self.e(f"""s_lshl_b32 s{T0}, s{S_XCD}, 4
s_add_u32 s{T0}, s{T0}, s{S_W}
s_lshl_b32 s{T0}, s{T0}, 7
v_and_b32 v{V_LT}, 1, v{V_LANE}
v_lshlrev_b32 v{V_LT}, 10, v{V_LT}
v_add_u32 v{V_LT}, s{T0}, v{V_LT}
s_lshl_b32 s{T5}, s{S_RT0}, 3
s_add_u32 s{T5}, s{T5}, s{S_W}
s_mul_i32 s{T5}, s{T5}, {A2_BLK}""")
        V_FA = V_LT; V_FD = 4
        self.poll(V_FA, V_FD, 0)
        self.stamp(5)
        seq = [(j, ks) for j in range(n) for ks in range(6)] + [(j, ks) for j in range(n) for ks in range(6, 9)]
        ops = {}
        def issue(q):
            j, ks = seq[q]
            off = j * A2_RT + (ks >> 2) * 4096
            r = STG + 4 * (q % NS)
            if ks & 3 == 0 or ks == 6:
                self.e(f"s_add_u32 s{S_DELTA}, s{T5}, {off}")
            ops[q] = self.vmop(f"buffer_load_dwordx4 v[{r}:{r+3}], v{V_L16}, s[{SRDWS}:{SRDWS+3}], s{S_DELTA} offen offset:{1024*(ks&3)} sc1")
        for q in range(NS): issue(q)
        pollop = None
        pend_reduce = None
        def reduce_issue(m):
            sp = (2 * m) % 4
            for u in range(8):
                self.e(f"ds_read_b128 v[{TMP+4*u}:{TMP+4*u+3}], v{RRD} offset:{u*4096}")
        def reduce_finish(m):
            self.e("s_waitcnt lgkmcnt(0)")
            self.vmwait(xops[m])
            for (a, b) in ((0, 1), (2, 3), (4, 5), (6, 7), (0, 2), (4, 6), (0, 4)):
                for r in range(4): self.e(f"v_add_f32 v{TMP+4*a+r}, v{TMP+4*a+r}, v{TMP+4*b+r}")
            x = XR + 2 * m
            self.e(f"""v_lshlrev_b32 v{TMP+4}, 16, v{x}
v_and_b32 v{TMP+5}, 0xffff0000, v{x}
v_lshlrev_b32 v{TMP+6}, 16, v{x+1}
v_and_b32 v{TMP+7}, 0xffff0000, v{x+1}""")
            for r in range(4): self.e(f"v_add_f32 v{TMP+r}, v{TMP+r}, v{TMP+4+r}")
            self.e(f"v_cvt_pk_bf16_f32 v{x}, v{TMP}, v{TMP+1}\nv_cvt_pk_bf16_f32 v{x+1}, v{TMP+2}, v{TMP+3}")
            self.e(f"s_add_u32 s{T0}, s{T3}, {m*32*2560}")
            self.vmop(f"buffer_store_dwordx2 v[{x}:{x+1}], v{V_OUT}, s[{SRDOUT}:{SRDOUT+3}], s{T0} offen")
        xops = {}
        for q in range(len(seq)):
            j, ks = seq[q]
            if q == 6 * n:
                self.e("s_waitcnt lgkmcnt(0)\ns_barrier")
                self.stamp(6)
                self.e(f"""v_xor_b32 v{RW}, v{V_I}, v{V_G}
v_lshlrev_b32 v{RW}, 4, v{RW}
v_lshl_add_u32 v{RW}, v{V_G}, 8, v{RW}
s_lshl_b32 s{T0}, s{S_W}, 12
v_add_u32 v{RW}, s{T0}, v{RW}
v_xor_b32 v{RW+1}, 0x440, v{RW}
v_xor_b32 v{RW+2}, 0x880, v{RW}
v_xor_b32 v{RW+3}, 0xcc0, v{RW}
s_and_b32 s{T0}, s{S_W}, 3
s_lshl_b32 s{T0}, s{T0}, 2
v_add_u32 v{V_OUT}, s{T0}, v{V_G}
v_xor_b32 v{RRD}, v{V_OUT}, v{V_I}
v_lshlrev_b32 v{RRD}, 4, v{RRD}
v_lshl_add_u32 v{RRD}, v{V_I}, 8, v{RRD}
s_lshr_b32 s{T0}, s{S_W}, 2
s_lshl_b32 s{T4}, s{T0}, 15
v_add_u32 v{RRD}, s{T4}, v{RRD}
v_mul_u32_u24 v{V_OUT}, 2560, v{V_OUT}
v_lshl_add_u32 v{V_OUT}, v{V_I}, 3, v{V_OUT}
s_add_u32 s{T0}, s{T0}, s{S_RT0}
s_and_b32 s{T3}, s{T0}, 63
s_mul_i32 s{T3}, s{T3}, {16*2560}
s_lshr_b32 s{T0}, s{S_RT0}, 6
s_mul_i32 s{T0}, s{T0}, 1280
s_add_u32 s{T3}, s{T3}, s{T0}
s_lshl_b32 s{T0}, s{S_CT}, 7
s_add_u32 s{T3}, s{T3}, s{T0}""")
                for m in range(n // 2):
                    self.e(f"s_add_u32 s{T0}, s{T3}, {m*32*2560}")
                    xops[m] = self.vmop(f"buffer_load_dwordx2 v[{XR+2*m}:{XR+2*m+1}], v{V_OUT}, s[{SRDX}:{SRDX+3}], s{T0} offen")
            self.vmwait(ops[q])
            r = STG + 4 * (q % NS)
            for t in range(4):
                d = ACC + 16 * j + 4 * t; b = BH + 16 * (ks % 6) + 4 * t
                c = "0" if ks == 0 else f"v[{d}:{d+3}]"
                self.e(f"v_mfma_f32_16x16x32_bf16 v[{d}:{d+3}], v[{b}:{b+3}], v[{r}:{r+3}], {c}")
            if q == 6 * n - 4:
                for x in self.trb_addr(T2, self.AR): self.e(x)
                for hh in (12, 13):
                    for x in self.b2_reads(hh, self.AR, 2048 * (hh - 11), ks=0): self.e(x)
                for x in self.trb_addr(T3, self.AR): self.e(x)
                for hh in (14, 15):
                    for x in self.b2_reads(hh, self.AR, 2048 * (hh - 14), ks=1): self.e(x)
                for x in self.trb_addr(T1, self.AR): self.e(x)
                for x in self.b2_reads(16, self.AR, 0, ks=2, both=True): self.e(x)
            if q + NS == 6 * n - self.lead:
                self.e(f"s_mov_b32 s{T4}, {FLAG_BASE + 16384}")
                pollop = self.vmop(f"buffer_load_dword v{V_FD}, v{V_FA}, s[{SRDWS}:{SRDWS+3}], s{T4} offen sc1")
            if q + NS == 6 * n:
                self.poll(V_FA, V_FD, 1, first_op=pollop)
            if q + NS < len(seq): issue(q + NS)
            if q >= 6 * n and ks == 8 and (j & 1):
                m = j >> 1
                if pend_reduce is not None: reduce_finish(pend_reduce)
                for jj in (j - 1, j):
                    for t in range(4):
                        d = ACC + 16 * jj + 4 * t
                        self.e(f"ds_write_b128 v{RW+t}, v[{d}:{d+3}] offset:{(jj & 1) * 32768}")
                self.e("s_waitcnt lgkmcnt(0)\ns_barrier")
                reduce_issue(m)
                for t in range(4): self.e(f"v_xor_b32 v{RW+t}, 0x10000, v{RW+t}")
                self.e(f"v_xor_b32 v{RRD}, 0x10000, v{RRD}")
                pend_reduce = m
        reduce_finish(pend_reduce)
        self.stamp(7)
        if self.diag:
            self.e(f"""s_lshl_b32 s{T0}, s2, 3
s_add_u32 s{T0}, s{T0}, s{S_W}
s_lshl_b32 s{T0}, s{T0}, 7
s_add_u32 s{T0}, s{T0}, {STAMP_BASE}
v_lshlrev_b32 v{V_L16}, 2, v{V_LANE}
s_mov_b32 exec_hi, 0
buffer_store_dword v0, v{V_L16}, s[{SRDWS}:{SRDWS+3}], s{T0} offen""")
        self.e("s_endpgm")

    def kperm(self, dst, rho, t):
        self.e(f"""v_and_b32 v{dst}, 35, v{rho}
v_bfe_u32 v{t}, v{rho}, 2, 2
v_lshl_add_u32 v{dst}, v{t}, 3, v{dst}
v_bfe_u32 v{t}, v{rho}, 4, 1
v_lshl_add_u32 v{dst}, v{t}, 2, v{dst}""")
    def common_srd(self):
        self.srd(SRDWS, P_WS, WS_BYTES); self.srd(SRDDBG, P_DBG, 256); self.srd(SRDOUT, P_OUT, 2048 * 1280); self.srd(SRDX, P_X, 2048 * 1280)
    def first_dmas(self, nd, sts=(0, 1, 2)):
        if 0 in sts: self.e(f"s_mov_b32 s{S_WSLOT}, 0")
        for st in sts:
            for i in range(nd):
                for x in self.dma(i): self.e(x)
            self.e(f"s_mov_b32 s{S_WSLOT}, {((st+1)%3)*SLOT}")
    def late_init(self, kind):
        a, b, c = V_T[0], V_T[1], V_T[2]
        self.common_srd()
        sk = self.lab("non")
        self.e(f"""s_or_b32 s{T0}, s2, s{S_W}
s_cmp_lg_u32 s{T0}, 0
s_cbranch_scc1 {sk}
s_memrealtime s[{S_M0}:{S_M0+1}]
s_waitcnt lgkmcnt(0)
s_or_b32 s{T0}, s{S_M0}, 1
v_mov_b32 v{a}, s{T0}
s_mov_b64 exec, 1
buffer_store_dword v{a}, off, s[{SRDDBG}:{SRDDBG+3}], 0 sc1
s_mov_b64 exec, -1
{sk}:""")
        self.e(f"""v_lshrrev_b32 v{V_G}, 4, v{V_LANE}
v_and_b32 v{V_I}, 15, v{V_LANE}
v_lshlrev_b32 v{V_L16}, 4, v{V_LANE}
v_lshrrev_b32 v{a}, 1, v{V_I}
v_xor_b32 v{a}, v{a}, v{V_G}
v_lshlrev_b32 v{a}, 4, v{a}
v_lshl_add_u32 v{a}, v{V_I}, 7, v{a}
s_lshl_b32 s{T0}, s{S_TG}, 13
v_add_u32 v{V_X0}, s{T0}, v{a}
v_xor_b32 v{V_X1}, 64, v{V_X0}
s_add_u32 s{T0}, s{S_W}, 1
s_lshl_b32 s{T0}, s{T0}, 11
v_add_u32 v{V_ST0}, s{T0}, v{a}
v_xor_b32 v{V_ST1}, 64, v{V_ST0}
v_lshrrev_b32 v{a}, 2, v{V_LANE}
v_and_b32 v{b}, 3, v{V_LANE}""")
        if kind == "a":
            self.e(f"""v_mul_u32_u24 v{a}, 480, v{a}
s_mul_i32 s{T0}, s{S_H}, 40
s_add_u32 s{T0}, s{T0}, {XREG}
v_add_u32 v{a}, s{T0}, v{a}
v_lshl_add_u32 v{V_W0}, v{b}, 3, v{a}
v_mul_u32_u24 v{c}, 160, v{b}
v_add3_u32 v{V_W1}, v{a}, v{c}, 32
v_cmp_ne_u32 s[{S_M0}:{S_M0+1}], 3, v{b}
v_lshlrev_b32 v{c}, 3, v{V_LANE}
v_cndmask_b32 v{V_W1}, v{c}, v{V_W1}, s[{S_M0}:{S_M0+1}]
v_cndmask_b32 v{V_LSEL}, 0, 1, s[{S_M0}:{S_M0+1}]""")
            self.e(f"v_mov_b32 v{STF[0]}, {hex(ONE2)}\nv_mov_b32 v{STF[0]+1}, {hex(ONE2)}\nv_mov_b32 v{STF[0]+2}, {hex(ONE2)}\nv_mov_b32 v{STF[0]+3}, {hex(ONE2)}")
            sk = self.lab("ones")
            self.e(f"""s_cmp_gt_u32 s{S_W}, 2
s_cbranch_scc1 {sk}
s_mul_i32 s{T0}, s{S_W}, {SLOT}
v_add_u32 v{a}, s{T0}, v{V_L16}
ds_write_b128 v{a}, v[{STF[0]}:{STF[0]+3}]
{sk}:
s_mul_i32 s{T0}, s{S_W}, {5*REC}
s_add_u32 s{T0}, s{T0}, {L_REC + 256}
v_mul_u32_u24 v{a}, {REC}, v{V_LANE}
v_add_u32 v{a}, s{T0}, v{a}
v_mov_b32 v{STF[1]}, 0
v_mov_b32 v{STF[1]+1}, 0
s_mov_b64 exec, 31
ds_write_b64 v{a}, v[{STF[1]}:{STF[1]+1}]
s_mov_b64 exec, -1""")
            nacc = range(ACC, ACC + 80)
        else:
            self.e(f"""v_mul_u32_u24 v{a}, 384, v{a}
v_lshl_add_u32 v{a}, v{b}, 3, v{a}
v_add_u32 v{a}, {XREG}, v{a}
v_bfe_u32 v{c}, v{V_LANE}, 3, 2
s_mul_i32 s{T0}, s{S_H}, 3""")
            for t in range(3):
                self.e(f"""s_add_u32 s{T1}, s{T0}, {t}
s_lshr_b32 s{T2}, s{T1}, 2
s_lshl_b32 s{T2}, s{T2}, 7
s_and_b32 s{T1}, s{T1}, 3
v_xor_b32 v{b}, s{T1}, v{c}
v_lshl_add_u32 v{b}, v{b}, 5, v{a}
v_add_u32 v{V_W0+t}, s{T2}, v{b}""")
            for r in range(4): self.e(f"v_mov_b32 v{V_ONES+r}, {hex(ONE2)}")
            nacc = [ACC + 16 * (j + 1) + r for j in range(4) for r in range(12)] + list(range(V_CS, V_CS + 12))
        for r in list(nacc) + V_SQ: self.e(f"v_mov_b32 v{r}, 0")
        self.e(f"""v_lshrrev_b32 v{a}, 3, v{V_LANE}
v_bfe_u32 v{b}, v{V_LANE}, 4, 2
v_lshlrev_b32 v{b}, 1, v{b}
v_and_b32 v{c}, 7, v{V_LANE}
v_xor_b32 v{b}, v{b}, v{c}
v_lshlrev_b32 v{b}, 4, v{b}
v_mul_u32_u24 v{V_B2}, 1280, v{a}
v_add_u32 v{V_B2}, v{V_B2}, v{b}
v_lshrrev_b32 v{c}, 5, v{V_LANE}
v_mul_u32_u24 v{c}, {16*1280}, v{c}
v_add_u32 v{V_B2L}, v{V_B2}, v{c}
s_lshl_b32 s{T0}, s{S_CT}, 7
s_mul_i32 s{S_B2H}, s{S_W}, {192*1280}
s_add_u32 s{S_B2H}, s{S_B2H}, s{T0}
s_mul_i32 s{S_B2O}, s{S_W}, {80*1280}
s_add_u32 s{S_B2O}, s{S_B2O}, s{T0}
s_mov_b32 s{S_RSLOT}, 0
s_mov_b32 s{T4}, {(-2*SLOT) & 0xffffffff}
s_mov_b32 s{T5}, {SLOT}""")

    def gen(self):
        n = NAME + "_kernel"
        a, b, c, d = V_T
        self.e(f"""s_cmp_ge_u32 s2, 256
s_cbranch_scc1 L_exit
s_load_dwordx16 s[32:47], s[0:1], 0
s_load_dwordx2 s[48:49], s[0:1], 64
v_lshrrev_b32 v{a}, 6, v0
v_and_b32 v{V_LANE}, 63, v0
v_readfirstlane_b32 s{S_W}, v{a}
s_and_b32 s{S_XCD}, s2, 7
s_lshr_b32 s{T0}, s2, 3
s_and_b32 s{S_MT}, s{T0}, 7
s_and_b32 s{T1}, s2, 4
s_lshl_b32 s{T1}, s{T1}, 1
s_or_b32 s{S_MT}, s{S_MT}, s{T1}
s_and_b32 s{S_NT}, s2, 3
s_lshl_b32 s{S_NT}, s{S_NT}, 1
s_bfe_u32 s{T1}, s2, 0x10006
s_or_b32 s{S_NT}, s{S_NT}, s{T1}
s_lshr_b32 s{S_TG}, s{S_W}, 2
s_and_b32 s{S_H}, s{S_W}, 3""")
        if self.diag: self.e("v_mov_b32 v0, 0")
        self.e(f"""v_lshrrev_b32 v{a}, 3, v{V_LANE}
s_and_b32 s{T1}, s{S_W}, 1
s_lshl_b32 s{T1}, s{T1}, 2
v_lshrrev_b32 v{b}, 4, v{V_LANE}
v_or_b32 v{b}, s{T1}, v{b}
v_and_b32 v{c}, 7, v{V_LANE}
v_xor_b32 v{b}, v{b}, v{c}
s_lshl_b32 s{T1}, s{S_W}, 3
v_add_u32 v{a}, s{T1}, v{a}
v_mul_u32_u24 v{a}, 2560, v{a}
v_lshl_add_u32 v{V_DMA[0]}, v{b}, 4, v{a}
s_and_b32 s{T1}, s{S_MT}, 7
s_mul_i32 s{SO[0]}, s{T1}, {128*2560}
s_lshr_b32 s{T2}, s{S_MT}, 3
s_mul_i32 s{T2}, s{T2}, 1280
s_add_u32 s{SO[0]}, s{SO[0]}, s{T2}
s_add_u32 s{SO[1]}, s{SO[0]}, {64*2560}
s_mov_b32 s{STEP[0]}, 128
s_lshl_b32 s{T2}, s{S_W}, 10
s_add_u32 s{DD[0]}, s{T2}, 2048
s_add_u32 s{DD[1]}, s{T2}, {2048+8192}
s_add_u32 s{DD[2]}, s{T2}, {XREG}
s_add_u32 s{DD[3]}, s{T2}, {XREG+8192}
s_add_u32 s{DD[4]}, s{T2}, {XREG+16384}
s_add_u32 s{DD[5]}, s{T2}, {XREG+24576}
s_lshl_b32 s{T3}, s{S_W}, 6
s_cmp_ge_u32 s2, 128
s_cbranch_scc1 L_mlp""")
        for i in range(2, 6):
            v = V_DMA[i]
            self.e(f"""v_add_u32 v{a}, s{T3}, v{V_LANE}
v_add_u32 v{a}, {512*(i-2)}, v{a}
v_mul_u32_u24 v{b}, 2185, v{a}
v_lshrrev_b32 v{b}, 16, v{b}
v_mul_u32_u24 v{c}, 30, v{b}
v_sub_u32 v{a}, v{a}, v{c}""")
            self.kperm(c, b, d)
            self.e(f"""v_mul_u32_u24 v{v}, 3840, v{c}
v_mul_u32_u24 v{b}, 26, v{a}
v_lshrrev_b32 v{b}, 8, v{b}
v_mul_u32_u24 v{b}, {1280-160}, v{b}
v_lshl_add_u32 v{a}, v{a}, 4, v{b}
v_add_u32 v{v}, v{v}, v{a}""")
        self.e(f"""s_mul_i32 s{SO[2]}, s{S_NT}, 160
s_mov_b32 s{SO[3]}, s{SO[2]}
s_mov_b32 s{SO[4]}, s{SO[2]}
s_mov_b32 s{SO[5]}, s{SO[2]}
s_mov_b32 s{STEP[2]}, {64*3840}
s_mov_b32 s{STEP[5]}, {64*3840}
s_waitcnt lgkmcnt(0)""")
        self.srd(SRD0, P_X, 2048 * 1280); self.srd(SRD1, P_WQKV, 640 * 3840); self.srd(SRD2, P_WQKV, 640 * 3840)
        self.e(f"""s_cmp_lt_u32 s{S_W}, 6
s_cbranch_scc1 L_a_go
s_mov_b32 s{SRD2}, s{P_X}
s_mov_b32 s{SRD2+1}, s{P_X+1}
s_mov_b32 s{SRD2+2}, {2048*1280}
v_mov_b32 v{V_DMA[5]}, v{V_DMA[0]}
s_mov_b32 s{STEP[5]}, 128
s_mov_b32 s{DD[5]}, 1024
s_sub_u32 s{SO[5]}, s{SO[0]}, {64*2560}
s_cmp_eq_u32 s{T1}, 0
s_cselect_b32 s{SO[5]}, s{SO[0]}, s{SO[5]}
s_cmp_eq_u32 s{S_W}, 7
s_cbranch_scc1 L_a_go
s_mov_b32 s{SO[5]}, s{SO[0]}
s_mov_b32 s{DD[5]}, s{DD[0]}
L_a_go:""")
        self.stamp(0)
        self.first_dmas(6, (0,) if self.o.get('stg',1) else (0,1,2))
        self.e(f"""s_lshr_b32 s{T0}, s2, 3
s_sub_u32 s{T1}, s{T0}, 8
s_lshr_b32 s{T2}, s{T1}, 2
s_add_u32 s{T2}, s{T2}, 8
s_and_b32 s{T1}, s{T1}, 3
s_lshl_b32 s{T1}, s{T1}, 2
s_cmp_lt_u32 s{T0}, 8
s_cselect_b32 s{S_CT}, s{T0}, s{T2}
s_cselect_b32 s{S_RT0}, 0, s{T1}
s_lshl_b32 s{T0}, s{S_XCD}, 4
s_add_u32 s{S_RT0}, s{S_RT0}, s{T0}""")
        self.late_init("a")
        if self.o.get('stg',1): self.first_dmas(6, (1,2))
        self.e(f"s_cmp_eq_u32 s{S_TG}, 1\ns_cbranch_scc1 L_a1")
        self.main_loop("a0"); self.attn_pre("a0")
        self.e("s_branch L_aepi\nL_a1:")
        self.main_loop("a1"); self.attn_pre("a1")
        self.e("L_aepi:")
        self.attn_epi()
        self.publish(1)
        self.p2(self.n_attn)
        self.e("L_mlp:")
        for i in range(2, 5):
            v = V_DMA[i]
            self.e(f"""v_add_u32 v{a}, s{T3}, v{V_LANE}
v_add_u32 v{a}, {512*(i-2)}, v{a}
v_mul_u32_u24 v{b}, 2731, v{a}
v_lshrrev_b32 v{b}, 16, v{b}
v_mul_u32_u24 v{c}, 24, v{b}
v_sub_u32 v{a}, v{a}, v{c}""")
            self.kperm(c, b, d)
            self.e(f"""v_mul_u32_u24 v{v}, 3072, v{c}
v_and_b32 v{b}, 6, v{b}
v_xor_b32 v{a}, v{a}, v{b}
v_lshl_add_u32 v{v}, v{a}, 4, v{v}""")
        self.e(f"""v_mov_b32 v{V_DMA[5]}, 0
s_mul_i32 s{SO[2]}, s{S_NT}, 384
s_mov_b32 s{SO[3]}, s{SO[2]}
s_mov_b32 s{SO[4]}, s{SO[2]}
s_mov_b32 s{STEP[2]}, {64*3072}
s_waitcnt lgkmcnt(0)""")
        self.srd(SRD0, P_X, 2048 * 1280); self.srd(SRD1, P_W1, 640 * 3072); self.srd(SRD2, P_W1, 640 * 3072)
        self.stamp(0)
        self.first_dmas(5, (0,) if self.o.get('stg',1) else (0,1,2))
        self.e(f"""s_lshr_b32 s{T0}, s2, 3
s_and_b32 s{S_CT}, s{T0}, 7
s_bfe_u32 s{T1}, s{T0}, 0x10003
s_mul_i32 s{T1}, s{T1}, 6
s_add_u32 s{T1}, s{T1}, 4
s_lshl_b32 s{T0}, s{S_XCD}, 4
s_add_u32 s{S_RT0}, s{T1}, s{T0}""")
        self.late_init("m")
        if self.o.get('stg',1): self.first_dmas(5, (1,2))
        if self.o.get("dmamode", 0) == 2:
            self.e(f"s_cmp_eq_u32 s{S_TG}, 1\ns_cbranch_scc1 L_m1")
            self.main_loop("m0")
            self.e("s_branch L_mepi\nL_m1:")
            self.main_loop("m1")
            self.e("L_mepi:")
        else:
            self.main_loop("m0")
        self.mlp_epi()
        self.publish(0)
        self.p2(self.n_mlp)
        self.e("L_exit:\ns_endpgm")
        lines, nn = hz.fix(self.L)
        hdr = open("cdna_kernels/" + NAME + ".s.ref").read().split("; Override")[0]
        s = hdr + f"; @launch grid=(256,1,1) block=(512,1,1) lds=163840\n" + TARGET + head(n) + "\n".join(lines) + "\n" + kd(n, 256, 96, 256)
        return s, nn

if __name__ == "__main__":
    diag = "--diag" in sys.argv
    out = [a for a in sys.argv[1:] if not a.startswith("--")]
    opt = {}
    for a in sys.argv[1:]:
        if a.startswith("--") and "=" in a:
            k, v = a[2:].split("="); opt[k] = int(v)
    s, nn = G(diag=diag, **opt).gen()
    open(out[0] if out else "cdna_kernels/" + NAME + ".s", "w").write(s)
    print("nops inserted:", nn, "lines:", s.count("\n"))
```

```python
import sys, math, struct
from asmlib import NAME, kd, head, TARGET
import hz

def f2u(x): return struct.unpack("<I", struct.pack("<f", x))[0]

SLOT = 49152; XREG = 18432
S1 = 32768; S2 = 147456
L_STAT = S2
L_CS = S2 + 1280
L_DUMMY = S2 + 2304
L_REC = S2 + 3328
REC = 272
A2_BLK = 9216; A2_RT = 8 * A2_BLK
FLAG_BASE = 128 * A2_RT
STAMP_BASE = FLAG_BASE + 65536
WS_BYTES = STAMP_BASE + 256 * 8 * 64
ONE2 = 0x3f803f80
NEGBIG = f2u(-1.0e30)
LOG2E = math.log2(math.e)

SRD0, SRD1, SRD2, SRDWS, SRDDBG, SRDOUT, SRDX = 4, 8, 12, 16, 20, 24, 28
P_X, P_WQKV, P_WO, P_W1, P_W2, P_OUT, P_DBG, P_WS = 32, 34, 36, 40, 42, 44, 46, 48
SO = [50, 51, 52, 53, 54, 55]; STEP = [56, 56, 57, 57, 57, 58]; DD = [60, 61, 62, 63, 64, 65]
S_WSLOT, S_RSLOT, S_IT, S_W, S_MT, S_NT, S_TG, S_H, S_CT, S_RT0, S_NONCE = 66, 67, 68, 69, 70, 71, 72, 73, 74, 75, 76
S_B2H, S_B2O, S_DELTA, S_XCD = 77, 78, 79, 80
T0, T1, T2, T3, T4, T5 = 81, 82, 83, 84, 85, 86
S_M0, S_M1 = 88, 90
S_TS = 92

V_LANE, V_L16, V_B2, V_B2L, V_G, V_I = 1, 2, 3, 4, 5, 6
V_X0, V_X1, V_ST0, V_ST1, V_W0, V_W1, V_W2, V_LSEL, V_LT = 7, 8, 9, 10, 11, 12, 13, 14, 15
ACC = 16
SETA, SETB = 96, 132
STF = [168, 172]
V_DMA = [176, 176, 177, 178, 179, 180]
V_SQ = [182, 183, 184, 185]
V_T = [186, 187, 188, 189]
V_ONES = 192
V_CS = 196
BH = 160

SPIN = 0x8000
class G:
    def __init__(self, diag=False, lead=6, n_attn=4, n_mlp=6):
        self.L = []; self.diag = diag; self.lead = lead; self.n_attn = n_attn; self.n_mlp = n_mlp
        self.vm = 0; self.uid = 0
    def e(self, s):
        for ln in s.strip("\n").split("\n"):
            ln = ln.strip()
            if not ln: continue
            self.L.append(ln if ln.endswith(":") else "  " + ln)
    def lab(self, p):
        self.uid += 1; return f"L_{p}_{self.uid}"
    def srd(self, r, ptr, nbytes):
        self.e(f"s_mov_b32 s{r}, s{ptr}\ns_mov_b32 s{r+1}, s{ptr+1}\ns_mov_b32 s{r+2}, {nbytes}\ns_mov_b32 s{r+3}, 0x20000")
    def stamp(self, idx):
        if not self.diag: return
        self.e(f"""s_memrealtime s[{S_TS}:{S_TS+1}]
s_waitcnt lgkmcnt(0)
v_writelane_b32 v{V_LANE-1}, s{S_TS}, {idx}""")
    def vmreset(self): self.vm = 0
    def vmop(self, s):
        self.e(s); self.vm += 1; return self.vm
    def vmwait(self, op, extra=""):
        n = self.vm - op
        self.e(f"s_waitcnt vmcnt({min(n, 63)}) {extra}".strip())

    def dma(self, i):
        srd = [SRD0, SRD0, SRD1, SRD1, SRD1, SRD2][i]
        return [f"s_add_u32 m0, s{S_WSLOT}, s{DD[i]}",
                f"buffer_load_dwordx4 v{V_DMA[i]}, s[{srd}:{srd+3}], s{SO[i]} offen lds",
                f"s_add_u32 s{SO[i]}, s{SO[i]}, s{STEP[i]}"]
    def next_wslot(self):
        return [f"s_add_u32 s{S_WSLOT}, s{S_WSLOT}, {SLOT}", f"s_cmp_eq_u32 s{S_WSLOT}, {3*SLOT}", f"s_cselect_b32 s{S_WSLOT}, 0, s{S_WSLOT}"]

    def phase(self, mf, reads, valus, dmas, tail=()):
        reads = list(reads); valus = list(valus); dm = list(dmas); tail = list(tail)
        n = len(mf)
        dpos = {}
        if dm:
            for k in range(len(dm)): dpos[1 + (k * (n - 3)) // len(dm)] = k
        pend = None
        for idx, m in enumerate(mf):
            self.e(m)
            budget = 2
            if pend is not None:
                self.e(pend[1]);
                for x in pend[2:]: self.e(x)
                pend = None
            if reads:
                r = reads.pop(0)
                for x in r[:-1]: self.e(x); budget -= 1
                self.e(r[-1])
            elif tail and budget > 0:
                while tail and budget > 0:
                    x = tail.pop(0); self.e(x)
                    if x.startswith("v_"): budget -= 1
            while valus and budget > 0:
                self.e(valus.pop(0)); budget -= 1
            if idx in dpos:
                pend = dm[dpos[idx]]; self.e(pend[0])
        assert pend is None and not reads
        for x in valus + tail: self.e(x)

    def stat_ops(self, fr, sq, sm=None):
        o = []
        for k in range(4):
            a, b = V_T[2 * (k & 1)], V_T[2 * (k & 1) + 1]
            o += [f"v_lshlrev_b32 v{a}, 16, v{fr+k}", f"v_and_b32 v{b}, 0xffff0000, v{fr+k}",
                  f"v_fmac_f32 v{sq}, v{a}, v{a}", f"v_fmac_f32 v{sq+1}, v{b}, v{b}"]
            if sm is not None: o += [f"v_add_f32 v{sm}, v{sm}, v{a}", f"v_add_f32 v{sm+1}, v{sm+1}, v{b}"]
        return o

    def p1_mfmas(self, kind, S):
        o = []
        if kind == "m":
            for j in range(4):
                for t in range(3):
                    d = ACC + 16 * (j + 1) + 4 * t
                    o.append(f"v_mfma_f32_16x16x32_bf16 v[{d}:{d+3}], v[{S+20+4*t}:{S+23+4*t}], v[{S+4*(j+1)}:{S+4*(j+1)+3}], v[{d}:{d+3}]")
            for t in range(3):
                d = V_CS + 4 * t
                o.append(f"v_mfma_f32_16x16x32_bf16 v[{d}:{d+3}], v[{S+20+4*t}:{S+23+4*t}], v[{V_ONES}:{V_ONES+3}], v[{d}:{d+3}]")
        else:
            for j in (range(5) if kind == "a0" else range(1, 5)):
                for f in range(4):
                    d = ACC + 16 * j + 4 * f
                    w = f"v[{S+20+4*f}:{S+23+4*f}]"; x = f"v[{S+4*j}:{S+4*j+3}]"
                    a, b = (x, w) if f == 2 else (w, x)
                    o.append(f"v_mfma_f32_16x16x32_bf16 v[{d}:{d+3}], {a}, {b}, v[{d}:{d+3}]")
        return o
    def p1_reads(self, kind, S, kk):
        xs = []; ws = []
        vx = [V_X0, V_X1][kk]; vs = [V_ST0, V_ST1][kk]
        for j in (range(5) if kind == "a0" else range(1, 5)):
            xs.append([f"ds_read_b128 v[{S+4*j}:{S+4*j+3}], v{vx} offset:{2048*j}"])
        if kind == "m":
            for t in range(3):
                for hf in range(2):
                    r = S + 20 + 4 * t + 2 * hf
                    ws.append([f"ds_read_b64_tr_b16 v[{r}:{r+1}], v{V_W0+t} offset:{(hf*16+kk*32)*384}"])
        else:
            for f in range(4):
                for hf in range(2):
                    r = S + 20 + 4 * f + 2 * hf
                    ro = (hf * 16 + kk * 32) * 480
                    if f < 3:
                        ws.append([f"ds_read_b64_tr_b16 v[{r}:{r+1}], v{V_W0} offset:{ro + 160*f}"])
                    else:
                        ws.append([f"s_add_u32 s{T0}, s{S_RSLOT}, {ro}", f"v_mad_u32_u24 v{V_LT}, v{V_LSEL}, s{T0}, v{V_W1}",
                                   f"ds_read_b64_tr_b16 v[{r}:{r+1}], v{V_LT}"])
        st = STF[0] if S == SETA else STF[1]
        o = [xs[0]] + ws + xs[1:] + [[f"ds_read_b128 v[{st}:{st+3}], v{vs}"]]
        return o
    def p1_stats(self, kind, S):
        st = STF[0] if S == SETA else STF[1]
        if kind == "m": return self.stat_ops(st, V_SQ[0], V_SQ[2])
        o = self.stat_ops(st, V_SQ[0])
        if kind == "a0": o += self.stat_ops(S, V_SQ[2])
        return o
    def ring_adv(self, kind):
        regs = [V_X0, V_X1, V_ST0, V_ST1, V_W0] + ([V_W1, V_W2] if kind == "m" else [])
        o = [f"s_cmp_eq_u32 s{S_RSLOT}, {2*SLOT}", f"s_cselect_b32 s{S_DELTA}, {(-2*SLOT) & 0xffffffff}, {SLOT}"]
        o = [f"s_cmp_eq_u32 s{S_RSLOT}, {2*SLOT}", f"s_cselect_b32 s{S_DELTA}, s{T4}, s{T5}",
             f"s_add_u32 s{S_RSLOT}, s{S_RSLOT}, s{S_DELTA}"]
        o += [f"v_add_u32 v{r}, s{S_DELTA}, v{r}" for r in regs]
        return o

    def b2_rowoff(self, n):
        if n < 16: return 48 * (n >> 2) + 8 * (n & 3)
        m = n - 16; ks = m >> 2; u = m & 3
        return 96 * ks + 32 + 48 * (u & 1) + 8 * (u >> 1)
    def b2_dma(self, n, ldsreg, ldsoff):
        if n < 24:
            srd, base, ro, v = SRD0, S_B2H, self.b2_rowoff(n), V_B2
        elif n < 32:
            m = n - 24; ks = m >> 2; u = m & 3
            srd, base, ro, v = SRD1, S_B2O, 40 * ks + 20 * (u & 1) + 8 * (u >> 1), V_B2
        else:
            srd, base, ro, v = SRD1, S_B2O, 16 + 40 * (n - 32), V_B2L
        return [f"s_add_u32 m0, s{ldsreg}, {ldsoff}", f"s_add_u32 s{T0}, s{base}, {ro*1280}",
                f"buffer_load_dwordx4 v{v}, s[{srd}:{srd+3}], s{T0} offen lds"]

    def main_loop(self, kind):
        nd = 5 if kind == "m" else 6
        top, mid, sw8, sw9, back = [self.lab(x) for x in ("top", "mid", "sw8", "sw9", "back")]
        self.e(f"s_waitcnt vmcnt({2*nd}) lgkmcnt(0)\ns_barrier")
        self.stamp(1)
        for r in self.p1_reads(kind, SETA, 0):
            for x in r: self.e(x)
        self.e(f"s_mov_b32 s{S_IT}, 0\ns_branch {mid}")
        self.e(f"{sw8}:\ns_cmp_eq_u32 s{S_IT}, 9\ns_cbranch_scc1 {sw9}")
        for r in (SRD0, SRD1, SRD2): self.e(f"s_mov_b32 s{r}, s{P_W2}\ns_mov_b32 s{r+1}, s{P_W2+1}\ns_mov_b32 s{r+2}, {1536*1280}")
        for r in sorted(set(V_DMA)): self.e(f"v_mov_b32 v{r}, v{V_B2}")
        self.e(f"s_mul_i32 s{T0}, s{S_W}, 6144")
        for i in range(nd):
            self.e(f"s_add_u32 s{DD[i]}, s{T0}, {1024*i}\ns_add_u32 s{SO[i]}, s{S_B2H}, {self.b2_rowoff(i)*1280}")
        self.e(f"s_branch {back}\n{sw9}:")
        for i in range(nd):
            self.e(f"s_add_u32 s{SO[i]}, s{S_B2H}, {self.b2_rowoff(6+i)*1280}")
        self.e(f"s_branch {back}")
        self.e(".p2align 6")
        self.e(f"{top}:\ns_waitcnt vmcnt({nd}) lgkmcnt(0)\ns_barrier")
        self.phase(self.p1_mfmas(kind, SETB), self.p1_reads(kind, SETA, 0), self.p1_stats(kind, SETB),
                   [self.dma(i) for i in range(nd)])
        for x in self.next_wslot(): self.e(x)
        self.e(f"{mid}:\ns_waitcnt lgkmcnt(0)")
        self.phase(self.p1_mfmas(kind, SETA), self.p1_reads(kind, SETB, 1), self.p1_stats(kind, SETA), [], tail=self.ring_adv(kind))
        self.e(f"s_add_u32 s{S_IT}, s{S_IT}, 1\ns_cmp_ge_u32 s{S_IT}, 8\ns_cbranch_scc0 {top}")
        self.e(f"s_cmp_lt_u32 s{S_IT}, 10\ns_cbranch_scc1 {sw8}")
        fin = self.lab("fin")
        self.e(f"s_branch {fin}\n{back}:\ns_branch {top}\n{fin}:")
        self.e(f"s_waitcnt lgkmcnt(0)\ns_barrier")
        self.vmreset()
        self.e(f"s_mul_i32 s{T1}, s{S_W}, 6144\ns_add_u32 s{T2}, s{T1}, {2*SLOT}\ns_add_u32 s{T1}, s{T1}, {SLOT}\ns_lshl_b32 s{T3}, s{S_W}, 12")
        self.e(f"s_mov_b32 s{SRD1}, s{P_WO}\ns_mov_b32 s{SRD1+1}, s{P_WO+1}\ns_mov_b32 s{SRD1+2}, {640*1280}")
        dm = []
        if kind == "m":
            dm += [self.b2_dma(5, T1, 5120), self.b2_dma(11, T2, 5120)]
        self.r1ab = len(dm)
        dm += [self.b2_dma(12 + i, T3, 1024 * i) for i in range(4)]
        dm2 = [[d[0] + "\n" + d[1], d[2]] for d in dm]
        self.phase(self.p1_mfmas(kind, SETB), [], self.p1_stats(kind, SETB), dm2)
        self.vm = len(dm); self.r1c = self.vm
        self.nonce_op = self.vmop(f"buffer_load_dword v{V_LT}, off, s[{SRDDBG}:{SRDDBG+3}], 0 sc1")
        self.stamp(2)

    def trb_addr(self, sreg, dst):
        return [f"v_add_u32 v{dst+t}, s{sreg}, v{V_X0+t}" for t in range(4)]
    def p2_lane_init(self):
        a, b = V_T[0], V_T[1]
        self.e(f"""v_lshrrev_b32 v{a}, 2, v{V_LANE}
v_lshlrev_b32 v{V_X0}, 7, v{a}
v_bfe_u32 v{b}, v{V_LANE}, 3, 2
v_lshl_add_u32 v{V_X0}, v{b}, 5, v{V_X0}
v_and_b32 v{b}, 3, v{V_LANE}
v_lshl_add_u32 v{V_X0}, v{b}, 3, v{V_X0}
v_xor_b32 v{V_X1}, 32, v{V_X0}
v_xor_b32 v{V_ST0}, 64, v{V_X0}
v_xor_b32 v{V_ST1}, 0x60, v{V_X0}""")
    def b2_reads(self, half, areg, off, dstbase=BH, ks=None, both=False):
        ks = (half >> 1) if ks is None else ks
        o = []
        for t in range(4):
            r = dstbase + 16 * ks + 4 * t + 2 * (half & 1)
            o.append(f"ds_read_b64_tr_b16 v[{r}:{r+1}], v{areg+t} offset:{off}")
            if both: o.append(f"ds_read_b64_tr_b16 v[{r+2}:{r+3}], v{areg+t} offset:{off}")
        return o
    AR = 11
    def b2_step1(self):
        self.vmwait(self.r1ab)
        for x in self.trb_addr(T1, self.AR): self.e(x)
        for hh in range(3):
            for x in self.b2_reads(hh, self.AR, 2048 * hh): self.e(x)
        for x in self.trb_addr(T2, self.AR): self.e(x)
        for hh in range(3, 6):
            for x in self.b2_reads(hh, self.AR, 2048 * (hh - 3)): self.e(x)
        self.e("s_waitcnt lgkmcnt(0)")
        for n in range(16, 28):
            d = self.b2_dma(n, T1 if n < 22 else T2, 1024 * ((n - 16) % 6))
            self.e(d[0]); self.e(d[1]); self.r2a = self.vmop(d[2])
            if n == 23: self.r2h = self.vm
    def b2_step2(self):
        self.vmwait(self.r1c)
        for x in self.trb_addr(T3, self.AR): self.e(x)
        for hh in (6, 7):
            for x in self.b2_reads(hh, self.AR, 2048 * (hh - 6)): self.e(x)
        self.e("s_waitcnt lgkmcnt(0)")
        for n in range(28, 32):
            d = self.b2_dma(n, T3, 1024 * (n - 28))
            self.e(d[0]); self.e(d[1]); self.vmop(d[2])
    def b2_step3(self):
        for x in self.trb_addr(T1, self.AR): self.e(x)
        for hh in (8, 9, 10):
            for x in self.b2_reads(hh, self.AR, 2048 * (hh - 8)): self.e(x)
        for x in self.trb_addr(T2, self.AR): self.e(x)
        for x in self.b2_reads(11, self.AR, 0): self.e(x)
        self.e("s_waitcnt lgkmcnt(0)")
        for n in (32, 33):
            d = self.b2_dma(n, T1, 1024 * (n - 32))
            self.e(d[0]); self.e(d[1]); self.vmop(d[2])

    def ln_stats(self, s1, s2, na, nb):
        self.e(f"""v_mul_f32 v{s1}, {hex(f2u(1.0/640))}, v{s1}
v_mul_f32 v{s2}, {hex(f2u(1.0/640))}, v{s2}
v_fma_f32 v{s2}, -v{s1}, v{s1}, v{s2}
v_max_f32 v{s2}, 0, v{s2}
v_cvt_pk_bf16_f32 v{na}, v{s1}, v{s2}
v_lshlrev_b32 v{s1}, 16, v{na}
v_and_b32 v{s2}, 0xffff0000, v{na}
v_xor_b32 v{s1}, 0x80000000, v{s1}
v_add_f32 v{s2}, {hex(f2u(1e-5))}, v{s2}
v_cvt_pk_bf16_f32 v{na}, v{s2}, v{s2}
v_and_b32 v{s2}, 0xffff0000, v{na}
v_sqrt_f32 v{s2}, v{s2}
v_cvt_pk_bf16_f32 v{na}, v{s2}, v{s2}
v_and_b32 v{s2}, 0xffff0000, v{na}
v_rcp_f32 v{s2}, v{s2}""")
    def xgroup_sum(self, r, t):
        self.e(f"""v_mov_b32 v{t}, v{r}
v_permlane16_swap_b32 v{r}, v{t}
v_add_f32 v{r}, v{r}, v{t}
v_mov_b32 v{t}, v{r}
v_permlane32_swap_b32 v{r}, v{t}
v_add_f32 v{r}, v{r}, v{t}""")

    def publish(self, typ):
        self.e("s_waitcnt vmcnt(0)")
        ok, lp = self.lab("nok"), self.lab("nlp")
        self.e(f"""s_mov_b32 s{T0}, 0
{lp}:
v_readfirstlane_b32 s{S_NONCE}, v{V_LT}
s_cmp_lg_u32 s{S_NONCE}, 0
s_cbranch_scc1 {ok}
s_add_u32 s{T0}, s{T0}, 1
s_cmp_gt_u32 s{T0}, {SPIN}
s_cbranch_scc1 {ok}
s_sleep 2
buffer_load_dword v{V_LT}, off, s[{SRDDBG}:{SRDDBG+3}], 0 sc1
s_waitcnt vmcnt(0)
s_branch {lp}
{ok}:
s_barrier""")
        self.vmreset()
        sk = self.lab("nofl")
        self.e(f"""s_cmp_lg_u32 s{S_W}, 0
s_cbranch_scc1 {sk}
s_lshl_b32 s{T0}, s{S_MT}, 3
s_add_u32 s{T0}, s{T0}, s{S_NT}
s_lshl_b32 s{T0}, s{T0}, 7
s_add_u32 s{T0}, s{T0}, {FLAG_BASE + typ*16384}
s_mov_b64 exec, 1
buffer_store_dword v{V_LT}, off, s[{SRDWS}:{SRDWS+3}], s{T0} sc1
s_mov_b64 exec, -1
{sk}:""")
        self.stamp(4)

    def attn_pre(self, kind):
        q0, q1, q2, q3 = V_SQ; t0, t1, t2, t3 = V_T
        self.p2_lane_init()
        self.e(f"v_add_f32 v{q0}, v{q0}, v{q1}")
        self.xgroup_sum(q0, t0)
        ls = [self.lab("sel") for _ in range(4)]
        self.e(f"v_mov_b32 v{q1}, v{ACC+16+12}")
        for hh in (1, 2, 3):
            self.e(f"s_cmp_eq_u32 s{S_H}, {hh}\ns_cselect_b64 s[{S_M0}:{S_M0+1}], -1, 0\nv_cndmask_b32 v{q1}, v{q1}, v{ACC+16*(1+hh)+12}, s[{S_M0}:{S_M0+1}]")
        self.ln_stats(q1, q0, t0, t1)
        self.e(f"""s_lshl_b32 s{T0}, s{S_W}, 6
s_add_u32 s{T0}, s{T0}, {L_STAT + 64}
v_lshl_add_u32 v{t0}, v{V_I}, 2, s{T0}
s_mov_b32 exec_lo, 0
s_mov_b32 exec_hi, 0xffff0000
ds_write2_b32 v{t0}, v{q1}, v{q0} offset0:0 offset1:160
s_mov_b64 exec, -1""")
        if kind == "a0":
            self.e(f"v_add_f32 v{q2}, v{q2}, v{q3}")
            self.xgroup_sum(q2, t0)
            self.e(f"v_mov_b32 v{q3}, v{ACC+12}")
            self.ln_stats(q3, q2, t0, t1)
            self.e(f"""v_lshlrev_b32 v{t0}, 2, v{V_I}
v_add_u32 v{t0}, {L_STAT}, v{t0}
s_mov_b32 exec_lo, 0
s_mov_b32 exec_hi, 0xffff0000
ds_write2_b32 v{t0}, v{q3}, v{q2} offset0:0 offset1:160
s_mov_b64 exec, -1""")
            self.e(f"""s_lshl_b32 s{T0}, s{S_H}, 8
s_add_u32 s{T0}, s{T0}, {L_CS}
v_lshl_add_u32 v{t0}, v{V_G}, 4, s{T0}
v_lshl_add_u32 v{t1}, v{V_I}, 2, s{T0}
s_mov_b32 exec_lo, 0x00010001
s_mov_b32 exec_hi, 0x00010001
ds_write_b128 v{t0}, v[{ACC}:{ACC+3}]
ds_write_b128 v{t0}, v[{ACC+4}:{ACC+7}] offset:64
ds_write_b128 v{t0}, v[{ACC+12}:{ACC+15}] offset:192
s_mov_b64 exec, 0xffff
ds_write_b32 v{t1}, v{ACC+8} offset:128
s_mov_b64 exec, -1
s_mul_i32 s{T0}, s{S_H}, 3072
s_add_u32 s{T0}, s{T0}, {S1}
v_add_u32 v{t0}, s{T0}, v{V_L16}""")
            for f in (1, 2, 3):
                r = ACC + 64 + 4 * f
                self.e(f"ds_write_b128 v{t0}, v[{r}:{r+3}] offset:{1024*(f-1)}")
        self.e("s_waitcnt lgkmcnt(0)\ns_barrier")
        if kind == "a1":
            self.e(f"""s_mul_i32 s{T0}, s{S_H}, 3072
s_add_u32 s{T0}, s{T0}, {S1}
v_add_u32 v{t0}, s{T0}, v{V_L16}""")
            for f in (1, 2, 3):
                r = ACC + 4 * f
                self.e(f"ds_read_b128 v[{r}:{r+3}], v{t0} offset:{1024*(f-1)}")

    def attn_epi(self):
        QA = 96; VA = 106; CS = 146
        VOP = 224; MC = 234; MP = 238; MP0 = 242; MB = 246; ON = 248; VC = 252; t0, t1, t2 = 253, 254, 255
        self.e(f"""s_lshl_b32 s{T0}, s{S_TG}, 8
s_add_u32 s{T0}, s{T0}, {L_STAT}
v_lshl_add_u32 v{t0}, v{V_I}, 2, s{T0}
v_lshl_add_u32 v{t1}, v{V_G}, 4, s{T0}""")
        for j in range(5):
            self.e(f"ds_read2_b32 v[{QA+2*j}:{QA+2*j+1}], v{t0} offset0:{16*j} offset1:{160+16*j}")
            self.e(f"ds_read_b128 v[{VA+8*j}:{VA+8*j+3}], v{t1} offset:{64*j}")
            self.e(f"ds_read_b128 v[{VA+8*j+4}:{VA+8*j+7}], v{t1} offset:{640+64*j}")
        self.e(f"""s_lshl_b32 s{T0}, s{S_H}, 8
s_add_u32 s{T0}, s{T0}, {L_CS}
v_lshl_add_u32 v{t0}, v{V_G}, 4, s{T0}
v_lshl_add_u32 v{t1}, v{V_I}, 2, s{T0}
ds_read_b128 v[{CS}:{CS+3}], v{t0}
ds_read_b128 v[{CS+4}:{CS+7}], v{t0} offset:64
ds_read_b128 v[{CS+8}:{CS+11}], v{t0} offset:192
ds_read_b32 v{CS+12}, v{t1} offset:128""")
        self.e(f"v_lshlrev_b32 v{t2}, 2, v{V_G}\nv_sub_u32 v{t2}, v{V_I}, v{t2}\nv_mov_b32 v{VC}, {hex(NEGBIG)}\nv_mov_b32 v{MB}, 0\nv_mov_b32 v{MB+1}, 0")
        self.e(f"s_and_b32 s{T0}, s{S_MT}, 7\ns_or_b32 s{T0}, s{T0}, s{S_TG}\ns_cmp_eq_u32 s{T0}, 0\ns_cselect_b64 s[{S_M1}:{S_M1+1}], 0, -1")
        for r in range(4):
            self.e(f"""v_subrev_u32 v{t0}, {r}, v{t2}
v_cmp_gt_u32 s[{S_M0}:{S_M0+1}], 8, v{t0}
v_cndmask_b32 v{MC+r}, v{VC}, 0, s[{S_M0}:{S_M0+1}]
v_mov_b32 v{t1}, {hex(0xffff << (16*(r&1)))}
v_cndmask_b32 v{t1}, 0, v{t1}, s[{S_M0}:{S_M0+1}]
v_or_b32 v{MB+(r>>1)}, v{MB+(r>>1)}, v{t1}
v_cmp_gt_i32 s[{S_M0}:{S_M0+1}], -8, v{t0}
v_cndmask_b32 v{MP+r}, v{VC}, 0, s[{S_M0}:{S_M0+1}]
v_cndmask_b32 v{MP0+r}, v{VC}, v{MP+r}, s[{S_M1}:{S_M1+1}]
v_mov_b32 v{ON+r}, {hex(ONE2)}""")
        self.e(f"v_mov_b32 v{VC}, {hex(f2u(20**-0.5 * LOG2E))}")
        self.b2_step1()
        self.e(f"""s_mul_i32 s{T0}, s{S_W}, {5*REC}
s_add_u32 s{T0}, s{T0}, {L_REC}
v_lshlrev_b32 v{t0}, 6, v{V_G}
v_lshl_add_u32 v{t0}, v{V_I}, 3, v{t0}
v_add_u32 v{t0}, s{T0}, v{t0}
v_lshl_add_u32 v{t1}, v{V_I}, 3, s{T0}
s_add_u32 s{T0}, s{T0}, 256
v_mov_b32 v{t2}, s{T0}
s_mov_b32 s{S_M0}, 0xffff0000
s_mov_b32 s{S_M0+1}, 0
v_cndmask_b32 v{t1}, v{t2}, v{t1}, s[{S_M0}:{S_M0+1}]""")
        for j in range(5):
            A = ACC + 16 * j
            for f, cs in ((3, CS + 8), (1, CS + 4), (0, CS)):
                if j == 0 and f == 0: continue
                for r in range(4): self.e(f"v_fmac_f32 v{A+4*f+r}, v{QA+2*j}, v{cs+r}")
                for r in range(4): self.e(f"v_mul_f32 v{A+4*f+r}, v{QA+2*j+1}, v{A+4*f+r}")
            self.e(f"v_cvt_pk_bf16_f32 v{A+4}, v{A+4}, v{A+5}\nv_cvt_pk_bf16_f32 v{A+5}, v{A+6}, v{A+7}")
            self.e(f"v_cvt_pk_bf16_f32 v{A+6}, v{A+12}, v{A+13}\nv_cvt_pk_bf16_f32 v{A+7}, v{A+14}, v{A+15}")
            self.e(f"s_mov_b32 exec_lo, 0xffff\ns_mov_b32 exec_hi, 0xffff\nds_write_b64 v{t0}, v[{A+6}:{A+7}] offset:{REC*j}\ns_mov_b64 exec, -1")
            if j:
                self.e(f"v_cvt_pk_bf16_f32 v{A}, v{A}, v{A+1}\nv_cvt_pk_bf16_f32 v{A+1}, v{A+2}, v{A+3}")
                self.e(f"ds_read_b64 v[{A+2}:{A+3}], v{t1} offset:{REC*j}")
            for r in range(4): self.e(f"v_fmac_f32 v{A+8+r}, v{VA+8*j+r}, v{CS+12}")
            for r in range(4): self.e(f"v_mul_f32 v{A+8+r}, v{VA+8*j+4+r}, v{A+8+r}")
            self.e(f"v_cvt_pk_bf16_f32 v{VOP+2*j}, v{A+8}, v{A+9}\nv_cvt_pk_bf16_f32 v{VOP+2*j+1}, v{A+10}, v{A+11}")
        VL = 96; MX = 112; OL = 116; RR = 120; RL = 124
        self.e(f"""v_lshrrev_b32 v{t0}, 2, v{V_LANE}
v_lshlrev_b32 v{t0}, 3, v{t0}
v_add_u32 v{t0}, s{T0}, v{t0}
v_subrev_u32 v{t0}, 0x80, v{t0}""")
        for j in range(1, 5):
            m = 0x11111111 << (j - 1)
            self.e(f"""s_mov_b32 s{S_M0}, {hex(m)}
s_mov_b32 s{S_M0+1}, {hex(m)}
v_cndmask_b32 v{t1}, v{t2}, v{t0}, s[{S_M0}:{S_M0+1}]
ds_read_b64_tr_b16 v[{VL+4*(j-1)}:{VL+4*(j-1)+1}], v{t1} offset:{REC*(j-1)}
ds_read_b64_tr_b16 v[{VL+4*(j-1)+2}:{VL+4*(j-1)+3}], v{t1} offset:{REC*j}""")
        self.e("s_waitcnt lgkmcnt(8)")
        for j in range(1, 5):
            A = ACC + 16 * j; P = A - 16
            mp = MP0 if j == 1 else MP
            self.e(f"v_mfma_f32_16x16x32_bf16 v[{A+8}:{A+11}], v[{A+4}:{A+7}], v[{A}:{A+3}], v[{MC}:{MC+3}]")
            self.e(f"v_mfma_f32_16x16x32_bf16 v[{A+12}:{A+15}], v[{P+4}:{P+7}], v[{A}:{A+3}], v[{mp}:{mp+3}]")
        self.b2_step2()
        for j in range(1, 5):
            A = ACC + 16 * j
            for r in range(4): self.e(f"v_max_f32 v{A+8+r}, v{A+8+r}, v{A+12+r}")
            self.e(f"v_max3_f32 v{MX+j-1}, v{A+8}, v{A+9}, v{A+10}\nv_max_f32 v{MX+j-1}, v{MX+j-1}, v{A+11}")
        m0, m1, m2, m3 = MX, MX + 1, MX + 2, MX + 3
        self.e(f"""v_permlane16_swap_b32 v{m0}, v{m1}
v_permlane16_swap_b32 v{m2}, v{m3}
v_max_f32 v{m0}, v{m0}, v{m1}
v_max_f32 v{m2}, v{m2}, v{m3}
v_permlane32_swap_b32 v{m0}, v{m2}
v_max_f32 v{m0}, v{m0}, v{m2}
v_mul_f32 v{m0}, v{m0}, v{VC}
v_mov_b32 v{m2}, v{m0}
v_permlane32_swap_b32 v{m0}, v{m2}
v_mov_b32 v{m1}, v{m0}
v_mov_b32 v{m3}, v{m2}
v_permlane16_swap_b32 v{m0}, v{m1}
v_permlane16_swap_b32 v{m2}, v{m3}""")
        for j in range(1, 5):
            A = ACC + 16 * j
            for r in range(4): self.e(f"v_fma_f32 v{A+8+r}, v{A+8+r}, v{VC}, -v{MX+j-1}")
            for r in range(4): self.e(f"v_exp_f32 v{A+8+r}, v{A+8+r}")
            self.e(f"""v_cvt_pk_bf16_f32 v{A+12}, v{A+8}, v{A+9}
v_cvt_pk_bf16_f32 v{A+13}, v{A+10}, v{A+11}
v_and_b32 v{A+14}, v{A+12}, v{MB}
v_and_b32 v{A+15}, v{A+13}, v{MB+1}
v_xor_b32 v{A+12}, v{A+12}, v{A+14}
v_xor_b32 v{A+13}, v{A+13}, v{A+15}""")
            V = VOP + 2 * (j - 1)
            self.e(f"v_mfma_f32_16x16x32_bf16 v[{A+4}:{A+7}], v[{ON}:{ON+3}], v[{A+12}:{A+15}], 0")
            self.e(f"v_mfma_f32_16x16x32_bf16 v[{A}:{A+3}], v[{V}:{V+3}], v[{A+12}:{A+15}], 0")
            c = "0" if j == 1 else f"v[{OL}:{OL+3}]"
            self.e(f"v_mfma_f32_16x16x32_bf16 v[{OL}:{OL+3}], v[{VL+4*(j-1)}:{VL+4*(j-1)+3}], v[{A+12}:{A+15}], {c}")
        self.e(f"""v_and_b32 v{t0}, 31, v{V_LANE}
v_lshlrev_b32 v{t0}, 4, v{t0}
v_lshrrev_b32 v{t1}, 5, v{V_LANE}
s_mov_b32 s{T0}, {A2_RT}
v_mad_u32_u24 v{t0}, v{t1}, s{T0}, v{t0}
v_lshlrev_b32 v{t1}, 4, v{V_I}
v_mad_u32_u24 v{t1}, v{V_G}, s{T0}, v{t1}
s_lshl_b32 s{T0}, s{S_MT}, 1
s_add_u32 s{T0}, s{T0}, s{S_TG}
s_lshl_b32 s{T0}, s{T0}, 5
s_add_u32 s{T0}, s{T0}, s{S_NT}
s_mul_i32 s{T0}, s{T0}, {A2_BLK}
s_lshl_b32 s{T4}, s{S_H}, 9
s_add_u32 s{T4}, s{T4}, s{T0}
s_add_u32 s{T4}, s{T4}, 6144
s_lshl_b32 s{T5}, s{S_H}, 8
s_add_u32 s{T5}, s{T5}, s{T0}
s_add_u32 s{T5}, s{T5}, 8192""")
        for j in range(1, 5):
            A = ACC + 16 * j
            self.e(f"v_rcp_f32 v{RR+j-1}, v{A+4}")
        for pr in range(2):
            D = 128 + 4 * pr
            for u in range(2):
                j = 1 + 2 * pr + u; A = ACC + 16 * j
                for r in range(4): self.e(f"v_mul_f32 v{A+r}, v{A+r}, v{RR+j-1}")
                self.e(f"v_cvt_pk_bf16_f32 v{D+2*u}, v{A}, v{A+1}\nv_cvt_pk_bf16_f32 v{D+2*u+1}, v{A+2}, v{A+3}")
                self.e(f"v_mov_b32_dpp v{RL}, v{RR+j-1} quad_perm:[0,1,2,3] row_mask:{hex(1<<(j-1))} bank_mask:0xf")
            self.e(f"v_permlane32_swap_b32 v{D}, v{D+2}\nv_permlane32_swap_b32 v{D+1}, v{D+3}")
            self.vmop(f"buffer_store_dwordx4 v[{D}:{D+3}], v{t0}, s[{SRDWS}:{SRDWS+3}], s{T4} offen sc1")
            if pr == 0: self.e(f"s_add_u32 s{T4}, s{T4}, {2*A2_RT}")
        for r in range(4): self.e(f"v_mul_f32 v{OL+r}, v{OL+r}, v{RL}")
        self.e(f"v_cvt_pk_bf16_f32 v136, v{OL}, v{OL+1}\nv_cvt_pk_bf16_f32 v137, v{OL+2}, v{OL+3}\nv_mov_b32 v138, 0\nv_mov_b32 v139, 0")
        self.vmop(f"buffer_store_dwordx4 v[136:139], v{t1}, s[{SRDWS}:{SRDWS+3}], s{T5} offen sc1")
        self.stamp(3)

    def mlp_epi(self):
        q0, q1, q2, q3 = V_SQ; t0, t1, t2, t3 = V_T
        self.p2_lane_init()
        self.e(f"v_add_f32 v{q0}, v{q0}, v{q1}\nv_add_f32 v{q2}, v{q2}, v{q3}")
        self.xgroup_sum(q0, t0); self.xgroup_sum(q2, t1)
        self.ln_stats(q2, q0, t0, t1)
        self.e(f"""s_lshl_b32 s{T0}, s{S_W}, 6
s_add_u32 s{T0}, s{T0}, {L_STAT}
v_lshl_add_u32 v{t0}, v{V_I}, 2, s{T0}
s_mov_b64 exec, 0xffff
ds_write2_b32 v{t0}, v{q2}, v{q0} offset0:0 offset1:160
s_mov_b64 exec, -1""")
        CS = 96; QA = 108; A2 = 116; E = 120; D = 136; a0, a1 = 253, 254
        for r in range(12): self.e(f"v_mov_b32 v{CS+r}, v{V_CS+r}")
        self.e(f"""s_waitcnt lgkmcnt(0)
s_barrier
s_lshl_b32 s{T0}, s{S_TG}, 8
s_add_u32 s{T0}, s{T0}, {L_STAT}
v_lshl_add_u32 v{a0}, v{V_I}, 2, s{T0}""")
        for j in range(4):
            self.e(f"ds_read2_b32 v[{QA+2*j}:{QA+2*j+1}], v{a0} offset0:{16*j} offset1:{160+16*j}")
        self.b2_step1()
        self.e(f"""v_and_b32 v{a0}, 31, v{V_LANE}
v_lshlrev_b32 v{a0}, 4, v{a0}
v_lshrrev_b32 v{a1}, 5, v{V_LANE}
s_mov_b32 s{T0}, {A2_RT}
v_mad_u32_u24 v{a0}, v{a1}, s{T0}, v{a0}
s_lshl_b32 s{T0}, s{S_MT}, 1
s_add_u32 s{T0}, s{T0}, s{S_TG}
s_lshl_b32 s{T0}, s{T0}, 5
s_add_u32 s{T0}, s{T0}, s{S_NT}
s_mul_i32 s{T0}, s{T0}, {A2_BLK}
s_lshl_b32 s{T4}, s{S_H}, 10
s_add_u32 s{T4}, s{T4}, s{T0}
s_lshl_b32 s{T5}, s{S_H}, 9
s_add_u32 s{T5}, s{T5}, s{T0}
s_add_u32 s{T5}, s{T5}, 4096""")
        for j in range(4): self.e(f"v_mul_f32 v{A2+j}, {hex(f2u(-LOG2E))}, v{QA+2*j+1}")
        for j in range(4):
            A = ACC + 16 * (j + 1)
            Dn = D + 8 * (j & 1); Ds = D + 16
            for r in range(12): self.e(f"v_fmac_f32 v{A+r}, v{QA+2*j}, v{CS+r}")
            for r in range(12): self.e(f"v_mul_f32 v{E+r}, v{A2+j}, v{A+r}")
            for r in range(12): self.e(f"v_exp_f32 v{E+r}, v{E+r}")
            for r in range(12): self.e(f"v_mul_f32 v{A+r}, v{QA+2*j+1}, v{A+r}")
            for r in range(12): self.e(f"v_add_f32 v{E+r}, 1.0, v{E+r}")
            for r in range(12): self.e(f"v_rcp_f32 v{E+r}, v{E+r}")
            for r in range(12): self.e(f"v_mul_f32 v{A+r}, v{A+r}, v{E+r}")
            for r in range(4): self.e(f"v_cvt_pk_bf16_f32 v{Dn+r}, v{A+2*r}, v{A+2*r+1}")
            self.vmop(f"buffer_store_dwordx4 v[{Dn}:{Dn+3}], v{V_L16}, s[{SRDWS}:{SRDWS+3}], s{T4} offen sc1")
            self.e(f"s_add_u32 s{T4}, s{T4}, {A2_RT}")
            Dd = Ds + 4 * (j >> 1)
            for r in range(2): self.e(f"v_cvt_pk_bf16_f32 v{Dd+2*(j&1)+r}, v{A+8+2*r}, v{A+9+2*r}")
            if j & 1:
                self.e(f"v_permlane32_swap_b32 v{Dd}, v{Dd+2}\nv_permlane32_swap_b32 v{Dd+1}, v{Dd+3}")
                self.vmop(f"buffer_store_dwordx4 v[{Dd}:{Dd+3}], v{a0}, s[{SRDWS}:{SRDWS+3}], s{T5} offen sc1")
                self.e(f"s_add_u32 s{T5}, s{T5}, {2*A2_RT}")
            if j == 1: self.b2_step2()
        self.stamp(3)

    def poll(self, vaddr, vdst, typ, first_op=None):
        lp, ok = self.lab("pl"), self.lab("pok")
        ld = f"buffer_load_dword v{vdst}, v{vaddr}, s[{SRDWS}:{SRDWS+3}], s{T4} offen sc1"
        if first_op is None:
            self.e(f"s_mov_b32 s{T4}, {FLAG_BASE + typ*16384}")
            first_op = self.vmop(ld)
        self.vmwait(first_op)
        self.e(f"""s_mov_b32 s{T0}, 0
{lp}:
v_cmp_ne_u32 vcc, s{S_NONCE}, v{vdst}
s_cbranch_vccz {ok}
s_add_u32 s{T0}, s{T0}, 1
s_cmp_gt_u32 s{T0}, {SPIN}
s_cbranch_scc1 {ok}
s_sleep 1
{ld}
s_waitcnt vmcnt(0)
s_branch {lp}
{ok}:""")
    def p2(self, n):
        STG = 112; NS = 12
        V_FA, V_FD, V_O = 3, 4, 15
        V_FA, V_FD = 5, 6
        XR = 240; RW = 246; RRD = 250; V_OUT = 251; TMP = 208
        self.b2_step3()
        self.e(f"""s_lshl_b32 s{T0}, s{S_XCD}, 4
s_add_u32 s{T0}, s{T0}, s{S_W}
s_lshl_b32 s{T0}, s{T0}, 7
v_and_b32 v{V_LT}, 1, v{V_LANE}
v_lshlrev_b32 v{V_LT}, 10, v{V_LT}
v_add_u32 v{V_LT}, s{T0}, v{V_LT}
s_lshl_b32 s{T5}, s{S_RT0}, 3
s_add_u32 s{T5}, s{T5}, s{S_W}
s_mul_i32 s{T5}, s{T5}, {A2_BLK}""")
        V_FA = V_LT; V_FD = 4
        self.poll(V_FA, V_FD, 0)
        self.stamp(5)
        seq = [(j, ks) for j in range(n) for ks in range(6)] + [(j, ks) for j in range(n) for ks in range(6, 9)]
        ops = {}
        def issue(q):
            j, ks = seq[q]
            off = j * A2_RT + (ks >> 2) * 4096
            r = STG + 4 * (q % NS)
            if ks & 3 == 0 or ks == 6:
                self.e(f"s_add_u32 s{S_DELTA}, s{T5}, {off}")
            ops[q] = self.vmop(f"buffer_load_dwordx4 v[{r}:{r+3}], v{V_L16}, s[{SRDWS}:{SRDWS+3}], s{S_DELTA} offen offset:{1024*(ks&3)} sc1")
        for q in range(NS): issue(q)
        pollop = None
        pend_reduce = None
        def reduce_issue(m):
            sp = (2 * m) % 4
            for u in range(8):
                self.e(f"ds_read_b128 v[{TMP+4*u}:{TMP+4*u+3}], v{RRD} offset:{u*4096}")
        def reduce_finish(m):
            self.e("s_waitcnt lgkmcnt(0)")
            self.vmwait(xops[m])
            for (a, b) in ((0, 1), (2, 3), (4, 5), (6, 7), (0, 2), (4, 6), (0, 4)):
                for r in range(4): self.e(f"v_add_f32 v{TMP+4*a+r}, v{TMP+4*a+r}, v{TMP+4*b+r}")
            x = XR + 2 * m
            self.e(f"""v_lshlrev_b32 v{TMP+4}, 16, v{x}
v_and_b32 v{TMP+5}, 0xffff0000, v{x}
v_lshlrev_b32 v{TMP+6}, 16, v{x+1}
v_and_b32 v{TMP+7}, 0xffff0000, v{x+1}""")
            for r in range(4): self.e(f"v_add_f32 v{TMP+r}, v{TMP+r}, v{TMP+4+r}")
            self.e(f"v_cvt_pk_bf16_f32 v{x}, v{TMP}, v{TMP+1}\nv_cvt_pk_bf16_f32 v{x+1}, v{TMP+2}, v{TMP+3}")
            self.e(f"s_add_u32 s{T0}, s{T3}, {m*32*2560}")
            self.vmop(f"buffer_store_dwordx2 v[{x}:{x+1}], v{V_OUT}, s[{SRDOUT}:{SRDOUT+3}], s{T0} offen")
        xops = {}
        for q in range(len(seq)):
            j, ks = seq[q]
            if q == 6 * n:
                self.e("s_waitcnt lgkmcnt(0)\ns_barrier")
                self.stamp(6)
                self.e(f"""v_xor_b32 v{RW}, v{V_I}, v{V_G}
v_lshlrev_b32 v{RW}, 4, v{RW}
v_lshl_add_u32 v{RW}, v{V_G}, 8, v{RW}
s_lshl_b32 s{T0}, s{S_W}, 12
v_add_u32 v{RW}, s{T0}, v{RW}
v_xor_b32 v{RW+1}, 0x440, v{RW}
v_xor_b32 v{RW+2}, 0x880, v{RW}
v_xor_b32 v{RW+3}, 0xcc0, v{RW}
s_and_b32 s{T0}, s{S_W}, 3
s_lshl_b32 s{T0}, s{T0}, 2
v_add_u32 v{V_OUT}, s{T0}, v{V_G}
v_xor_b32 v{RRD}, v{V_OUT}, v{V_I}
v_lshlrev_b32 v{RRD}, 4, v{RRD}
v_lshl_add_u32 v{RRD}, v{V_I}, 8, v{RRD}
s_lshr_b32 s{T0}, s{S_W}, 2
s_lshl_b32 s{T4}, s{T0}, 15
v_add_u32 v{RRD}, s{T4}, v{RRD}
v_mul_u32_u24 v{V_OUT}, 2560, v{V_OUT}
v_lshl_add_u32 v{V_OUT}, v{V_I}, 3, v{V_OUT}
s_add_u32 s{T0}, s{T0}, s{S_RT0}
s_and_b32 s{T3}, s{T0}, 63
s_mul_i32 s{T3}, s{T3}, {16*2560}
s_lshr_b32 s{T0}, s{S_RT0}, 6
s_mul_i32 s{T0}, s{T0}, 1280
s_add_u32 s{T3}, s{T3}, s{T0}
s_lshl_b32 s{T0}, s{S_CT}, 7
s_add_u32 s{T3}, s{T3}, s{T0}""")
                for m in range(n // 2):
                    self.e(f"s_add_u32 s{T0}, s{T3}, {m*32*2560}")
                    xops[m] = self.vmop(f"buffer_load_dwordx2 v[{XR+2*m}:{XR+2*m+1}], v{V_OUT}, s[{SRDX}:{SRDX+3}], s{T0} offen")
            self.vmwait(ops[q])
            r = STG + 4 * (q % NS)
            for t in range(4):
                d = ACC + 16 * j + 4 * t; b = BH + 16 * (ks % 6) + 4 * t
                c = "0" if ks == 0 else f"v[{d}:{d+3}]"
                self.e(f"v_mfma_f32_16x16x32_bf16 v[{d}:{d+3}], v[{b}:{b+3}], v[{r}:{r+3}], {c}")
            if q == 6 * n - 4:
                for x in self.trb_addr(T2, self.AR): self.e(x)
                for hh in (12, 13):
                    for x in self.b2_reads(hh, self.AR, 2048 * (hh - 11), ks=0): self.e(x)
                for x in self.trb_addr(T3, self.AR): self.e(x)
                for hh in (14, 15):
                    for x in self.b2_reads(hh, self.AR, 2048 * (hh - 14), ks=1): self.e(x)
                for x in self.trb_addr(T1, self.AR): self.e(x)
                for x in self.b2_reads(16, self.AR, 0, ks=2, both=True): self.e(x)
            if q + NS == 6 * n - self.lead:
                self.e(f"s_mov_b32 s{T4}, {FLAG_BASE + 16384}")
                pollop = self.vmop(f"buffer_load_dword v{V_FD}, v{V_FA}, s[{SRDWS}:{SRDWS+3}], s{T4} offen sc1")
            if q + NS == 6 * n:
                self.poll(V_FA, V_FD, 1, first_op=pollop)
            if q + NS < len(seq): issue(q + NS)
            if q >= 6 * n and ks == 8 and (j & 1):
                m = j >> 1
                if pend_reduce is not None: reduce_finish(pend_reduce)
                for jj in (j - 1, j):
                    for t in range(4):
                        d = ACC + 16 * jj + 4 * t
                        self.e(f"ds_write_b128 v{RW+t}, v[{d}:{d+3}] offset:{(jj & 1) * 32768}")
                self.e("s_waitcnt lgkmcnt(0)\ns_barrier")
                reduce_issue(m)
                for t in range(4): self.e(f"v_xor_b32 v{RW+t}, 0x10000, v{RW+t}")
                self.e(f"v_xor_b32 v{RRD}, 0x10000, v{RRD}")
                pend_reduce = m
        reduce_finish(pend_reduce)
        self.stamp(7)
        if self.diag:
            self.e(f"""s_lshl_b32 s{T0}, s2, 3
s_add_u32 s{T0}, s{T0}, s{S_W}
s_lshl_b32 s{T0}, s{T0}, 6
s_add_u32 s{T0}, s{T0}, {STAMP_BASE}
v_lshlrev_b32 v{V_L16}, 2, v{V_LANE}
s_mov_b64 exec, 0xffff
buffer_store_dword v0, v{V_L16}, s[{SRDWS}:{SRDWS+3}], s{T0} offen""")
        self.e("s_endpgm")

    def kperm(self, dst, rho, t):
        self.e(f"""v_and_b32 v{dst}, 35, v{rho}
v_bfe_u32 v{t}, v{rho}, 2, 2
v_lshl_add_u32 v{dst}, v{t}, 3, v{dst}
v_bfe_u32 v{t}, v{rho}, 4, 1
v_lshl_add_u32 v{dst}, v{t}, 2, v{dst}""")
    def common_srd(self):
        self.srd(SRDWS, P_WS, WS_BYTES); self.srd(SRDDBG, P_DBG, 256); self.srd(SRDOUT, P_OUT, 2048 * 1280); self.srd(SRDX, P_X, 2048 * 1280)
    def first_dmas(self, nd):
        self.e(f"s_mov_b32 s{S_WSLOT}, 0")
        for st in range(3):
            for i in range(nd):
                for x in self.dma(i): self.e(x)
            self.e(f"s_mov_b32 s{S_WSLOT}, {((st+1)%3)*SLOT}")
    def late_init(self, kind):
        a, b, c = V_T[0], V_T[1], V_T[2]
        self.common_srd()
        sk = self.lab("non")
        self.e(f"""s_or_b32 s{T0}, s2, s{S_W}
s_cmp_lg_u32 s{T0}, 0
s_cbranch_scc1 {sk}
s_memrealtime s[{S_M0}:{S_M0+1}]
s_waitcnt lgkmcnt(0)
s_or_b32 s{T0}, s{S_M0}, 1
v_mov_b32 v{a}, s{T0}
s_mov_b64 exec, 1
buffer_store_dword v{a}, off, s[{SRDDBG}:{SRDDBG+3}], 0 sc1
s_mov_b64 exec, -1
{sk}:""")
        self.e(f"""v_lshrrev_b32 v{V_G}, 4, v{V_LANE}
v_and_b32 v{V_I}, 15, v{V_LANE}
v_lshlrev_b32 v{V_L16}, 4, v{V_LANE}
v_lshrrev_b32 v{a}, 1, v{V_I}
v_xor_b32 v{a}, v{a}, v{V_G}
v_lshlrev_b32 v{a}, 4, v{a}
v_lshl_add_u32 v{a}, v{V_I}, 7, v{a}
s_lshl_b32 s{T0}, s{S_TG}, 13
v_add_u32 v{V_X0}, s{T0}, v{a}
v_xor_b32 v{V_X1}, 64, v{V_X0}
s_add_u32 s{T0}, s{S_W}, 1
s_lshl_b32 s{T0}, s{T0}, 11
v_add_u32 v{V_ST0}, s{T0}, v{a}
v_xor_b32 v{V_ST1}, 64, v{V_ST0}
v_lshrrev_b32 v{a}, 2, v{V_LANE}
v_and_b32 v{b}, 3, v{V_LANE}""")
        if kind == "a":
            self.e(f"""v_mul_u32_u24 v{a}, 480, v{a}
s_mul_i32 s{T0}, s{S_H}, 40
s_add_u32 s{T0}, s{T0}, {XREG}
v_add_u32 v{a}, s{T0}, v{a}
v_lshl_add_u32 v{V_W0}, v{b}, 3, v{a}
v_mul_u32_u24 v{c}, 160, v{b}
v_add3_u32 v{V_W1}, v{a}, v{c}, 32
v_cmp_ne_u32 s[{S_M0}:{S_M0+1}], 3, v{b}
v_lshlrev_b32 v{c}, 3, v{V_LANE}
v_cndmask_b32 v{V_W1}, v{c}, v{V_W1}, s[{S_M0}:{S_M0+1}]
v_cndmask_b32 v{V_LSEL}, 0, 1, s[{S_M0}:{S_M0+1}]""")
            self.e(f"v_mov_b32 v{STF[0]}, {hex(ONE2)}\nv_mov_b32 v{STF[0]+1}, {hex(ONE2)}\nv_mov_b32 v{STF[0]+2}, {hex(ONE2)}\nv_mov_b32 v{STF[0]+3}, {hex(ONE2)}")
            sk = self.lab("ones")
            self.e(f"""s_cmp_gt_u32 s{S_W}, 2
s_cbranch_scc1 {sk}
s_mul_i32 s{T0}, s{S_W}, {SLOT}
v_add_u32 v{a}, s{T0}, v{V_L16}
ds_write_b128 v{a}, v[{STF[0]}:{STF[0]+3}]
{sk}:
s_mul_i32 s{T0}, s{S_W}, {5*REC}
s_add_u32 s{T0}, s{T0}, {L_REC + 256}
v_mul_u32_u24 v{a}, {REC}, v{V_LANE}
v_add_u32 v{a}, s{T0}, v{a}
v_mov_b32 v{STF[1]}, 0
v_mov_b32 v{STF[1]+1}, 0
s_mov_b64 exec, 31
ds_write_b64 v{a}, v[{STF[1]}:{STF[1]+1}]
s_mov_b64 exec, -1""")
            nacc = range(ACC, ACC + 80)
        else:
            self.e(f"""v_mul_u32_u24 v{a}, 384, v{a}
v_lshl_add_u32 v{a}, v{b}, 3, v{a}
v_add_u32 v{a}, {XREG}, v{a}
v_bfe_u32 v{c}, v{V_LANE}, 3, 2
s_mul_i32 s{T0}, s{S_H}, 3""")
            for t in range(3):
                self.e(f"""s_add_u32 s{T1}, s{T0}, {t}
s_lshr_b32 s{T2}, s{T1}, 2
s_lshl_b32 s{T2}, s{T2}, 7
s_and_b32 s{T1}, s{T1}, 3
v_xor_b32 v{b}, s{T1}, v{c}
v_lshl_add_u32 v{b}, v{b}, 5, v{a}
v_add_u32 v{V_W0+t}, s{T2}, v{b}""")
            for r in range(4): self.e(f"v_mov_b32 v{V_ONES+r}, {hex(ONE2)}")
            nacc = [ACC + 16 * (j + 1) + r for j in range(4) for r in range(12)] + list(range(V_CS, V_CS + 12))
        for r in list(nacc) + V_SQ: self.e(f"v_mov_b32 v{r}, 0")
        self.e(f"""v_lshrrev_b32 v{a}, 3, v{V_LANE}
v_bfe_u32 v{b}, v{V_LANE}, 4, 2
v_lshlrev_b32 v{b}, 1, v{b}
v_and_b32 v{c}, 7, v{V_LANE}
v_xor_b32 v{b}, v{b}, v{c}
v_lshlrev_b32 v{b}, 4, v{b}
v_mul_u32_u24 v{V_B2}, 1280, v{a}
v_add_u32 v{V_B2}, v{V_B2}, v{b}
v_lshrrev_b32 v{c}, 5, v{V_LANE}
v_mul_u32_u24 v{c}, {16*1280}, v{c}
v_add_u32 v{V_B2L}, v{V_B2}, v{c}
s_lshl_b32 s{T0}, s{S_CT}, 7
s_mul_i32 s{S_B2H}, s{S_W}, {192*1280}
s_add_u32 s{S_B2H}, s{S_B2H}, s{T0}
s_mul_i32 s{S_B2O}, s{S_W}, {80*1280}
s_add_u32 s{S_B2O}, s{S_B2O}, s{T0}
s_mov_b32 s{S_RSLOT}, 0
s_mov_b32 s{T4}, {(-2*SLOT) & 0xffffffff}
s_mov_b32 s{T5}, {SLOT}""")

    def gen(self):
        n = NAME + "_kernel"
        a, b, c, d = V_T
        self.e(f"""s_cmp_ge_u32 s2, 256
s_cbranch_scc1 L_exit
s_load_dwordx16 s[32:47], s[0:1], 0
s_load_dwordx2 s[48:49], s[0:1], 64
v_lshrrev_b32 v{a}, 6, v0
v_and_b32 v{V_LANE}, 63, v0
v_readfirstlane_b32 s{S_W}, v{a}
s_and_b32 s{S_XCD}, s2, 7
s_lshr_b32 s{T0}, s2, 3
s_and_b32 s{S_MT}, s{T0}, 7
s_and_b32 s{T1}, s2, 4
s_lshl_b32 s{T1}, s{T1}, 1
s_or_b32 s{S_MT}, s{S_MT}, s{T1}
s_and_b32 s{S_NT}, s2, 3
s_lshl_b32 s{S_NT}, s{S_NT}, 1
s_bfe_u32 s{T1}, s2, 0x10006
s_or_b32 s{S_NT}, s{S_NT}, s{T1}
s_lshr_b32 s{S_TG}, s{S_W}, 2
s_and_b32 s{S_H}, s{S_W}, 3""")
        if self.diag: self.e("v_mov_b32 v0, 0")
        self.e(f"""v_lshrrev_b32 v{a}, 3, v{V_LANE}
s_and_b32 s{T1}, s{S_W}, 1
s_lshl_b32 s{T1}, s{T1}, 2
v_lshrrev_b32 v{b}, 4, v{V_LANE}
v_or_b32 v{b}, s{T1}, v{b}
v_and_b32 v{c}, 7, v{V_LANE}
v_xor_b32 v{b}, v{b}, v{c}
s_lshl_b32 s{T1}, s{S_W}, 3
v_add_u32 v{a}, s{T1}, v{a}
v_mul_u32_u24 v{a}, 2560, v{a}
v_lshl_add_u32 v{V_DMA[0]}, v{b}, 4, v{a}
s_and_b32 s{T1}, s{S_MT}, 7
s_mul_i32 s{SO[0]}, s{T1}, {128*2560}
s_lshr_b32 s{T2}, s{S_MT}, 3
s_mul_i32 s{T2}, s{T2}, 1280
s_add_u32 s{SO[0]}, s{SO[0]}, s{T2}
s_add_u32 s{SO[1]}, s{SO[0]}, {64*2560}
s_mov_b32 s{STEP[0]}, 128
s_lshl_b32 s{T2}, s{S_W}, 10
s_add_u32 s{DD[0]}, s{T2}, 2048
s_add_u32 s{DD[1]}, s{T2}, {2048+8192}
s_add_u32 s{DD[2]}, s{T2}, {XREG}
s_add_u32 s{DD[3]}, s{T2}, {XREG+8192}
s_add_u32 s{DD[4]}, s{T2}, {XREG+16384}
s_add_u32 s{DD[5]}, s{T2}, {XREG+24576}
s_lshl_b32 s{T3}, s{S_W}, 6
s_cmp_ge_u32 s2, 128
s_cbranch_scc1 L_mlp""")
        for i in range(2, 6):
            v = V_DMA[i]
            self.e(f"""v_add_u32 v{a}, s{T3}, v{V_LANE}
v_add_u32 v{a}, {512*(i-2)}, v{a}
v_mul_u32_u24 v{b}, 2185, v{a}
v_lshrrev_b32 v{b}, 16, v{b}
v_mul_u32_u24 v{c}, 30, v{b}
v_sub_u32 v{a}, v{a}, v{c}""")
            self.kperm(c, b, d)
            self.e(f"""v_mul_u32_u24 v{v}, 3840, v{c}
v_mul_u32_u24 v{b}, 26, v{a}
v_lshrrev_b32 v{b}, 8, v{b}
v_mul_u32_u24 v{b}, {1280-160}, v{b}
v_lshl_add_u32 v{a}, v{a}, 4, v{b}
v_add_u32 v{v}, v{v}, v{a}""")
        self.e(f"""s_mul_i32 s{SO[2]}, s{S_NT}, 160
s_mov_b32 s{SO[3]}, s{SO[2]}
s_mov_b32 s{SO[4]}, s{SO[2]}
s_mov_b32 s{SO[5]}, s{SO[2]}
s_mov_b32 s{STEP[2]}, {64*3840}
s_mov_b32 s{STEP[5]}, {64*3840}
s_waitcnt lgkmcnt(0)""")
        self.srd(SRD0, P_X, 2048 * 1280); self.srd(SRD1, P_WQKV, 640 * 3840); self.srd(SRD2, P_WQKV, 640 * 3840)
        self.e(f"""s_cmp_lt_u32 s{S_W}, 6
s_cbranch_scc1 L_a_go
s_mov_b32 s{SRD2}, s{P_X}
s_mov_b32 s{SRD2+1}, s{P_X+1}
s_mov_b32 s{SRD2+2}, {2048*1280}
v_mov_b32 v{V_DMA[5]}, v{V_DMA[0]}
s_mov_b32 s{STEP[5]}, 128
s_mov_b32 s{DD[5]}, 1024
s_sub_u32 s{SO[5]}, s{SO[0]}, {64*2560}
s_cmp_eq_u32 s{T1}, 0
s_cselect_b32 s{SO[5]}, s{SO[0]}, s{SO[5]}
s_cmp_eq_u32 s{S_W}, 7
s_cbranch_scc1 L_a_go
s_mov_b32 s{SO[5]}, s{SO[0]}
s_mov_b32 s{DD[5]}, s{DD[0]}
L_a_go:""")
        self.stamp(0)
        self.first_dmas(6)
        self.e(f"""s_lshr_b32 s{T0}, s2, 3
s_sub_u32 s{T1}, s{T0}, 8
s_lshr_b32 s{T2}, s{T1}, 2
s_add_u32 s{T2}, s{T2}, 8
s_and_b32 s{T1}, s{T1}, 3
s_lshl_b32 s{T1}, s{T1}, 2
s_cmp_lt_u32 s{T0}, 8
s_cselect_b32 s{S_CT}, s{T0}, s{T2}
s_cselect_b32 s{S_RT0}, 0, s{T1}
s_lshl_b32 s{T0}, s{S_XCD}, 4
s_add_u32 s{S_RT0}, s{S_RT0}, s{T0}""")
        self.late_init("a")
        self.e(f"s_cmp_eq_u32 s{S_TG}, 1\ns_cbranch_scc1 L_a1")
        self.main_loop("a0"); self.attn_pre("a0")
        self.e("s_branch L_aepi\nL_a1:")
        self.main_loop("a1"); self.attn_pre("a1")
        self.e("L_aepi:")
        self.attn_epi()
        self.publish(1)
        self.p2(self.n_attn)
        self.e("L_mlp:")
        for i in range(2, 5):
            v = V_DMA[i]
            self.e(f"""v_add_u32 v{a}, s{T3}, v{V_LANE}
v_add_u32 v{a}, {512*(i-2)}, v{a}
v_mul_u32_u24 v{b}, 2731, v{a}
v_lshrrev_b32 v{b}, 16, v{b}
v_mul_u32_u24 v{c}, 24, v{b}
v_sub_u32 v{a}, v{a}, v{c}""")
            self.kperm(c, b, d)
            self.e(f"""v_mul_u32_u24 v{v}, 3072, v{c}
v_and_b32 v{b}, 6, v{b}
v_xor_b32 v{a}, v{a}, v{b}
v_lshl_add_u32 v{v}, v{a}, 4, v{v}""")
        self.e(f"""v_mov_b32 v{V_DMA[5]}, 0
s_mul_i32 s{SO[2]}, s{S_NT}, 384
s_mov_b32 s{SO[3]}, s{SO[2]}
s_mov_b32 s{SO[4]}, s{SO[2]}
s_mov_b32 s{STEP[2]}, {64*3072}
s_waitcnt lgkmcnt(0)""")
        self.srd(SRD0, P_X, 2048 * 1280); self.srd(SRD1, P_W1, 640 * 3072); self.srd(SRD2, P_W1, 640 * 3072)
        self.stamp(0)
        self.first_dmas(5)
        self.e(f"""s_lshr_b32 s{T0}, s2, 3
s_and_b32 s{S_CT}, s{T0}, 7
s_bfe_u32 s{T1}, s{T0}, 0x10003
s_mul_i32 s{T1}, s{T1}, 6
s_add_u32 s{T1}, s{T1}, 4
s_lshl_b32 s{T0}, s{S_XCD}, 4
s_add_u32 s{S_RT0}, s{T1}, s{T0}""")
        self.late_init("m")
        self.main_loop("m")
        self.mlp_epi()
        self.publish(0)
        self.p2(self.n_mlp)
        self.e("L_exit:\ns_endpgm")
        lines, nn = hz.fix(self.L)
        hdr = open("cdna_kernels/" + NAME + ".s.ref").read().split("; Override")[0]
        s = hdr + f"; @launch grid=(256,1,1) block=(512,1,1) lds=163840\n" + TARGET + head(n) + "\n".join(lines) + "\n" + kd(n, 256, 96, 256)
        return s, nn

if __name__ == "__main__":
    diag = "--diag" in sys.argv
    out = [a for a in sys.argv[1:] if not a.startswith("--")]
    s, nn = G(diag=diag).gen()
    open(out[0] if out else "cdna_kernels/" + NAME + ".s", "w").write(s)
    print("nops inserted:", nn, "lines:", s.count("\n"))
```

```python
import sys, math, struct
from asmlib import NAME, kd, head, TARGET
import hz

def f2u(x): return struct.unpack("<I", struct.pack("<f", x))[0]

SLOT = 49152; XREG = 18432
S1 = 32768; S2 = 147456
L_STAT = S2
L_CS = S2 + 1280
L_DUMMY = S2 + 2304
L_REC = S2 + 3328
REC = 272
A2_BLK = 9216; A2_RT = 8 * A2_BLK
FLAG_BASE = 128 * A2_RT
STAMP_BASE = FLAG_BASE + 65536
WS_BYTES = STAMP_BASE + 256 * 8 * 128
ONE2 = 0x3f803f80
NEGBIG = f2u(-1.0e30)
LOG2E = math.log2(math.e)

SRD0, SRD1, SRD2, SRDWS, SRDDBG, SRDOUT, SRDX = 4, 8, 12, 16, 20, 24, 28
P_X, P_WQKV, P_WO, P_W1, P_W2, P_OUT, P_DBG, P_WS = 32, 34, 36, 40, 42, 44, 46, 48
SO = [50, 51, 52, 53, 54, 55]; STEP = [56, 56, 57, 57, 57, 58]; DD = [60, 61, 62, 63, 64, 65]
S_WSLOT, S_RSLOT, S_IT, S_W, S_MT, S_NT, S_TG, S_H, S_CT, S_RT0, S_NONCE = 66, 67, 68, 69, 70, 71, 72, 73, 74, 75, 76
S_B2H, S_B2O, S_DELTA, S_XCD = 77, 78, 79, 80
T0, T1, T2, T3, T4, T5 = 81, 82, 83, 84, 85, 86
S_M0, S_M1 = 88, 90
S_TS = 92

V_LANE, V_L16, V_B2, V_B2L, V_G, V_I = 1, 2, 3, 4, 5, 6
V_X0, V_X1, V_ST0, V_ST1, V_W0, V_W1, V_W2, V_LSEL, V_LT = 7, 8, 9, 10, 11, 12, 13, 14, 15
ACC = 16
SETA, SETB = 96, 132
STF = [168, 172]
V_DMA = [176, 176, 177, 178, 179, 180]
V_SQ = [182, 183, 184, 185]
V_T = [186, 187, 188, 189]
V_ONES = 192
V_CS = 196
BH = 160

SPIN = 0x8000
class G:
    def __init__(self, diag=False, lead=6, n_attn=4, n_mlp=6, **opt):
        self.o = opt
        self.L = []; self.diag = diag; self.lead = lead; self.n_attn = n_attn; self.n_mlp = n_mlp
        self.vm = 0; self.uid = 0
    def e(self, s):
        for ln in s.strip("\n").split("\n"):
            ln = ln.strip()
            if not ln: continue
            self.L.append(ln if ln.endswith(":") else "  " + ln)
    def lab(self, p):
        self.uid += 1; return f"L_{p}_{self.uid}"
    def srd(self, r, ptr, nbytes):
        self.e(f"s_mov_b32 s{r}, s{ptr}\ns_mov_b32 s{r+1}, s{ptr+1}\ns_mov_b32 s{r+2}, {nbytes}\ns_mov_b32 s{r+3}, 0x20000")
    def stamp(self, idx):
        if not self.diag: return
        self.e(f"""s_memrealtime s[{S_TS}:{S_TS+1}]
s_memtime s[{S_TS+2}:{S_TS+3}]
s_waitcnt lgkmcnt(0)
v_writelane_b32 v{V_LANE-1}, s{S_TS}, {idx}
v_writelane_b32 v{V_LANE-1}, s{S_TS+2}, {idx+16}""")
    def vmreset(self): self.vm = 0
    def vmop(self, s):
        self.e(s); self.vm += 1; return self.vm
    def vmwait(self, op, extra=""):
        n = self.vm - op
        self.e(f"s_waitcnt vmcnt({min(n, 63)}) {extra}".strip())

    def dma(self, i):
        srd = [SRD0, SRD0, SRD1, SRD1, SRD1, SRD2][i]
        return [f"s_add_u32 m0, s{S_WSLOT}, s{DD[i]}",
                f"buffer_load_dwordx4 v{V_DMA[i]}, s[{srd}:{srd+3}], s{SO[i]} offen lds",
                f"s_add_u32 s{SO[i]}, s{SO[i]}, s{STEP[i]}"]
    def next_wslot(self):
        return [f"s_add_u32 s{S_WSLOT}, s{S_WSLOT}, {SLOT}", f"s_cmp_eq_u32 s{S_WSLOT}, {3*SLOT}", f"s_cselect_b32 s{S_WSLOT}, 0, s{S_WSLOT}"]

    def phase(self, mf, reads, valus, dmas, tail=()):
        reads = list(reads); valus = list(valus); dm = list(dmas); tail = list(tail)
        n = len(mf)
        dpos = {}
        if dm:
            for k in range(len(dm)): dpos[1 + (k * (n - 3)) // len(dm)] = k
        pend = None
        for idx, m in enumerate(mf):
            self.e(m)
            budget = 2
            if pend is not None:
                self.e(pend[1]);
                for x in pend[2:]: self.e(x)
                pend = None
            if reads:
                r = reads.pop(0)
                for x in r[:-1]: self.e(x); budget -= 1
                self.e(r[-1])
            elif tail and budget > 0:
                while tail and budget > 0:
                    x = tail.pop(0); self.e(x)
                    if x.startswith("v_"): budget -= 1
            while valus and budget > 0:
                self.e(valus.pop(0)); budget -= 1
            if idx in dpos:
                pend = dm[dpos[idx]]; self.e(pend[0])
        assert pend is None and not reads
        for x in valus + tail: self.e(x)

    def stat_ops(self, fr, sq, sm=None):
        o = []
        for k in range(4):
            a, b = V_T[2 * (k & 1)], V_T[2 * (k & 1) + 1]
            o += [f"v_lshlrev_b32 v{a}, 16, v{fr+k}", f"v_and_b32 v{b}, 0xffff0000, v{fr+k}",
                  f"v_fmac_f32 v{sq}, v{a}, v{a}", f"v_fmac_f32 v{sq+1}, v{b}, v{b}"]
            if sm is not None: o += [f"v_add_f32 v{sm}, v{sm}, v{a}", f"v_add_f32 v{sm+1}, v{sm+1}, v{b}"]
        return o

    def p1_mfmas(self, kind, S):
        o = []
        if kind[0] == "m":
            for j in range(4):
                for t in range(3):
                    d = ACC + 16 * (j + 1) + 4 * t
                    o.append(f"v_mfma_f32_16x16x32_bf16 v[{d}:{d+3}], v[{S+20+4*t}:{S+23+4*t}], v[{S+4*(j+1)}:{S+4*(j+1)+3}], v[{d}:{d+3}]")
            for t in range(3):
                d = V_CS + 4 * t
                o.append(f"v_mfma_f32_16x16x32_bf16 v[{d}:{d+3}], v[{S+20+4*t}:{S+23+4*t}], v[{V_ONES}:{V_ONES+3}], v[{d}:{d+3}]")
        else:
            for j in (range(5) if kind == "a0" else range(1, 5)):
                for f in range(4):
                    d = ACC + 16 * j + 4 * f
                    w = f"v[{S+20+4*f}:{S+23+4*f}]"; x = f"v[{S+4*j}:{S+4*j+3}]"
                    a, b = (x, w) if f == 2 else (w, x)
                    o.append(f"v_mfma_f32_16x16x32_bf16 v[{d}:{d+3}], {a}, {b}, v[{d}:{d+3}]")
        return o
    def p1_reads(self, kind, S, kk):
        xs = []; ws = []
        vx = [V_X0, V_X1][kk]; vs = [V_ST0, V_ST1][kk]
        for j in (range(5) if kind == "a0" else range(1, 5)):
            xs.append([f"ds_read_b128 v[{S+4*j}:{S+4*j+3}], v{vx} offset:{2048*j}"])
        if kind[0] == "m":
            for t in range(3):
                for hf in range(2):
                    r = S + 20 + 4 * t + 2 * hf
                    ws.append([f"ds_read_b64_tr_b16 v[{r}:{r+1}], v{V_W0+t} offset:{(hf*16+kk*32)*384}"])
        else:
            for f in range(4):
                for hf in range(2):
                    r = S + 20 + 4 * f + 2 * hf
                    ro = (hf * 16 + kk * 32) * 480
                    if f < 3:
                        ws.append([f"ds_read_b64_tr_b16 v[{r}:{r+1}], v{V_W0} offset:{ro + 160*f}"])
                    else:
                        ws.append([f"s_add_u32 s{T0}, s{S_RSLOT}, {ro}", f"v_mad_u32_u24 v{V_LT}, v{V_LSEL}, s{T0}, v{V_W1}",
                                   f"ds_read_b64_tr_b16 v[{r}:{r+1}], v{V_LT}"])
        st = STF[0] if S == SETA else STF[1]
        o = [xs[0]] + ws + xs[1:] + [[f"ds_read_b128 v[{st}:{st+3}], v{vs}"]]
        return o
    def p1_stats(self, kind, S):
        st = STF[0] if S == SETA else STF[1]
        if kind[0] == "m": return self.stat_ops(st, V_SQ[0], V_SQ[2])
        o = self.stat_ops(st, V_SQ[0])
        if kind == "a0": o += self.stat_ops(S, V_SQ[2])
        return o
    def ring_adv(self, kind):
        regs = [V_X0, V_X1, V_ST0, V_ST1, V_W0] + ([V_W1, V_W2] if kind[0] == "m" else [])
        o = [f"s_cmp_eq_u32 s{S_RSLOT}, {2*SLOT}", f"s_cselect_b32 s{S_DELTA}, {(-2*SLOT) & 0xffffffff}, {SLOT}"]
        o = [f"s_cmp_eq_u32 s{S_RSLOT}, {2*SLOT}", f"s_cselect_b32 s{S_DELTA}, s{T4}, s{T5}",
             f"s_add_u32 s{S_RSLOT}, s{S_RSLOT}, s{S_DELTA}"]
        o += [f"v_add_u32 v{r}, s{S_DELTA}, v{r}" for r in regs]
        return o

    def b2_rowoff(self, n):
        if n < 16: return 48 * (n >> 2) + 8 * (n & 3)
        m = n - 16; ks = m >> 2; u = m & 3
        return 96 * ks + 32 + 48 * (u & 1) + 8 * (u >> 1)
    def b2_dma(self, n, ldsreg, ldsoff):
        if n < 24:
            srd, base, ro, v = SRD0, S_B2H, self.b2_rowoff(n), V_B2
        elif n < 32:
            m = n - 24; ks = m >> 2; u = m & 3
            srd, base, ro, v = SRD1, S_B2O, 40 * ks + 20 * (u & 1) + 8 * (u >> 1), V_B2
        else:
            srd, base, ro, v = SRD1, S_B2O, 16 + 40 * (n - 32), V_B2L
        return [f"s_add_u32 m0, s{ldsreg}, {ldsoff}", f"s_add_u32 s{T0}, s{base}, {ro*1280}",
                f"buffer_load_dwordx4 v{v}, s[{srd}:{srd+3}], s{T0} offen lds"]

    def main_loop(self, kind):
        nd = 5 if kind[0] == "m" else 6
        top, mid, sw8, sw9, back = [self.lab(x) for x in ("top", "mid", "sw8", "sw9", "back")]
        self.e(f"s_waitcnt vmcnt({2*nd}) lgkmcnt(0)\ns_barrier")
        self.stamp(1)
        for r in self.p1_reads(kind, SETA, 0):
            for x in r: self.e(x)
        mode = self.o.get("dmamode", 0)
        if not self.o.get("nodma") and (mode == 1 or (mode == 2 and kind in ("a1", "m1"))):
            self.e(f"s_waitcnt lgkmcnt(0)")
            self.phase(self.p1_mfmas(kind, SETA), self.p1_reads(kind, SETB, 1), self.p1_stats(kind, SETA), [], tail=self.ring_adv(kind))
        self.e(f"s_mov_b32 s{S_IT}, 0\ns_branch {mid}")
        self.e(f"{sw8}:\ns_cmp_eq_u32 s{S_IT}, 9\ns_cbranch_scc1 {sw9}")
        for r in (SRD0, SRD1, SRD2): self.e(f"s_mov_b32 s{r}, s{P_W2}\ns_mov_b32 s{r+1}, s{P_W2+1}\ns_mov_b32 s{r+2}, {1536*1280}")
        for r in sorted(set(V_DMA)): self.e(f"v_mov_b32 v{r}, v{V_B2}")
        self.e(f"s_mul_i32 s{T0}, s{S_W}, 6144")
        for i in range(nd):
            self.e(f"s_add_u32 s{DD[i]}, s{T0}, {1024*i}\ns_add_u32 s{SO[i]}, s{S_B2H}, {self.b2_rowoff(i)*1280}")
        self.e(f"s_branch {back}\n{sw9}:")
        for i in range(nd):
            self.e(f"s_add_u32 s{SO[i]}, s{S_B2H}, {self.b2_rowoff(6+i)*1280}")
        self.e(f"s_branch {back}")
        self.e(".p2align 6")
        self.e(f"{top}:\ns_waitcnt vmcnt({nd}) lgkmcnt(0)\ns_barrier")
        dall = [self.dma(i) for i in range(nd)]
        if self.o.get("nodma"): dall = []
        mode = self.o.get("dmamode", 0)
        if mode == 0: d1, d2 = dall, []
        elif mode == 1: d1, d2 = dall[:(nd+1)//2], dall[(nd+1)//2:]
        elif mode == 2: d1, d2 = (dall, []) if kind in ("a0", "m0") else ([], dall)
        st1 = [] if self.o.get("nostats") else self.p1_stats(kind, SETB)
        st2 = [] if self.o.get("nostats") else self.p1_stats(kind, SETA)
        m1, m2 = self.p1_mfmas(kind, SETB), self.p1_mfmas(kind, SETA)
        if self.o.get("nomfma"): m1 = ["s_nop 0"] * len(m1); m2 = ["s_nop 0"] * len(m2)
        r1, r2 = self.p1_reads(kind, SETA, 0), self.p1_reads(kind, SETB, 1)
        if self.o.get("noreads"): r1 = []; r2 = []
        self.phase(m1, r1, st1, d1)
        if d2:
            self.e(f"s_waitcnt lgkmcnt(0)")
            self.phase(m2, r2, st2, d2, tail=self.ring_adv(kind))
            for x in self.next_wslot(): self.e(x)
            self.e(f"{mid}:")
        else:
            for x in self.next_wslot(): self.e(x)
            self.e(f"{mid}:\ns_waitcnt lgkmcnt(0)")
            self.phase(m2, r2, st2, [], tail=self.ring_adv(kind))
        self.d2 = d2
        self.e(f"s_add_u32 s{S_IT}, s{S_IT}, 1\ns_cmp_ge_u32 s{S_IT}, 8\ns_cbranch_scc0 {top}")
        self.e(f"s_cmp_lt_u32 s{S_IT}, 10\ns_cbranch_scc1 {sw8}")
        fin = self.lab("fin")
        self.e(f"s_branch {fin}\n{back}:\ns_branch {top}\n{fin}:")
        self.e(f"s_waitcnt lgkmcnt(0)\ns_barrier")
        self.vmreset()
        self.e(f"s_mul_i32 s{T1}, s{S_W}, 6144\ns_add_u32 s{T2}, s{T1}, {2*SLOT}\ns_add_u32 s{T1}, s{T1}, {SLOT}\ns_lshl_b32 s{T3}, s{S_W}, 12")
        self.e(f"s_mov_b32 s{SRD1}, s{P_WO}\ns_mov_b32 s{SRD1+1}, s{P_WO+1}\ns_mov_b32 s{SRD1+2}, {640*1280}")
        dm = []
        if kind[0] == "m":
            dm += [self.b2_dma(5, T1, 5120), self.b2_dma(11, T2, 5120)]
        self.r1ab = len(dm)
        dm += [self.b2_dma(12 + i, T3, 1024 * i) for i in range(4)]
        dm2 = [[d[0] + "\n" + d[1], d[2]] for d in dm]
        self.phase(self.p1_mfmas(kind, SETB), [], self.p1_stats(kind, SETB), dm2)
        self.vm = len(dm); self.r1c = self.vm
        self.nonce_op = self.vmop(f"buffer_load_dword v{V_LT}, off, s[{SRDDBG}:{SRDDBG+3}], 0 sc1")
        self.stamp(2)

    def trb_addr(self, sreg, dst):
        return [f"v_add_u32 v{dst+t}, s{sreg}, v{V_X0+t}" for t in range(4)]
    def p2_lane_init(self):
        a, b = V_T[0], V_T[1]
        self.e(f"""v_lshrrev_b32 v{a}, 2, v{V_LANE}
v_lshlrev_b32 v{V_X0}, 7, v{a}
v_bfe_u32 v{b}, v{V_LANE}, 3, 2
v_lshl_add_u32 v{V_X0}, v{b}, 5, v{V_X0}
v_and_b32 v{b}, 3, v{V_LANE}
v_lshl_add_u32 v{V_X0}, v{b}, 3, v{V_X0}
v_xor_b32 v{V_X1}, 32, v{V_X0}
v_xor_b32 v{V_ST0}, 64, v{V_X0}
v_xor_b32 v{V_ST1}, 0x60, v{V_X0}""")
    def b2_reads(self, half, areg, off, dstbase=BH, ks=None, both=False):
        ks = (half >> 1) if ks is None else ks
        o = []
        for t in range(4):
            r = dstbase + 16 * ks + 4 * t + 2 * (half & 1)
            o.append(f"ds_read_b64_tr_b16 v[{r}:{r+1}], v{areg+t} offset:{off}")
            if both: o.append(f"ds_read_b64_tr_b16 v[{r+2}:{r+3}], v{areg+t} offset:{off}")
        return o
    AR = 11
    def b2_step1(self):
        self.vmwait(self.r1ab)
        for x in self.trb_addr(T1, self.AR): self.e(x)
        for hh in range(3):
            for x in self.b2_reads(hh, self.AR, 2048 * hh): self.e(x)
        for x in self.trb_addr(T2, self.AR): self.e(x)
        for hh in range(3, 6):
            for x in self.b2_reads(hh, self.AR, 2048 * (hh - 3)): self.e(x)
        self.e("s_waitcnt lgkmcnt(0)")
        for n in range(16, 28):
            d = self.b2_dma(n, T1 if n < 22 else T2, 1024 * ((n - 16) % 6))
            self.e(d[0]); self.e(d[1]); self.r2a = self.vmop(d[2])
            if n == 23: self.r2h = self.vm
    def b2_step2(self):
        self.vmwait(self.r1c)
        for x in self.trb_addr(T3, self.AR): self.e(x)
        for hh in (6, 7):
            for x in self.b2_reads(hh, self.AR, 2048 * (hh - 6)): self.e(x)
        self.e("s_waitcnt lgkmcnt(0)")
        for n in range(28, 32):
            d = self.b2_dma(n, T3, 1024 * (n - 28))
            self.e(d[0]); self.e(d[1]); self.vmop(d[2])
    def b2_step3(self):
        for x in self.trb_addr(T1, self.AR): self.e(x)
        for hh in (8, 9, 10):
            for x in self.b2_reads(hh, self.AR, 2048 * (hh - 8)): self.e(x)
        for x in self.trb_addr(T2, self.AR): self.e(x)
        for x in self.b2_reads(11, self.AR, 0): self.e(x)
        self.e("s_waitcnt lgkmcnt(0)")
        for n in (32, 33):
            d = self.b2_dma(n, T1, 1024 * (n - 32))
            self.e(d[0]); self.e(d[1]); self.vmop(d[2])

    def ln_stats(self, s1, s2, na, nb):
        self.e(f"""v_mul_f32 v{s1}, {hex(f2u(1.0/640))}, v{s1}
v_mul_f32 v{s2}, {hex(f2u(1.0/640))}, v{s2}
v_fma_f32 v{s2}, -v{s1}, v{s1}, v{s2}
v_max_f32 v{s2}, 0, v{s2}
v_cvt_pk_bf16_f32 v{na}, v{s1}, v{s2}
v_lshlrev_b32 v{s1}, 16, v{na}
v_and_b32 v{s2}, 0xffff0000, v{na}
v_xor_b32 v{s1}, 0x80000000, v{s1}
v_add_f32 v{s2}, {hex(f2u(1e-5))}, v{s2}
v_cvt_pk_bf16_f32 v{na}, v{s2}, v{s2}
v_and_b32 v{s2}, 0xffff0000, v{na}
v_sqrt_f32 v{s2}, v{s2}
v_cvt_pk_bf16_f32 v{na}, v{s2}, v{s2}
v_and_b32 v{s2}, 0xffff0000, v{na}
v_rcp_f32 v{s2}, v{s2}""")
    def xgroup_sum(self, r, t):
        self.e(f"""v_mov_b32 v{t}, v{r}
v_permlane16_swap_b32 v{r}, v{t}
v_add_f32 v{r}, v{r}, v{t}
v_mov_b32 v{t}, v{r}
v_permlane32_swap_b32 v{r}, v{t}
v_add_f32 v{r}, v{r}, v{t}""")

    def publish(self, typ):
        self.e("s_waitcnt vmcnt(0)")
        ok, lp = self.lab("nok"), self.lab("nlp")
        self.e(f"""s_mov_b32 s{T0}, 0
{lp}:
v_readfirstlane_b32 s{S_NONCE}, v{V_LT}
s_cmp_lg_u32 s{S_NONCE}, 0
s_cbranch_scc1 {ok}
s_add_u32 s{T0}, s{T0}, 1
s_cmp_gt_u32 s{T0}, {SPIN}
s_cbranch_scc1 {ok}
s_sleep 2
buffer_load_dword v{V_LT}, off, s[{SRDDBG}:{SRDDBG+3}], 0 sc1
s_waitcnt vmcnt(0)
s_branch {lp}
{ok}:
s_barrier""")
        self.vmreset()
        sk = self.lab("nofl")
        self.e(f"""s_cmp_lg_u32 s{S_W}, 0
s_cbranch_scc1 {sk}
s_lshl_b32 s{T0}, s{S_MT}, 3
s_add_u32 s{T0}, s{T0}, s{S_NT}
s_lshl_b32 s{T0}, s{T0}, 7
s_add_u32 s{T0}, s{T0}, {FLAG_BASE + typ*16384}
s_mov_b64 exec, 1
buffer_store_dword v{V_LT}, off, s[{SRDWS}:{SRDWS+3}], s{T0} sc1
s_mov_b64 exec, -1
{sk}:""")
        self.stamp(4)

    def attn_pre(self, kind):
        q0, q1, q2, q3 = V_SQ; t0, t1, t2, t3 = V_T
        self.p2_lane_init()
        self.e(f"v_add_f32 v{q0}, v{q0}, v{q1}")
        self.xgroup_sum(q0, t0)
        ls = [self.lab("sel") for _ in range(4)]
        self.e(f"v_mov_b32 v{q1}, v{ACC+16+12}")
        for hh in (1, 2, 3):
            self.e(f"s_cmp_eq_u32 s{S_H}, {hh}\ns_cselect_b64 s[{S_M0}:{S_M0+1}], -1, 0\nv_cndmask_b32 v{q1}, v{q1}, v{ACC+16*(1+hh)+12}, s[{S_M0}:{S_M0+1}]")
        self.ln_stats(q1, q0, t0, t1)
        self.e(f"""s_lshl_b32 s{T0}, s{S_W}, 6
s_add_u32 s{T0}, s{T0}, {L_STAT + 64}
v_lshl_add_u32 v{t0}, v{V_I}, 2, s{T0}
s_mov_b32 exec_lo, 0
s_mov_b32 exec_hi, 0xffff0000
ds_write2_b32 v{t0}, v{q1}, v{q0} offset0:0 offset1:160
s_mov_b64 exec, -1""")
        if kind == "a0":
            self.e(f"v_add_f32 v{q2}, v{q2}, v{q3}")
            self.xgroup_sum(q2, t0)
            self.e(f"v_mov_b32 v{q3}, v{ACC+12}")
            self.ln_stats(q3, q2, t0, t1)
            self.e(f"""v_lshlrev_b32 v{t0}, 2, v{V_I}
v_add_u32 v{t0}, {L_STAT}, v{t0}
s_mov_b32 exec_lo, 0
s_mov_b32 exec_hi, 0xffff0000
ds_write2_b32 v{t0}, v{q3}, v{q2} offset0:0 offset1:160
s_mov_b64 exec, -1""")
            self.e(f"""s_lshl_b32 s{T0}, s{S_H}, 8
s_add_u32 s{T0}, s{T0}, {L_CS}
v_lshl_add_u32 v{t0}, v{V_G}, 4, s{T0}
v_lshl_add_u32 v{t1}, v{V_I}, 2, s{T0}
s_mov_b32 exec_lo, 0x00010001
s_mov_b32 exec_hi, 0x00010001
ds_write_b128 v{t0}, v[{ACC}:{ACC+3}]
ds_write_b128 v{t0}, v[{ACC+4}:{ACC+7}] offset:64
ds_write_b128 v{t0}, v[{ACC+12}:{ACC+15}] offset:192
s_mov_b64 exec, 0xffff
ds_write_b32 v{t1}, v{ACC+8} offset:128
s_mov_b64 exec, -1
s_mul_i32 s{T0}, s{S_H}, 3072
s_add_u32 s{T0}, s{T0}, {S1}
v_add_u32 v{t0}, s{T0}, v{V_L16}""")
            for f in (1, 2, 3):
                r = ACC + 64 + 4 * f
                self.e(f"ds_write_b128 v{t0}, v[{r}:{r+3}] offset:{1024*(f-1)}")
        self.e("s_waitcnt lgkmcnt(0)\ns_barrier")
        if kind == "a1":
            self.e(f"""s_mul_i32 s{T0}, s{S_H}, 3072
s_add_u32 s{T0}, s{T0}, {S1}
v_add_u32 v{t0}, s{T0}, v{V_L16}""")
            for f in (1, 2, 3):
                r = ACC + 4 * f
                self.e(f"ds_read_b128 v[{r}:{r+3}], v{t0} offset:{1024*(f-1)}")

    def attn_epi(self):
        QA = 96; VA = 106; CS = 146
        VOP = 224; MC = 234; MP = 238; MP0 = 242; MB = 246; ON = 248; VC = 252; t0, t1, t2 = 253, 254, 255
        self.e(f"""s_lshl_b32 s{T0}, s{S_TG}, 8
s_add_u32 s{T0}, s{T0}, {L_STAT}
v_lshl_add_u32 v{t0}, v{V_I}, 2, s{T0}
v_lshl_add_u32 v{t1}, v{V_G}, 4, s{T0}""")
        for j in range(5):
            self.e(f"ds_read2_b32 v[{QA+2*j}:{QA+2*j+1}], v{t0} offset0:{16*j} offset1:{160+16*j}")
            self.e(f"ds_read_b128 v[{VA+8*j}:{VA+8*j+3}], v{t1} offset:{64*j}")
            self.e(f"ds_read_b128 v[{VA+8*j+4}:{VA+8*j+7}], v{t1} offset:{640+64*j}")
        self.e(f"""s_lshl_b32 s{T0}, s{S_H}, 8
s_add_u32 s{T0}, s{T0}, {L_CS}
v_lshl_add_u32 v{t0}, v{V_G}, 4, s{T0}
v_lshl_add_u32 v{t1}, v{V_I}, 2, s{T0}
ds_read_b128 v[{CS}:{CS+3}], v{t0}
ds_read_b128 v[{CS+4}:{CS+7}], v{t0} offset:64
ds_read_b128 v[{CS+8}:{CS+11}], v{t0} offset:192
ds_read_b32 v{CS+12}, v{t1} offset:128""")
        self.e(f"v_lshlrev_b32 v{t2}, 2, v{V_G}\nv_sub_u32 v{t2}, v{V_I}, v{t2}\nv_mov_b32 v{VC}, {hex(NEGBIG)}\nv_mov_b32 v{MB}, 0\nv_mov_b32 v{MB+1}, 0")
        self.e(f"s_and_b32 s{T0}, s{S_MT}, 7\ns_or_b32 s{T0}, s{T0}, s{S_TG}\ns_cmp_eq_u32 s{T0}, 0\ns_cselect_b64 s[{S_M1}:{S_M1+1}], 0, -1")
        for r in range(4):
            self.e(f"""v_subrev_u32 v{t0}, {r}, v{t2}
v_cmp_gt_u32 s[{S_M0}:{S_M0+1}], 8, v{t0}
v_cndmask_b32 v{MC+r}, v{VC}, 0, s[{S_M0}:{S_M0+1}]
v_mov_b32 v{t1}, {hex(0xffff << (16*(r&1)))}
v_cndmask_b32 v{t1}, 0, v{t1}, s[{S_M0}:{S_M0+1}]
v_or_b32 v{MB+(r>>1)}, v{MB+(r>>1)}, v{t1}
v_cmp_gt_i32 s[{S_M0}:{S_M0+1}], -8, v{t0}
v_cndmask_b32 v{MP+r}, v{VC}, 0, s[{S_M0}:{S_M0+1}]
v_cndmask_b32 v{MP0+r}, v{VC}, v{MP+r}, s[{S_M1}:{S_M1+1}]
v_mov_b32 v{ON+r}, {hex(ONE2)}""")
        self.e(f"v_mov_b32 v{VC}, {hex(f2u(20**-0.5 * LOG2E))}")
        self.b2_step1()
        self.e(f"""s_mul_i32 s{T0}, s{S_W}, {5*REC}
s_add_u32 s{T0}, s{T0}, {L_REC}
v_lshlrev_b32 v{t0}, 6, v{V_G}
v_lshl_add_u32 v{t0}, v{V_I}, 3, v{t0}
v_add_u32 v{t0}, s{T0}, v{t0}
v_lshl_add_u32 v{t1}, v{V_I}, 3, s{T0}
s_add_u32 s{T0}, s{T0}, 256
v_mov_b32 v{t2}, s{T0}
s_mov_b32 s{S_M0}, 0xffff0000
s_mov_b32 s{S_M0+1}, 0
v_cndmask_b32 v{t1}, v{t2}, v{t1}, s[{S_M0}:{S_M0+1}]""")
        for j in range(5):
            A = ACC + 16 * j
            for f, cs in ((3, CS + 8), (1, CS + 4), (0, CS)):
                if j == 0 and f == 0: continue
                for r in range(4): self.e(f"v_fmac_f32 v{A+4*f+r}, v{QA+2*j}, v{cs+r}")
                for r in range(4): self.e(f"v_mul_f32 v{A+4*f+r}, v{QA+2*j+1}, v{A+4*f+r}")
            self.e(f"v_cvt_pk_bf16_f32 v{A+4}, v{A+4}, v{A+5}\nv_cvt_pk_bf16_f32 v{A+5}, v{A+6}, v{A+7}")
            self.e(f"v_cvt_pk_bf16_f32 v{A+6}, v{A+12}, v{A+13}\nv_cvt_pk_bf16_f32 v{A+7}, v{A+14}, v{A+15}")
            self.e(f"s_mov_b32 exec_lo, 0xffff\ns_mov_b32 exec_hi, 0xffff\nds_write_b64 v{t0}, v[{A+6}:{A+7}] offset:{REC*j}\ns_mov_b64 exec, -1")
            if j:
                self.e(f"v_cvt_pk_bf16_f32 v{A}, v{A}, v{A+1}\nv_cvt_pk_bf16_f32 v{A+1}, v{A+2}, v{A+3}")
                self.e(f"ds_read_b64 v[{A+2}:{A+3}], v{t1} offset:{REC*j}")
            for r in range(4): self.e(f"v_fmac_f32 v{A+8+r}, v{VA+8*j+r}, v{CS+12}")
            for r in range(4): self.e(f"v_mul_f32 v{A+8+r}, v{VA+8*j+4+r}, v{A+8+r}")
            self.e(f"v_cvt_pk_bf16_f32 v{VOP+2*j}, v{A+8}, v{A+9}\nv_cvt_pk_bf16_f32 v{VOP+2*j+1}, v{A+10}, v{A+11}")
        VL = 96; MX = 112; OL = 116; RR = 120; RL = 124
        self.e(f"""v_lshrrev_b32 v{t0}, 2, v{V_LANE}
v_lshlrev_b32 v{t0}, 3, v{t0}
v_add_u32 v{t0}, s{T0}, v{t0}
v_subrev_u32 v{t0}, 0x80, v{t0}""")
        for j in range(1, 5):
            m = 0x11111111 << (j - 1)
            self.e(f"""s_mov_b32 s{S_M0}, {hex(m)}
s_mov_b32 s{S_M0+1}, {hex(m)}
v_cndmask_b32 v{t1}, v{t2}, v{t0}, s[{S_M0}:{S_M0+1}]
ds_read_b64_tr_b16 v[{VL+4*(j-1)}:{VL+4*(j-1)+1}], v{t1} offset:{REC*(j-1)}
ds_read_b64_tr_b16 v[{VL+4*(j-1)+2}:{VL+4*(j-1)+3}], v{t1} offset:{REC*j}""")
        self.e("s_waitcnt lgkmcnt(8)")
        for j in range(1, 5):
            A = ACC + 16 * j; P = A - 16
            mp = MP0 if j == 1 else MP
            self.e(f"v_mfma_f32_16x16x32_bf16 v[{A+8}:{A+11}], v[{A+4}:{A+7}], v[{A}:{A+3}], v[{MC}:{MC+3}]")
            self.e(f"v_mfma_f32_16x16x32_bf16 v[{A+12}:{A+15}], v[{P+4}:{P+7}], v[{A}:{A+3}], v[{mp}:{mp+3}]")
        self.b2_step2()
        for j in range(1, 5):
            A = ACC + 16 * j
            for r in range(4): self.e(f"v_max_f32 v{A+8+r}, v{A+8+r}, v{A+12+r}")
            self.e(f"v_max3_f32 v{MX+j-1}, v{A+8}, v{A+9}, v{A+10}\nv_max_f32 v{MX+j-1}, v{MX+j-1}, v{A+11}")
        m0, m1, m2, m3 = MX, MX + 1, MX + 2, MX + 3
        self.e(f"""v_permlane16_swap_b32 v{m0}, v{m1}
v_permlane16_swap_b32 v{m2}, v{m3}
v_max_f32 v{m0}, v{m0}, v{m1}
v_max_f32 v{m2}, v{m2}, v{m3}
v_permlane32_swap_b32 v{m0}, v{m2}
v_max_f32 v{m0}, v{m0}, v{m2}
v_mul_f32 v{m0}, v{m0}, v{VC}
v_mov_b32 v{m2}, v{m0}
v_permlane32_swap_b32 v{m0}, v{m2}
v_mov_b32 v{m1}, v{m0}
v_mov_b32 v{m3}, v{m2}
v_permlane16_swap_b32 v{m0}, v{m1}
v_permlane16_swap_b32 v{m2}, v{m3}""")
        for j in range(1, 5):
            A = ACC + 16 * j
            for r in range(4): self.e(f"v_fma_f32 v{A+8+r}, v{A+8+r}, v{VC}, -v{MX+j-1}")
            for r in range(4): self.e(f"v_exp_f32 v{A+8+r}, v{A+8+r}")
            self.e(f"""v_cvt_pk_bf16_f32 v{A+12}, v{A+8}, v{A+9}
v_cvt_pk_bf16_f32 v{A+13}, v{A+10}, v{A+11}
v_and_b32 v{A+14}, v{A+12}, v{MB}
v_and_b32 v{A+15}, v{A+13}, v{MB+1}
v_xor_b32 v{A+12}, v{A+12}, v{A+14}
v_xor_b32 v{A+13}, v{A+13}, v{A+15}""")
            V = VOP + 2 * (j - 1)
            self.e(f"v_mfma_f32_16x16x32_bf16 v[{A+4}:{A+7}], v[{ON}:{ON+3}], v[{A+12}:{A+15}], 0")
            self.e(f"v_mfma_f32_16x16x32_bf16 v[{A}:{A+3}], v[{V}:{V+3}], v[{A+12}:{A+15}], 0")
            c = "0" if j == 1 else f"v[{OL}:{OL+3}]"
            self.e(f"v_mfma_f32_16x16x32_bf16 v[{OL}:{OL+3}], v[{VL+4*(j-1)}:{VL+4*(j-1)+3}], v[{A+12}:{A+15}], {c}")
        self.e(f"""v_and_b32 v{t0}, 31, v{V_LANE}
v_lshlrev_b32 v{t0}, 4, v{t0}
v_lshrrev_b32 v{t1}, 5, v{V_LANE}
s_mov_b32 s{T0}, {A2_RT}
v_mad_u32_u24 v{t0}, v{t1}, s{T0}, v{t0}
v_lshlrev_b32 v{t1}, 4, v{V_I}
v_mad_u32_u24 v{t1}, v{V_G}, s{T0}, v{t1}
s_lshl_b32 s{T0}, s{S_MT}, 1
s_add_u32 s{T0}, s{T0}, s{S_TG}
s_lshl_b32 s{T0}, s{T0}, 5
s_add_u32 s{T0}, s{T0}, s{S_NT}
s_mul_i32 s{T0}, s{T0}, {A2_BLK}
s_lshl_b32 s{T4}, s{S_H}, 9
s_add_u32 s{T4}, s{T4}, s{T0}
s_add_u32 s{T4}, s{T4}, 6144
s_lshl_b32 s{T5}, s{S_H}, 8
s_add_u32 s{T5}, s{T5}, s{T0}
s_add_u32 s{T5}, s{T5}, 8192""")
        for j in range(1, 5):
            A = ACC + 16 * j
            self.e(f"v_rcp_f32 v{RR+j-1}, v{A+4}")
        for pr in range(2):
            D = 128 + 4 * pr
            for u in range(2):
                j = 1 + 2 * pr + u; A = ACC + 16 * j
                for r in range(4): self.e(f"v_mul_f32 v{A+r}, v{A+r}, v{RR+j-1}")
                self.e(f"v_cvt_pk_bf16_f32 v{D+2*u}, v{A}, v{A+1}\nv_cvt_pk_bf16_f32 v{D+2*u+1}, v{A+2}, v{A+3}")
                self.e(f"v_mov_b32_dpp v{RL}, v{RR+j-1} quad_perm:[0,1,2,3] row_mask:{hex(1<<(j-1))} bank_mask:0xf")
            self.e(f"v_permlane32_swap_b32 v{D}, v{D+2}\nv_permlane32_swap_b32 v{D+1}, v{D+3}")
            self.vmop(f"buffer_store_dwordx4 v[{D}:{D+3}], v{t0}, s[{SRDWS}:{SRDWS+3}], s{T4} offen sc1")
            if pr == 0: self.e(f"s_add_u32 s{T4}, s{T4}, {2*A2_RT}")
        for r in range(4): self.e(f"v_mul_f32 v{OL+r}, v{OL+r}, v{RL}")
        self.e(f"v_cvt_pk_bf16_f32 v136, v{OL}, v{OL+1}\nv_cvt_pk_bf16_f32 v137, v{OL+2}, v{OL+3}\nv_mov_b32 v138, 0\nv_mov_b32 v139, 0")
        self.vmop(f"buffer_store_dwordx4 v[136:139], v{t1}, s[{SRDWS}:{SRDWS+3}], s{T5} offen sc1")
        self.stamp(3)

    def mlp_epi(self):
        q0, q1, q2, q3 = V_SQ; t0, t1, t2, t3 = V_T
        self.p2_lane_init()
        self.e(f"v_add_f32 v{q0}, v{q0}, v{q1}\nv_add_f32 v{q2}, v{q2}, v{q3}")
        self.xgroup_sum(q0, t0); self.xgroup_sum(q2, t1)
        self.ln_stats(q2, q0, t0, t1)
        self.e(f"""s_lshl_b32 s{T0}, s{S_W}, 6
s_add_u32 s{T0}, s{T0}, {L_STAT}
v_lshl_add_u32 v{t0}, v{V_I}, 2, s{T0}
s_mov_b64 exec, 0xffff
ds_write2_b32 v{t0}, v{q2}, v{q0} offset0:0 offset1:160
s_mov_b64 exec, -1""")
        CS = 96; QA = 108; A2 = 116; E = 120; D = 136; a0, a1 = 253, 254
        for r in range(12): self.e(f"v_mov_b32 v{CS+r}, v{V_CS+r}")
        self.e(f"""s_waitcnt lgkmcnt(0)
s_barrier
s_lshl_b32 s{T0}, s{S_TG}, 8
s_add_u32 s{T0}, s{T0}, {L_STAT}
v_lshl_add_u32 v{a0}, v{V_I}, 2, s{T0}""")
        for j in range(4):
            self.e(f"ds_read2_b32 v[{QA+2*j}:{QA+2*j+1}], v{a0} offset0:{16*j} offset1:{160+16*j}")
        self.b2_step1()
        self.e(f"""v_and_b32 v{a0}, 31, v{V_LANE}
v_lshlrev_b32 v{a0}, 4, v{a0}
v_lshrrev_b32 v{a1}, 5, v{V_LANE}
s_mov_b32 s{T0}, {A2_RT}
v_mad_u32_u24 v{a0}, v{a1}, s{T0}, v{a0}
s_lshl_b32 s{T0}, s{S_MT}, 1
s_add_u32 s{T0}, s{T0}, s{S_TG}
s_lshl_b32 s{T0}, s{T0}, 5
s_add_u32 s{T0}, s{T0}, s{S_NT}
s_mul_i32 s{T0}, s{T0}, {A2_BLK}
s_lshl_b32 s{T4}, s{S_H}, 10
s_add_u32 s{T4}, s{T4}, s{T0}
s_lshl_b32 s{T5}, s{S_H}, 9
s_add_u32 s{T5}, s{T5}, s{T0}
s_add_u32 s{T5}, s{T5}, 4096""")
        for j in range(4): self.e(f"v_mul_f32 v{A2+j}, {hex(f2u(-LOG2E))}, v{QA+2*j+1}")
        for j in range(4):
            A = ACC + 16 * (j + 1)
            Dn = D + 8 * (j & 1); Ds = D + 16
            for r in range(12): self.e(f"v_fmac_f32 v{A+r}, v{QA+2*j}, v{CS+r}")
            for r in range(12): self.e(f"v_mul_f32 v{E+r}, v{A2+j}, v{A+r}")
            for r in range(12): self.e(f"v_exp_f32 v{E+r}, v{E+r}")
            for r in range(12): self.e(f"v_mul_f32 v{A+r}, v{QA+2*j+1}, v{A+r}")
            for r in range(12): self.e(f"v_add_f32 v{E+r}, 1.0, v{E+r}")
            for r in range(12): self.e(f"v_rcp_f32 v{E+r}, v{E+r}")
            for r in range(12): self.e(f"v_mul_f32 v{A+r}, v{A+r}, v{E+r}")
            for r in range(4): self.e(f"v_cvt_pk_bf16_f32 v{Dn+r}, v{A+2*r}, v{A+2*r+1}")
            self.vmop(f"buffer_store_dwordx4 v[{Dn}:{Dn+3}], v{V_L16}, s[{SRDWS}:{SRDWS+3}], s{T4} offen sc1")
            self.e(f"s_add_u32 s{T4}, s{T4}, {A2_RT}")
            Dd = Ds + 4 * (j >> 1)
            for r in range(2): self.e(f"v_cvt_pk_bf16_f32 v{Dd+2*(j&1)+r}, v{A+8+2*r}, v{A+9+2*r}")
            if j & 1:
                self.e(f"v_permlane32_swap_b32 v{Dd}, v{Dd+2}\nv_permlane32_swap_b32 v{Dd+1}, v{Dd+3}")
                self.vmop(f"buffer_store_dwordx4 v[{Dd}:{Dd+3}], v{a0}, s[{SRDWS}:{SRDWS+3}], s{T5} offen sc1")
                self.e(f"s_add_u32 s{T5}, s{T5}, {2*A2_RT}")
            if j == 1: self.b2_step2()
        self.stamp(3)

    def poll(self, vaddr, vdst, typ, first_op=None):
        lp, ok = self.lab("pl"), self.lab("pok")
        ld = f"buffer_load_dword v{vdst}, v{vaddr}, s[{SRDWS}:{SRDWS+3}], s{T4} offen sc1"
        if first_op is None:
            self.e(f"s_mov_b32 s{T4}, {FLAG_BASE + typ*16384}")
            first_op = self.vmop(ld)
        self.vmwait(first_op)
        self.e(f"""s_mov_b32 s{T0}, 0
{lp}:
v_cmp_ne_u32 vcc, s{S_NONCE}, v{vdst}
s_cbranch_vccz {ok}
s_add_u32 s{T0}, s{T0}, 1
s_cmp_gt_u32 s{T0}, {SPIN}
s_cbranch_scc1 {ok}
s_sleep 1
{ld}
s_waitcnt vmcnt(0)
s_branch {lp}
{ok}:""")
    def p2(self, n):
        STG = 112; NS = 12
        V_FA, V_FD, V_O = 3, 4, 15
        V_FA, V_FD = 5, 6
        XR = 240; RW = 246; RRD = 250; V_OUT = 251; TMP = 208
        self.b2_step3()
        self.e(f"""s_lshl_b32 s{T0}, s{S_XCD}, 4
s_add_u32 s{T0}, s{T0}, s{S_W}
s_lshl_b32 s{T0}, s{T0}, 7
v_and_b32 v{V_LT}, 1, v{V_LANE}
v_lshlrev_b32 v{V_LT}, 10, v{V_LT}
v_add_u32 v{V_LT}, s{T0}, v{V_LT}
s_lshl_b32 s{T5}, s{S_RT0}, 3
s_add_u32 s{T5}, s{T5}, s{S_W}
s_mul_i32 s{T5}, s{T5}, {A2_BLK}""")
        V_FA = V_LT; V_FD = 4
        self.poll(V_FA, V_FD, 0)
        self.stamp(5)
        seq = [(j, ks) for j in range(n) for ks in range(6)] + [(j, ks) for j in range(n) for ks in range(6, 9)]
        ops = {}
        def issue(q):
            j, ks = seq[q]
            off = j * A2_RT + (ks >> 2) * 4096
            r = STG + 4 * (q % NS)
            if ks & 3 == 0 or ks == 6:
                self.e(f"s_add_u32 s{S_DELTA}, s{T5}, {off}")
            ops[q] = self.vmop(f"buffer_load_dwordx4 v[{r}:{r+3}], v{V_L16}, s[{SRDWS}:{SRDWS+3}], s{S_DELTA} offen offset:{1024*(ks&3)} sc1")
        for q in range(NS): issue(q)
        pollop = None
        pend_reduce = None
        def reduce_issue(m):
            sp = (2 * m) % 4
            for u in range(8):
                self.e(f"ds_read_b128 v[{TMP+4*u}:{TMP+4*u+3}], v{RRD} offset:{u*4096}")
        def reduce_finish(m):
            self.e("s_waitcnt lgkmcnt(0)")
            self.vmwait(xops[m])
            for (a, b) in ((0, 1), (2, 3), (4, 5), (6, 7), (0, 2), (4, 6), (0, 4)):
                for r in range(4): self.e(f"v_add_f32 v{TMP+4*a+r}, v{TMP+4*a+r}, v{TMP+4*b+r}")
            x = XR + 2 * m
            self.e(f"""v_lshlrev_b32 v{TMP+4}, 16, v{x}
v_and_b32 v{TMP+5}, 0xffff0000, v{x}
v_lshlrev_b32 v{TMP+6}, 16, v{x+1}
v_and_b32 v{TMP+7}, 0xffff0000, v{x+1}""")
            for r in range(4): self.e(f"v_add_f32 v{TMP+r}, v{TMP+r}, v{TMP+4+r}")
            self.e(f"v_cvt_pk_bf16_f32 v{x}, v{TMP}, v{TMP+1}\nv_cvt_pk_bf16_f32 v{x+1}, v{TMP+2}, v{TMP+3}")
            self.e(f"s_add_u32 s{T0}, s{T3}, {m*32*2560}")
            self.vmop(f"buffer_store_dwordx2 v[{x}:{x+1}], v{V_OUT}, s[{SRDOUT}:{SRDOUT+3}], s{T0} offen")
        xops = {}
        for q in range(len(seq)):
            j, ks = seq[q]
            if q == 6 * n:
                self.e("s_waitcnt lgkmcnt(0)\ns_barrier")
                self.stamp(6)
                self.e(f"""v_xor_b32 v{RW}, v{V_I}, v{V_G}
v_lshlrev_b32 v{RW}, 4, v{RW}
v_lshl_add_u32 v{RW}, v{V_G}, 8, v{RW}
s_lshl_b32 s{T0}, s{S_W}, 12
v_add_u32 v{RW}, s{T0}, v{RW}
v_xor_b32 v{RW+1}, 0x440, v{RW}
v_xor_b32 v{RW+2}, 0x880, v{RW}
v_xor_b32 v{RW+3}, 0xcc0, v{RW}
s_and_b32 s{T0}, s{S_W}, 3
s_lshl_b32 s{T0}, s{T0}, 2
v_add_u32 v{V_OUT}, s{T0}, v{V_G}
v_xor_b32 v{RRD}, v{V_OUT}, v{V_I}
v_lshlrev_b32 v{RRD}, 4, v{RRD}
v_lshl_add_u32 v{RRD}, v{V_I}, 8, v{RRD}
s_lshr_b32 s{T0}, s{S_W}, 2
s_lshl_b32 s{T4}, s{T0}, 15
v_add_u32 v{RRD}, s{T4}, v{RRD}
v_mul_u32_u24 v{V_OUT}, 2560, v{V_OUT}
v_lshl_add_u32 v{V_OUT}, v{V_I}, 3, v{V_OUT}
s_add_u32 s{T0}, s{T0}, s{S_RT0}
s_and_b32 s{T3}, s{T0}, 63
s_mul_i32 s{T3}, s{T3}, {16*2560}
s_lshr_b32 s{T0}, s{S_RT0}, 6
s_mul_i32 s{T0}, s{T0}, 1280
s_add_u32 s{T3}, s{T3}, s{T0}
s_lshl_b32 s{T0}, s{S_CT}, 7
s_add_u32 s{T3}, s{T3}, s{T0}""")
                for m in range(n // 2):
                    self.e(f"s_add_u32 s{T0}, s{T3}, {m*32*2560}")
                    xops[m] = self.vmop(f"buffer_load_dwordx2 v[{XR+2*m}:{XR+2*m+1}], v{V_OUT}, s[{SRDX}:{SRDX+3}], s{T0} offen")
            self.vmwait(ops[q])
            r = STG + 4 * (q % NS)
            for t in range(4):
                d = ACC + 16 * j + 4 * t; b = BH + 16 * (ks % 6) + 4 * t
                c = "0" if ks == 0 else f"v[{d}:{d+3}]"
                self.e(f"v_mfma_f32_16x16x32_bf16 v[{d}:{d+3}], v[{b}:{b+3}], v[{r}:{r+3}], {c}")
            if q == 6 * n - 4:
                for x in self.trb_addr(T2, self.AR): self.e(x)
                for hh in (12, 13):
                    for x in self.b2_reads(hh, self.AR, 2048 * (hh - 11), ks=0): self.e(x)
                for x in self.trb_addr(T3, self.AR): self.e(x)
                for hh in (14, 15):
                    for x in self.b2_reads(hh, self.AR, 2048 * (hh - 14), ks=1): self.e(x)
                for x in self.trb_addr(T1, self.AR): self.e(x)
                for x in self.b2_reads(16, self.AR, 0, ks=2, both=True): self.e(x)
            if q + NS == 6 * n - self.lead:
                self.e(f"s_mov_b32 s{T4}, {FLAG_BASE + 16384}")
                pollop = self.vmop(f"buffer_load_dword v{V_FD}, v{V_FA}, s[{SRDWS}:{SRDWS+3}], s{T4} offen sc1")
            if q + NS == 6 * n:
                self.poll(V_FA, V_FD, 1, first_op=pollop)
            if q + NS < len(seq): issue(q + NS)
            if q >= 6 * n and ks == 8 and (j & 1):
                m = j >> 1
                if pend_reduce is not None: reduce_finish(pend_reduce)
                for jj in (j - 1, j):
                    for t in range(4):
                        d = ACC + 16 * jj + 4 * t
                        self.e(f"ds_write_b128 v{RW+t}, v[{d}:{d+3}] offset:{(jj & 1) * 32768}")
                self.e("s_waitcnt lgkmcnt(0)\ns_barrier")
                reduce_issue(m)
                for t in range(4): self.e(f"v_xor_b32 v{RW+t}, 0x10000, v{RW+t}")
                self.e(f"v_xor_b32 v{RRD}, 0x10000, v{RRD}")
                pend_reduce = m
        reduce_finish(pend_reduce)
        self.stamp(7)
        if self.o.get("fixdur"):
            lp = self.lab("fix")
            self.e(f"""{lp}:
s_memrealtime s[{S_TS}:{S_TS+1}]
s_waitcnt lgkmcnt(0)
s_sub_u32 s{S_TS}, s{S_TS}, s{S_NONCE}
s_cmp_lt_u32 s{S_TS}, {self.o['fixdur']}
s_cbranch_scc1 {lp}""")
        if self.diag:
            self.e(f"""s_lshl_b32 s{T0}, s2, 3
s_add_u32 s{T0}, s{T0}, s{S_W}
s_lshl_b32 s{T0}, s{T0}, 7
s_add_u32 s{T0}, s{T0}, {STAMP_BASE}
v_lshlrev_b32 v{V_L16}, 2, v{V_LANE}
s_mov_b32 exec_hi, 0
buffer_store_dword v0, v{V_L16}, s[{SRDWS}:{SRDWS+3}], s{T0} offen""")
            if self.o.get("span"):
                self.e(f"""s_mov_b64 exec, 0xff
v_subrev_u32 v0, s{S_NONCE}, v0
v_max_i32 v0, 0, v0
buffer_atomic_umax v0, v{V_L16}, s[{SRDDBG}:{SRDDBG+3}], 0 offen offset:32""")
        self.e("s_endpgm")

    def kperm(self, dst, rho, t):
        self.e(f"""v_and_b32 v{dst}, 35, v{rho}
v_bfe_u32 v{t}, v{rho}, 2, 2
v_lshl_add_u32 v{dst}, v{t}, 3, v{dst}
v_bfe_u32 v{t}, v{rho}, 4, 1
v_lshl_add_u32 v{dst}, v{t}, 2, v{dst}""")
    def common_srd(self):
        self.srd(SRDWS, P_WS, WS_BYTES); self.srd(SRDDBG, P_DBG, 256); self.srd(SRDOUT, P_OUT, 2048 * 1280); self.srd(SRDX, P_X, 2048 * 1280)
    def first_dmas(self, nd, sts=(0, 1, 2)):
        if 0 in sts: self.e(f"s_mov_b32 s{S_WSLOT}, 0")
        for st in sts:
            for i in range(nd):
                for x in self.dma(i): self.e(x)
            self.e(f"s_mov_b32 s{S_WSLOT}, {((st+1)%3)*SLOT}")
    def late_init(self, kind):
        a, b, c = V_T[0], V_T[1], V_T[2]
        self.common_srd()
        sk = self.lab("non")
        self.e(f"""s_or_b32 s{T0}, s2, s{S_W}
s_cmp_lg_u32 s{T0}, 0
s_cbranch_scc1 {sk}
s_or_b32 s{T0}, s{S_M0}, 1
v_mov_b32 v{a}, s{T0}
s_mov_b64 exec, 1
buffer_store_dword v{a}, off, s[{SRDDBG}:{SRDDBG+3}], 0 sc1
s_mov_b64 exec, -1
{sk}:""")
        self.e(f"""v_lshrrev_b32 v{V_G}, 4, v{V_LANE}
v_and_b32 v{V_I}, 15, v{V_LANE}
v_lshlrev_b32 v{V_L16}, 4, v{V_LANE}
v_lshrrev_b32 v{a}, 1, v{V_I}
v_xor_b32 v{a}, v{a}, v{V_G}
v_lshlrev_b32 v{a}, 4, v{a}
v_lshl_add_u32 v{a}, v{V_I}, 7, v{a}
s_lshl_b32 s{T0}, s{S_TG}, 13
v_add_u32 v{V_X0}, s{T0}, v{a}
v_xor_b32 v{V_X1}, 64, v{V_X0}
s_add_u32 s{T0}, s{S_W}, 1
s_lshl_b32 s{T0}, s{T0}, 11
v_add_u32 v{V_ST0}, s{T0}, v{a}
v_xor_b32 v{V_ST1}, 64, v{V_ST0}
v_lshrrev_b32 v{a}, 2, v{V_LANE}
v_and_b32 v{b}, 3, v{V_LANE}""")
        if kind == "a":
            self.e(f"""v_mul_u32_u24 v{a}, 480, v{a}
s_mul_i32 s{T0}, s{S_H}, 40
s_add_u32 s{T0}, s{T0}, {XREG}
v_add_u32 v{a}, s{T0}, v{a}
v_lshl_add_u32 v{V_W0}, v{b}, 3, v{a}
v_mul_u32_u24 v{c}, 160, v{b}
v_add3_u32 v{V_W1}, v{a}, v{c}, 32
v_cmp_ne_u32 s[{S_M0}:{S_M0+1}], 3, v{b}
v_lshlrev_b32 v{c}, 3, v{V_LANE}
v_cndmask_b32 v{V_W1}, v{c}, v{V_W1}, s[{S_M0}:{S_M0+1}]
v_cndmask_b32 v{V_LSEL}, 0, 1, s[{S_M0}:{S_M0+1}]""")
            self.e(f"v_mov_b32 v{STF[0]}, {hex(ONE2)}\nv_mov_b32 v{STF[0]+1}, {hex(ONE2)}\nv_mov_b32 v{STF[0]+2}, {hex(ONE2)}\nv_mov_b32 v{STF[0]+3}, {hex(ONE2)}")
            sk = self.lab("ones")
            self.e(f"""s_cmp_gt_u32 s{S_W}, 2
s_cbranch_scc1 {sk}
s_mul_i32 s{T0}, s{S_W}, {SLOT}
v_add_u32 v{a}, s{T0}, v{V_L16}
ds_write_b128 v{a}, v[{STF[0]}:{STF[0]+3}]
{sk}:
s_mul_i32 s{T0}, s{S_W}, {5*REC}
s_add_u32 s{T0}, s{T0}, {L_REC + 256}
v_mul_u32_u24 v{a}, {REC}, v{V_LANE}
v_add_u32 v{a}, s{T0}, v{a}
v_mov_b32 v{STF[1]}, 0
v_mov_b32 v{STF[1]+1}, 0
s_mov_b64 exec, 31
ds_write_b64 v{a}, v[{STF[1]}:{STF[1]+1}]
s_mov_b64 exec, -1""")
            nacc = range(ACC, ACC + 80)
        else:
            self.e(f"""v_mul_u32_u24 v{a}, 384, v{a}
v_lshl_add_u32 v{a}, v{b}, 3, v{a}
v_add_u32 v{a}, {XREG}, v{a}
v_bfe_u32 v{c}, v{V_LANE}, 3, 2
s_mul_i32 s{T0}, s{S_H}, 3""")
            for t in range(3):
                self.e(f"""s_add_u32 s{T1}, s{T0}, {t}
s_lshr_b32 s{T2}, s{T1}, 2
s_lshl_b32 s{T2}, s{T2}, 7
s_and_b32 s{T1}, s{T1}, 3
v_xor_b32 v{b}, s{T1}, v{c}
v_lshl_add_u32 v{b}, v{b}, 5, v{a}
v_add_u32 v{V_W0+t}, s{T2}, v{b}""")
            for r in range(4): self.e(f"v_mov_b32 v{V_ONES+r}, {hex(ONE2)}")
            nacc = [ACC + 16 * (j + 1) + r for j in range(4) for r in range(12)] + list(range(V_CS, V_CS + 12))
        for r in list(nacc) + V_SQ: self.e(f"v_mov_b32 v{r}, 0")
        self.e(f"""v_lshrrev_b32 v{a}, 3, v{V_LANE}
v_bfe_u32 v{b}, v{V_LANE}, 4, 2
v_lshlrev_b32 v{b}, 1, v{b}
v_and_b32 v{c}, 7, v{V_LANE}
v_xor_b32 v{b}, v{b}, v{c}
v_lshlrev_b32 v{b}, 4, v{b}
v_mul_u32_u24 v{V_B2}, 1280, v{a}
v_add_u32 v{V_B2}, v{V_B2}, v{b}
v_lshrrev_b32 v{c}, 5, v{V_LANE}
v_mul_u32_u24 v{c}, {16*1280}, v{c}
v_add_u32 v{V_B2L}, v{V_B2}, v{c}
s_lshl_b32 s{T0}, s{S_CT}, 7
s_mul_i32 s{S_B2H}, s{S_W}, {192*1280}
s_add_u32 s{S_B2H}, s{S_B2H}, s{T0}
s_mul_i32 s{S_B2O}, s{S_W}, {80*1280}
s_add_u32 s{S_B2O}, s{S_B2O}, s{T0}
s_mov_b32 s{S_RSLOT}, 0
s_mov_b32 s{T4}, {(-2*SLOT) & 0xffffffff}
s_mov_b32 s{T5}, {SLOT}""")

    def gen(self):
        n = NAME + "_kernel"
        a, b, c, d = V_T
        self.e(f"""s_memrealtime s[{S_M0}:{S_M0+1}]
s_cmp_ge_u32 s2, 256
s_cbranch_scc1 L_exit
s_load_dwordx16 s[32:47], s[0:1], 0
s_load_dwordx2 s[48:49], s[0:1], 64
v_lshrrev_b32 v{a}, 6, v0
v_and_b32 v{V_LANE}, 63, v0
v_readfirstlane_b32 s{S_W}, v{a}
s_and_b32 s{S_XCD}, s2, 7
s_lshr_b32 s{T0}, s2, 3
s_and_b32 s{S_MT}, s{T0}, 7
s_and_b32 s{T1}, s2, 4
s_lshl_b32 s{T1}, s{T1}, 1
s_or_b32 s{S_MT}, s{S_MT}, s{T1}
s_and_b32 s{S_NT}, s2, 3
s_lshl_b32 s{S_NT}, s{S_NT}, 1
s_bfe_u32 s{T1}, s2, 0x10006
s_or_b32 s{S_NT}, s{S_NT}, s{T1}
s_lshr_b32 s{S_TG}, s{S_W}, 2
s_and_b32 s{S_H}, s{S_W}, 3""")
        if self.diag: self.e("v_mov_b32 v0, 0")
        self.e(f"""v_lshrrev_b32 v{a}, 3, v{V_LANE}
s_and_b32 s{T1}, s{S_W}, 1
s_lshl_b32 s{T1}, s{T1}, 2
v_lshrrev_b32 v{b}, 4, v{V_LANE}
v_or_b32 v{b}, s{T1}, v{b}
v_and_b32 v{c}, 7, v{V_LANE}
v_xor_b32 v{b}, v{b}, v{c}
s_lshl_b32 s{T1}, s{S_W}, 3
v_add_u32 v{a}, s{T1}, v{a}
v_mul_u32_u24 v{a}, 2560, v{a}
v_lshl_add_u32 v{V_DMA[0]}, v{b}, 4, v{a}
s_and_b32 s{T1}, s{S_MT}, 7
s_mul_i32 s{SO[0]}, s{T1}, {128*2560}
s_lshr_b32 s{T2}, s{S_MT}, 3
s_mul_i32 s{T2}, s{T2}, 1280
s_add_u32 s{SO[0]}, s{SO[0]}, s{T2}
s_add_u32 s{SO[1]}, s{SO[0]}, {64*2560}
s_mov_b32 s{STEP[0]}, 128
s_lshl_b32 s{T2}, s{S_W}, 10
s_add_u32 s{DD[0]}, s{T2}, 2048
s_add_u32 s{DD[1]}, s{T2}, {2048+8192}
s_add_u32 s{DD[2]}, s{T2}, {XREG}
s_add_u32 s{DD[3]}, s{T2}, {XREG+8192}
s_add_u32 s{DD[4]}, s{T2}, {XREG+16384}
s_add_u32 s{DD[5]}, s{T2}, {XREG+24576}
s_lshl_b32 s{T3}, s{S_W}, 6
s_cmp_ge_u32 s2, 128
s_cbranch_scc1 L_mlp""")
        for i in range(2, 6):
            v = V_DMA[i]
            self.e(f"""v_add_u32 v{a}, s{T3}, v{V_LANE}
v_add_u32 v{a}, {512*(i-2)}, v{a}
v_mul_u32_u24 v{b}, 2185, v{a}
v_lshrrev_b32 v{b}, 16, v{b}
v_mul_u32_u24 v{c}, 30, v{b}
v_sub_u32 v{a}, v{a}, v{c}""")
            self.kperm(c, b, d)
            self.e(f"""v_mul_u32_u24 v{v}, 3840, v{c}
v_mul_u32_u24 v{b}, 26, v{a}
v_lshrrev_b32 v{b}, 8, v{b}
v_mul_u32_u24 v{b}, {1280-160}, v{b}
v_lshl_add_u32 v{a}, v{a}, 4, v{b}
v_add_u32 v{v}, v{v}, v{a}""")
        self.e(f"""s_mul_i32 s{SO[2]}, s{S_NT}, 160
s_mov_b32 s{SO[3]}, s{SO[2]}
s_mov_b32 s{SO[4]}, s{SO[2]}
s_mov_b32 s{SO[5]}, s{SO[2]}
s_mov_b32 s{STEP[2]}, {64*3840}
s_mov_b32 s{STEP[5]}, {64*3840}
s_waitcnt lgkmcnt(0)""")
        self.srd(SRD0, P_X, 2048 * 1280); self.srd(SRD1, P_WQKV, 640 * 3840); self.srd(SRD2, P_WQKV, 640 * 3840)
        self.e(f"""s_cmp_lt_u32 s{S_W}, 6
s_cbranch_scc1 L_a_go
s_mov_b32 s{SRD2}, s{P_X}
s_mov_b32 s{SRD2+1}, s{P_X+1}
s_mov_b32 s{SRD2+2}, {2048*1280}
v_mov_b32 v{V_DMA[5]}, v{V_DMA[0]}
s_mov_b32 s{STEP[5]}, 128
s_mov_b32 s{DD[5]}, 1024
s_sub_u32 s{SO[5]}, s{SO[0]}, {64*2560}
s_cmp_eq_u32 s{T1}, 0
s_cselect_b32 s{SO[5]}, s{SO[0]}, s{SO[5]}
s_cmp_eq_u32 s{S_W}, 7
s_cbranch_scc1 L_a_go
s_mov_b32 s{SO[5]}, s{SO[0]}
s_mov_b32 s{DD[5]}, s{DD[0]}
L_a_go:""")
        self.stamp(0)
        self.first_dmas(6, (0,) if self.o.get('stg',1) else (0,1,2))
        self.e(f"""s_lshr_b32 s{T0}, s2, 3
s_sub_u32 s{T1}, s{T0}, 8
s_lshr_b32 s{T2}, s{T1}, 2
s_add_u32 s{T2}, s{T2}, 8
s_and_b32 s{T1}, s{T1}, 3
s_lshl_b32 s{T1}, s{T1}, 2
s_cmp_lt_u32 s{T0}, 8
s_cselect_b32 s{S_CT}, s{T0}, s{T2}
s_cselect_b32 s{S_RT0}, 0, s{T1}
s_lshl_b32 s{T0}, s{S_XCD}, 4
s_add_u32 s{S_RT0}, s{S_RT0}, s{T0}""")
        self.late_init("a")
        if self.o.get('stg',1): self.first_dmas(6, (1,2))
        self.e(f"s_cmp_eq_u32 s{S_TG}, 1\ns_cbranch_scc1 L_a1")
        self.main_loop("a0"); self.attn_pre("a0")
        self.e("s_branch L_aepi\nL_a1:")
        self.main_loop("a1"); self.attn_pre("a1")
        self.e("L_aepi:")
        self.attn_epi()
        self.publish(1)
        self.p2(self.n_attn)
        self.e("L_mlp:")
        for i in range(2, 5):
            v = V_DMA[i]
            self.e(f"""v_add_u32 v{a}, s{T3}, v{V_LANE}
v_add_u32 v{a}, {512*(i-2)}, v{a}
v_mul_u32_u24 v{b}, 2731, v{a}
v_lshrrev_b32 v{b}, 16, v{b}
v_mul_u32_u24 v{c}, 24, v{b}
v_sub_u32 v{a}, v{a}, v{c}""")
            self.kperm(c, b, d)
            self.e(f"""v_mul_u32_u24 v{v}, 3072, v{c}
v_and_b32 v{b}, 6, v{b}
v_xor_b32 v{a}, v{a}, v{b}
v_lshl_add_u32 v{v}, v{a}, 4, v{v}""")
        self.e(f"""v_mov_b32 v{V_DMA[5]}, 0
s_mul_i32 s{SO[2]}, s{S_NT}, 384
s_mov_b32 s{SO[3]}, s{SO[2]}
s_mov_b32 s{SO[4]}, s{SO[2]}
s_mov_b32 s{STEP[2]}, {64*3072}
s_waitcnt lgkmcnt(0)""")
        self.srd(SRD0, P_X, 2048 * 1280); self.srd(SRD1, P_W1, 640 * 3072); self.srd(SRD2, P_W1, 640 * 3072)
        self.stamp(0)
        self.first_dmas(5, (0,) if self.o.get('stg',1) else (0,1,2))
        self.e(f"""s_lshr_b32 s{T0}, s2, 3
s_and_b32 s{S_CT}, s{T0}, 7
s_bfe_u32 s{T1}, s{T0}, 0x10003
s_mul_i32 s{T1}, s{T1}, 6
s_add_u32 s{T1}, s{T1}, 4
s_lshl_b32 s{T0}, s{S_XCD}, 4
s_add_u32 s{S_RT0}, s{T1}, s{T0}""")
        self.late_init("m")
        if self.o.get('stg',1): self.first_dmas(5, (1,2))
        if self.o.get("dmamode", 0) == 2:
            self.e(f"s_cmp_eq_u32 s{S_TG}, 1\ns_cbranch_scc1 L_m1")
            self.main_loop("m0")
            self.e("s_branch L_mepi\nL_m1:")
            self.main_loop("m1")
            self.e("L_mepi:")
        else:
            self.main_loop("m0")
        self.mlp_epi()
        self.publish(0)
        self.p2(self.n_mlp)
        self.e("L_exit:\ns_endpgm")
        lines, nn = hz.fix(self.L)
        hdr = open("cdna_kernels/" + NAME + ".s.ref").read().split("; Override")[0]
        s = hdr + f"; @launch grid=(256,1,1) block=(512,1,1) lds=163840\n" + TARGET + head(n) + "\n".join(lines) + "\n" + kd(n, 256, 96, 256)
        return s, nn

if __name__ == "__main__":
    diag = "--diag" in sys.argv
    out = [a for a in sys.argv[1:] if not a.startswith("--")]
    opt = {}
    for a in sys.argv[1:]:
        if a.startswith("--") and "=" in a:
            k, v = a[2:].split("="); opt[k] = int(v)
    s, nn = G(diag=diag, **opt).gen()
    open(out[0] if out else "cdna_kernels/" + NAME + ".s", "w").write(s)
    print("nops inserted:", nn, "lines:", s.count("\n"))
```

```python
import sys, math, struct
from asmlib import NAME, kd, head, TARGET
import hz

def f2u(x): return struct.unpack("<I", struct.pack("<f", x))[0]
SPIN = 0x40000
SLOT = 49152; XREG = 18432
S1 = 32768; S2 = 147456
L_STAT = S2; L_CS = S2 + 1280; L_CP = S2 + 2304; L_DUMMY = L_CP; L_REC = S2 + 4352; REC = 272
A2_BLK = 9216; A2_RT = 8 * A2_BLK
FLAG_BASE = 128 * A2_RT
ROWT = FLAG_BASE + 65536; COLT = ROWT + 65536
STAMP_BASE = COLT + 131072
WS_BYTES = STAMP_BASE + 256 * 8 * 256
OOB = 0x40000000
ONE2 = 0x3f803f80; NEGBIG = f2u(-1.0e30); LOG2E = math.log2(math.e)
DPP = "row_mask:0xf bank_mask:0xf"

SRD0, SRD1, SRD2, SRDWS, SRDDBG, SRDOUT, SRDC = 4, 8, 12, 16, 20, 24, 28
P_X, P_WQKV, P_WO, P_W1, P_W2, P_OUT, P_DBG, P_WS = 32, 34, 36, 40, 42, 44, 46, 48
SRDWO, SRDW2, SRDPF = 36, 40, 96
SOU = [50, 51, 52, 52, 52, 53]; STEP = [54, 54, 55, 55, 55, 56]; DD = [57, 58, 59, 60, 61, 62]
S_W, S_MT, S_NT, S_TG, S_H, S_CT, S_RT0, S_NONCE, S_B2H, S_B2O, S_XCD = 63, 64, 65, 66, 67, 68, 69, 70, 71, 72, 73
S_RA, S_RB, S_RC, S_ROWS, S_COLS, S_A2, S_DELTA, S_FL = 74, 75, 76, 77, 78, 79, 80, 87
T0, T1, T2, T3, T4, TF = 81, 82, 83, 84, 85, 86
S_M0, S_M1, S_TS = 88, 90, 92
V_LANE, V_L16, V_B2, V_B2L, V_G, V_I, V_TRB = 1, 2, 3, 4, 5, 6, 7
V_X0, V_X1, V_W0, V_W1, V_W2 = 8, 9, 12, 14, 173
HI = {V_X0: 10, V_X1: 11, V_W0: 13, V_W1: 15, V_W2: 174}
AR = 8
V_FA, V_FD = 12, 13
ACC = 16; SETA, SETB = 96, 132
V_DMA = [168, 168, 169, 170, 171, 172]
BHK = [176, 192, 208, 224, 240, 160]
RX = 176
V_NON = 181
RU = 182
RS = 192
CW = 198
CA = 210
CD = 214
V_CPW, V_CPR, V_CST, V_RST = 218, 219, 220, 221
V_CON, V_CA, V_CB, V_CK = 222, 223, 224, 225
CC = 226
V_PF, V_PFD = 234, 235
TA, TB, TC, TD = 236, 237, 238, 239
MC, MP, MP0, MB, VC = 240, 244, 248, 252, 254

def L(s): return [x.strip() for x in s.strip("\n").split("\n") if x.strip()]
def mfma(d, a, b, c=None):
    c = f"v[{d}:{d+3}]" if c is None else (c if isinstance(c, str) else f"v[{c}:{c+3}]")
    return f"v_mfma_f32_16x16x32_bf16 v[{d}:{d+3}], v[{a}:{a+3}], v[{b}:{b+3}], {c}"
def srd(r): return f"s[{r}:{r+3}]"
def merge(main, groups, start, step):
    out = []; g = list(groups); nxt = start
    for i, x in enumerate(main):
        out.append(x)
        while g and i >= nxt:
            out += g.pop(0); nxt += step
    for x in g: out += x
    return out

class G:
    def __init__(self, diag=False, **opt):
        self.L = []; self.slow = []; self.diag = diag; self.o = opt; self.uid = 0
    def e(self, s):
        self.L += L(s) if isinstance(s, str) else list(s)
    def lab(self, p):
        self.uid += 1; return f"L_{p}_{self.uid}"
    def mksrd(self, r, ptr, nbytes):
        self.e(f"s_mov_b32 s{r}, s{ptr}\ns_mov_b32 s{r+1}, s{ptr+1}\ns_mov_b32 s{r+2}, {nbytes}\ns_mov_b32 s{r+3}, 0x20000")
    def stamp(self, idx):
        if not self.diag: return []
        return L(f"""s_memrealtime s[{S_TS}:{S_TS+1}]
s_memtime s[{S_TS+2}:{S_TS+3}]
s_waitcnt lgkmcnt(0)
v_writelane_b32 v0, s{S_TS}, {idx}
v_writelane_b32 v0, s{S_TS+2}, {idx+16}""")
    def resolve(self, lines):
        out = []; vm = lg = 0; tv = {}; tl = {}; saved = {}
        for x in lines:
            if x.startswith("@save"): saved[x.split()[1]] = (vm, lg, dict(tv), dict(tl)); continue
            if x.startswith("@load"):
                vm, lg, tv, tl = saved[x.split()[1]]; tv = dict(tv); tl = dict(tl); continue
            if x.startswith("@x "): out.append(x[3:]); continue
            if x.startswith("@wv"):
                p = x.split(None, 2); out.append(f"s_waitcnt vmcnt({min(63, vm - tv[p[1]])}) {p[2] if len(p) > 2 else ''}".strip()); continue
            if x.startswith("@wl"):
                p = x.split(); out.append(f"s_waitcnt lgkmcnt({min(15, lg - tl[p[1]])})"); continue
            tag = None
            if x.startswith("@t "): _, tag, x = x.split(None, 2)
            if x.startswith("buffer_"):
                vm += 1
                if tag: tv[tag] = vm
            elif x.startswith("ds_"):
                lg += 1
                if tag: tl[tag] = lg
            out.append(x)
        return [x if x.endswith(":") else "  " + x for x in out]
    def spin(self, check, reload_):
        sl, bk, lp = self.lab("slow"), self.lab("back"), self.lab("lp")
        self.slow += [f"{sl}:", f"s_mov_b32 s{TF}, 0", f"{lp}:", f"s_add_u32 s{TF}, s{TF}, 1", f"s_cmp_gt_u32 s{TF}, {SPIN}",
                      f"s_cbranch_scc1 {bk}", "s_sleep 1"] + ["@x " + x for x in reload_] + ["s_waitcnt vmcnt(0)"] + check + \
                     [f"s_cbranch_vccnz {lp}", f"s_branch {bk}"]
        return check + [f"s_cbranch_vccnz {sl}", f"{bk}:"]

    def u_dma(self, i, st):
        r = [SRD0, SRD0, SRD1, SRD1, SRD1, SRD2][i]
        o = [f"s_add_u32 m0, s{DD[i]}, {(st % 3) * SLOT}",
             f"@t s{st} buffer_load_dwordx4 v{V_DMA[i]}, {srd(r)}, s{SOU[i]} offen lds"]
        if i in (0, 1, 4, 5) and st < 9: o.append(f"s_add_u32 s{SOU[i]}, s{SOU[i]}, s{STEP[i]}")
        return o
    def stage(self, nd, st): return [self.u_dma(i, st) for i in range(nd)]
    def lds(self, reg, off): return f"v{reg} offset:{off}" if off < 65536 else f"v{HI[reg]} offset:{off-65536}"
    def p1_mfmas(self, kind, S, final=False):
        o = []
        if kind == "m":
            for j in range(1, 5):
                for t in range(3): o.append(mfma(ACC + 16 * j + 4 * t, S + 20 + 4 * t, S + 4 * j))
            return o
        jf = [(j, f) for j in (range(5) if kind == "a0" else range(1, 5)) for f in range(4) if (j, f) != (0, 0)]
        if final and kind == "a0": jf = [(4, 1), (4, 2), (4, 3)] + [x for x in jf if x not in ((4, 1), (4, 2), (4, 3))]
        for j, f in jf:
            w, x = S + 20 + 4 * f, S + 4 * j
            o.append(mfma(ACC + 16 * j + 4 * f, *((x, w) if f == 2 else (w, x))))
        return o
    def u_reads(self, kind, S, st, kk):
        xs = []; ws = []; sb = (st % 3) * SLOT; vx = [V_X0, V_X1][kk]
        for j in (range(5) if kind == "a0" else range(1, 5)):
            xs.append(f"ds_read_b128 v[{S+4*j}:{S+4*j+3}], {self.lds(vx, sb + 2048*j)}")
        for f in range(3 if kind == "m" else 4):
            for hf in range(2):
                r = S + 20 + 4 * f + 2 * hf; row = hf * 16 + kk * 32
                if kind == "m": a = self.lds([V_W0, V_W1, V_W2][f], sb + row * 384)
                elif f < 3: a = self.lds(V_W0, sb + row * 480 + 160 * f)
                else: a = self.lds(V_W1, sb + row * 480)
                ws.append(f"ds_read_b64_tr_b16 v[{r}:{r+1}], {a}")
        return [xs[0]] + ws + xs[1:]
    def u_phase(self, mf, reads, fill, dm, prios, last):
        reads = list(reads); n = len(mf)
        span = (n * 3) // 4 - 1 if last else n - 2
        dpos = {}
        for k in range(len(dm)): dpos.setdefault((k * span) // len(dm), []).append(dm[k])
        pend = []
        for idx, m in enumerate(mf):
            if prios and idx == 0: self.e(f"s_setprio {prios[0]}")
            if prios and idx == n // 2: self.e(f"s_setprio {prios[1]}")
            self.e(m); self.e(pend); pend = []
            if reads: self.e(reads.pop(0))
            budget = 2
            while fill and budget > 0 and not (last and idx > span):
                g = fill.pop(0); self.e(g); budget -= max(1, sum(1 for x in g if x.startswith(("v_", "ds_", "@t"))))
            ds = dpos.get(idx, [])
            for q, lines in enumerate(ds):
                bi = [i for i, x in enumerate(lines) if "buffer_" in x][0]
                if q == len(ds) - 1 and idx < n - 1: self.e(lines[:bi]); pend = lines[bi:]
                else: self.e(lines)
        assert not pend and not reads

    def wsum(self, r, t):
        return [[f"v_add_f32_dpp v{r}, v{r}, v{r} {k} {DPP}", "s_nop 0"] for k in ("quad_perm:[1,0,3,2]", "quad_perm:[2,3,0,1]", "row_half_mirror", "row_mirror")] + self.gsum(r, t)
    def gsum(self, r, t):
        return [[x] for x in L(f"""v_mov_b32 v{t}, v{r}
v_permlane16_swap_b32 v{r}, v{t}
v_add_f32 v{r}, v{r}, v{t}
v_mov_b32 v{t}, v{r}
v_permlane32_swap_b32 v{r}, v{t}
v_add_f32 v{r}, v{r}, v{t}""")]
    def prod1(self):
        s, q, t = RS, RS + 2, RS + 4
        o = [[mfma(CD, CA, CW, "0")], [mfma(CD, CA, CW + 4)], [mfma(CD, CA, CW + 8)]]
        for k in range(5): o += [[f"v_lshlrev_b32 v{RU+2*k}, 16, v{RX+k}"], [f"v_and_b32 v{RU+2*k+1}, 0xffff0000, v{RX+k}"]]
        o += [[f"v_add_f32 v{s}, v{RU}, v{RU+1}"], [f"v_add_f32 v{t}, v{RU+2}, v{RU+3}"]]
        for k in range(4, 10): o.append([f"v_add_f32 v{[s, t][k & 1]}, v{[s, t][k & 1]}, v{RU+k}"])
        for r in range(4): o.append([f"v_add_f32_dpp v{CD+r}, v{CD+r}, v{CD+r} row_ror:8 {DPP}"])
        o += [[f"v_add_f32 v{s}, v{s}, v{t}"], [f"ds_write_b128 v{V_CPW}, v[{CD}:{CD+3}]"]]
        o += self.wsum(s, t)
        o.append([f"v_mul_f32 v{s}, {hex(f2u(1.0/640))}, v{s}"])
        for k in range(10): o.append([f"v_sub_f32 v{RU+k}, v{RU+k}, v{s}"])
        o += [[f"v_mul_f32 v{q}, v{RU}, v{RU}"], [f"v_mul_f32 v{t}, v{RU+1}, v{RU+1}"]]
        for k in range(2, 10): o.append([f"v_fmac_f32 v{[q, t][k & 1]}, v{RU+k}, v{RU+k}"])
        o.append([f"v_add_f32 v{q}, v{q}, v{t}"])
        o += self.wsum(q, t)
        o += [[x] for x in L(f"""v_mul_f32 v{q}, {hex(f2u(1.0/640))}, v{q}
v_cvt_pk_bf16_f32 v{t}, v{s}, v{q}
v_lshlrev_b32 v{s}, 16, v{t}
v_and_b32 v{q}, 0xffff0000, v{t}
v_xor_b32 v{s}, 0x80000000, v{s}
v_add_f32 v{q}, {hex(f2u(1e-5))}, v{q}
v_cvt_pk_bf16_f32 v{t}, v{q}, v{q}
v_and_b32 v{q}, 0xffff0000, v{t}
v_sqrt_f32 v{q}, v{q}
v_cvt_pk_bf16_f32 v{t}, v{q}, v{q}
v_and_b32 v{q}, 0xffff0000, v{t}
v_rcp_f32 v{q}, v{q}""")]
        return o
    def prod2(self):
        ld = f"buffer_load_dword v{V_NON}, off, {srd(SRDDBG)}, 0 sc1"
        a = [[f"ds_read_b32 v{CD}, v{V_CPR}"],
             self.spin([f"v_cmp_eq_u32 vcc, 0, v{V_NON}"], [ld]) + [f"v_readfirstlane_b32 s{S_NONCE}, v{V_NON}"]]
        b = [[f"v_add_f32_dpp v{CD}, v{CD}, v{CD} row_ror:8 {DPP}"], [f"v_mov_b32 v{CD+1}, v{V_NON}"]] + self.gsum(CD, CD + 2)
        b += [[f"buffer_store_dwordx2 v[{CD}:{CD+1}], v{V_CST}, {srd(SRDWS)}, s{S_COLS} offen sc1"]]
        c = [[f"v_mov_b32 v{RS+1}, v{V_NON}"], [f"v_mov_b32 v{RS+3}, v{V_NON}"],
             [f"buffer_store_dwordx4 v[{RS}:{RS+3}], v{V_RST}, {srd(SRDWS)}, s{S_ROWS} offen sc1"]]
        return a, b, c
    def cons_loads(self):
        return [f"buffer_load_dwordx4 v[{CC}:{CC+3}], v{V_CON}, {srd(SRDWS)}, 0 offen sc1",
                f"buffer_load_dwordx4 v[{CC+4}:{CC+7}], v{V_CON}, {srd(SRDWS)}, 0 offen offset:16 sc1"]
    def cons(self):
        chk = L(f"""v_cmp_ne_u32 vcc, s{S_NONCE}, v{CC+1}
v_cmp_ne_u32 s[{S_M0}:{S_M0+1}], s{S_NONCE}, v{CC+3}
v_cmp_ne_u32 s[{S_M1}:{S_M1+1}], s{S_NONCE}, v{CC+5}
s_or_b64 vcc, vcc, s[{S_M0}:{S_M0+1}]
v_cmp_ne_u32 s[{S_M0}:{S_M0+1}], s{S_NONCE}, v{CC+7}
s_or_b64 vcc, vcc, s[{S_M1}:{S_M1+1}]
s_or_b64 vcc, vcc, s[{S_M0}:{S_M0+1}]""")
        return [["@wv con"] + self.spin(chk, self.cons_loads()),
                [f"v_add_f32 v{CC+4}, v{CC+4}, v{CC+6}"], [f"ds_write_b32 v{V_CB}, v{CC+2}"], [f"v_add_f32 v{CC+4}, v{CC+4}, v{CC+2}"],
                [f"v_fmac_f32 v{CC}, v{V_CK}, v{CC+4}"], [f"ds_write_b32 v{V_CA}, v{CC}"]]

    def b2_dma(self, n, tag=None):
        if n < 16: r, base, ro, v = SRDW2, S_B2H, 48 * (n >> 2) + 8 * (n & 3), V_B2
        elif n < 24:
            m = n - 16; r, base, ro, v = SRDW2, S_B2H, 96 * (m >> 2) + 32 + 48 * (m & 1) + 8 * ((m >> 1) & 1), V_B2
        elif n < 32:
            m = n - 24; r, base, ro, v = SRDWO, S_B2O, 40 * (m >> 2) + 20 * (m & 1) + 8 * ((m >> 1) & 1), V_B2
        else: r, base, ro, v = SRDWO, S_B2O, 16 + 40 * (n - 32), V_B2L
        reg, off = self.b2_place(n >> 1)
        return [f"s_add_u32 m0, s{reg}, {off + 1024 * (n & 1)}", f"s_add_u32 s{TF}, s{base}, {ro*1280}",
                f"@t h{n>>1} buffer_load_dwordx4 v{v}, {srd(r)}, s{TF} offen lds"]
    def b2_place(self, hh):
        k = hh % 8
        return (S_RA, 2048 * k) if k < 3 else (S_RB, 2048 * (k - 3)) if k < 6 else (S_RC, 2048 * (k - 6))
    def b2_read(self, halves):
        reg = self.b2_place(halves[0])[0]
        o = [[f"@wv h{halves[-1]}", f"v_add_u32 v{AR}, s{reg}, v{V_TRB}", f"v_xor_b32 v{AR+1}, 32, v{AR}"],
             [f"v_xor_b32 v{AR+2}, 64, v{AR}", f"v_xor_b32 v{AR+3}, 0x60, v{AR}"]]
        for hh in halves:
            assert self.b2_place(hh)[0] == reg
            off = self.b2_place(hh)[1]; base = BHK[(hh >> 1) % 6]
            for t in range(4):
                r = base + 4 * t + 2 * (hh & 1)
                o.append([f"@t r{hh} ds_read_b64_tr_b16 v[{r}:{r+1}], v{AR+t} offset:{off}"])
                if hh == 16: o.append([f"@t r{hh} ds_read_b64_tr_b16 v[{r+2}:{r+3}], v{AR+t} offset:{off}"])
        return o
    def b2_refill(self, halves):
        o = []
        for hh in halves:
            for n in (2 * hh, 2 * hh + 1):
                o.append(([f"@wl r{hh-8}"] if n & 1 == 0 else []) + self.b2_dma(n))
        return o

    QA, CS, VA = 96, 106, [156, 120, 132, 140, 148]
    def stat_reads(self, kind, which):
        t0, t1 = 14, 15
        if kind == "m":
            o = [L(f"s_lshl_b32 s{TF}, s{S_TG}, 8\ns_add_u32 s{TF}, s{TF}, {L_STAT+64}\nv_lshl_add_u32 v{t0}, v{V_I}, 2, s{TF}"),
                 L(f"s_lshl_b32 s{TF}, s{S_H}, 8\ns_add_u32 s{TF}, s{TF}, {L_CS}\nv_lshl_add_u32 v{t1}, v{V_G}, 4, s{TF}")]
            for j in range(4): o.append([f"ds_read2_b32 v[{96+2*j}:{97+2*j}], v{t0} offset0:{16*j} offset1:{160+16*j}"])
            for t in range(3): o.append([f"@t st ds_read_b128 v[{104+4*t}:{107+4*t}], v{t1} offset:{64*t}"])
            return o
        QA, CS, VA = self.QA, self.CS, self.VA
        def va(j): return [[f"ds_read_b128 v[{VA[j]}:{VA[j]+3}], v{t1} offset:{64*j}"], [f"@t va{j} ds_read_b128 v[{VA[j]+4}:{VA[j]+7}], v{t1} offset:{640+64*j}"]]
        if which == 0:
            o = [L(f"s_lshl_b32 s{TF}, s{S_H}, 8\ns_add_u32 s{TF}, s{TF}, {L_CS}\nv_lshl_add_u32 v{t0}, v{V_G}, 4, s{TF}\nv_lshl_add_u32 v{t1}, v{V_I}, 2, s{TF}")]
            o += [[f"ds_read_b128 v[{CS}:{CS+3}], v{t0}"], [f"ds_read_b128 v[{CS+4}:{CS+7}], v{t0} offset:64"],
                  [f"ds_read_b128 v[{CS+8}:{CS+11}], v{t0} offset:192"], [f"ds_read_b32 v{CS+12}, v{t1} offset:128"]]
            o += [L(f"s_lshl_b32 s{TF}, s{S_TG}, 8\ns_add_u32 s{TF}, s{TF}, {L_STAT}\nv_lshl_add_u32 v{t0}, v{V_I}, 2, s{TF}\nv_lshl_add_u32 v{t1}, v{V_G}, 4, s{TF}")]
            for j in range(5): o.append([f"ds_read2_b32 v[{QA+2*j}:{QA+2*j+1}], v{t0} offset0:{16*j} offset1:{160+16*j}"])
            return o + va(1)
        return va(2) + va(3) + va(4) + va(0)

    def main_loop(self, kind):
        nd = 5 if kind == "m" else 6; o = self.o
        P = (lambda a, b: (a, b)) if o.get("prio", 1) else (lambda a, b: None)
        self.e("@load pro\n@wv s0 lgkmcnt(0)\ns_barrier"); self.e(self.stamp(1))
        self.e(self.u_reads(kind, SETA, 0, 0))
        fill = []
        p2a, p2b, p2c = self.prod2()
        cit = o.get("cit", 8)
        for it in range(10):
            if it == 0: dm = [[f"buffer_load_dword v{V_NON}, off, {srd(SRDDBG)}, 0 sc1"]] + self.stage(nd, 2)
            elif it <= 7: dm = self.stage(nd, it + 2)
            else: dm = [self.b2_dma(6 * (it - 8) + n) for n in range(6)]
            cl = self.cons_loads(); cl = [[cl[0]], ["@t con " + cl[1]]]
            if it == cit == 8: dm = cl + dm
            if it == cit == 7: dm = dm + cl
            if o.get("nodma") and 0 < it < 8: dm = [[f"@t s{it+2} buffer_load_dword v{V_PFD}, off, {srd(SRDDBG)}, 0"]]
            if it == 1: fill += self.prod1()
            if it == 2: fill = p2a + fill
            if it > 0:
                if o.get("its"): self.e(f"s_memtime s[{S_TS+2}:{S_TS+3}]")
                self.e(f"@wv s{it} lgkmcnt(0)\ns_barrier")
                if o.get("its"): self.e(f"s_memtime s[{S_TS}:{S_TS+1}]\nv_writelane_b32 v0, s{S_TS+2}, {48+it}")
                h = (len(dm) * 4 + 3) // 7
                self.u_phase(self.p1_mfmas(kind, SETB), self.u_reads(kind, SETA, it, 0), fill, dm[:h], P(3, 2), False)
                dm = dm[h:]
            self.e("s_waitcnt lgkmcnt(0)")
            if o.get("its") and it: self.e(f"v_writelane_b32 v0, s{S_TS}, {32+it}")
            if it == 2: fill = p2b + fill + p2c
            if it == 9: assert not fill; fill = self.cons()
            self.u_phase(self.p1_mfmas(kind, SETA), self.u_reads(kind, SETB, it, 1), fill, dm, P(1, 0), True)
            if it == 1: assert not any("ds_write" in x for g in fill for x in g)
        for g in fill: self.e(g)
        self.e("s_waitcnt lgkmcnt(0)\ns_barrier")
        fill = self.stat_reads(kind, 0)
        if kind == "a0":
            hw = [L(f"s_mul_i32 s{TF}, s{S_H}, 3072\ns_add_u32 s{TF}, s{TF}, {S1}\nv_add_u32 v13, s{TF}, v{V_L16}")]
            hw += [[f"ds_write_b128 v13, v[{ACC+64+4*f}:{ACC+67+4*f}] offset:{1024*(f-1)}", "s_nop 0"] for f in (1, 2, 3)]
            fill = fill + hw
        fill += self.b2_read([0, 1, 2])
        self.u_phase(self.p1_mfmas(kind, SETB, True), [], fill, [self.b2_dma(12 + i) for i in range(4)], P(1, 0), False)
        for g in fill: self.e(g)
        if kind != "m":
            for g in self.stat_reads(kind, 1): self.e(g)
            if kind == "a0": self.e("s_waitcnt lgkmcnt(0)\ns_barrier")
            else:
                self.e(f"s_barrier\ns_mul_i32 s{TF}, s{S_H}, 3072\ns_add_u32 s{TF}, s{TF}, {S1}\nv_add_u32 v13, s{TF}, v{V_L16}")
                for f in (1, 2, 3): self.e(f"@t halo ds_read_b128 v[{ACC+4*f}:{ACC+4*f+3}], v13 offset:{1024*(f-1)}")
        self.e(self.stamp(2))

    def flag_setup(self):
        return L(f"""s_lshl_b32 s{TF}, s{S_XCD}, 4
s_add_u32 s{TF}, s{TF}, s{S_W}
s_lshl_b32 s{TF}, s{TF}, 7
v_and_b32 v{V_FA}, 1, v{V_LANE}
v_lshlrev_b32 v{V_FA}, 10, v{V_FA}
v_add_u32 v{V_FA}, s{TF}, v{V_FA}""")
    def flag_load(self): return f"buffer_load_dword v{V_FD}, v{V_FA}, {srd(SRDWS)}, s{S_FL} offen sc1"
    def flag_issue(self, typ): return [f"s_mov_b32 s{S_FL}, {FLAG_BASE + typ*16384}", f"@t fl{typ} " + self.flag_load()]
    def flag_check(self, typ): return [f"@wv fl{typ}"] + self.spin([f"v_cmp_ne_u32 vcc, s{S_NONCE}, v{V_FD}"], [self.flag_load()])
    def publish(self, typ):
        sk = self.lab("nofl")
        return L(f"""@wv st
s_barrier
s_cmp_lg_u32 s{S_W}, 0
s_cbranch_scc1 {sk}
s_lshl_b32 s{T0}, s{S_MT}, 3
s_add_u32 s{T0}, s{T0}, s{S_NT}
s_lshl_b32 s{T0}, s{T0}, 7
s_add_u32 s{T0}, s{T0}, {FLAG_BASE + typ*16384}
v_mov_b32 v14, s{S_NONCE}
s_mov_b64 exec, 1
@x buffer_store_dword v14, off, {srd(SRDWS)}, s{T0} sc1
s_mov_b64 exec, -1
{sk}:""") + self.stamp(4)

    def attn_epi(self):
        QA, CS, VA = self.QA, self.CS, self.VA
        VOP, ON = 164, 128
        t0, t1, t2 = 174, 175, 255
        m = L(f"""s_mul_i32 s{T0}, s{S_W}, {5*REC}
s_add_u32 s{T0}, s{T0}, {L_REC}
v_lshlrev_b32 v{t0}, 6, v{V_G}
v_lshl_add_u32 v{t0}, v{V_I}, 3, v{t0}
v_add_u32 v{t1}, {L_DUMMY}, v{t0}
v_add_u32 v{t0}, s{T0}, v{t0}
s_mov_b32 s{S_M0}, 0xffff
s_mov_b32 s{S_M0+1}, 0xffff
v_cndmask_b32 v{t0}, v{t1}, v{t0}, s[{S_M0}:{S_M0+1}]
v_lshl_add_u32 v{t1}, v{V_I}, 3, s{T0}
s_add_u32 s{T0}, s{T0}, 256
v_mov_b32 v{t2}, s{T0}
s_mov_b32 s{S_M0}, 0xffff0000
s_mov_b32 s{S_M0+1}, 0
v_cndmask_b32 v{t1}, v{t2}, v{t1}, s[{S_M0}:{S_M0+1}]""")
        for r in range(4): m.append(f"v_mov_b32 v{ON+r}, {hex(ONE2)}")
        for j in (1, 2, 3, 4, 0):
            A = ACC + 16 * j
            m.append(f"@wl va{j}" if j else "@wl halo")
            for f, cs in ((3, CS + 8), (1, CS + 4), (0, CS)):
                if j == 0 and f == 0: continue
                for r in range(4): m.append(f"v_fmac_f32 v{A+4*f+r}, v{QA+2*j}, v{cs+r}")
                for r in range(4): m.append(f"v_mul_f32 v{A+4*f+r}, v{QA+2*j+1}, v{A+4*f+r}")
            m += L(f"""v_cvt_pk_bf16_f32 v{A+4}, v{A+4}, v{A+5}
v_cvt_pk_bf16_f32 v{A+5}, v{A+6}, v{A+7}
v_cvt_pk_bf16_f32 v{A+6}, v{A+12}, v{A+13}
v_cvt_pk_bf16_f32 v{A+7}, v{A+14}, v{A+15}
ds_write_b64 v{t0}, v[{A+6}:{A+7}] offset:{REC*j}""")
            if j:
                m += L(f"v_cvt_pk_bf16_f32 v{A}, v{A}, v{A+1}\nv_cvt_pk_bf16_f32 v{A+1}, v{A+2}, v{A+3}\n@t ql{j} ds_read_b64 v[{A+2}:{A+3}], v{t1} offset:{REC*j}")
            for r in range(4): m.append(f"v_fmac_f32 v{A+8+r}, v{VA[j]+r}, v{CS+12}")
            for r in range(4): m.append(f"v_mul_f32 v{A+8+r}, v{VA[j]+4+r}, v{A+8+r}")
            m += L(f"v_cvt_pk_bf16_f32 v{VOP+2*j}, v{A+8}, v{A+9}\nv_cvt_pk_bf16_f32 v{VOP+2*j+1}, v{A+10}, v{A+11}")
            if j >= 2 or j == 0:
                jj = j - 1 if j else 4
                B = ACC + 16 * jj
                m += [f"@wl ql{jj}", mfma(B + 8, B + 4, B, MC)]
                if jj >= 2: m.append(mfma(B + 12, B - 12, B, MP))
        m.append(mfma(ACC + 16 + 12, ACC + 4, ACC + 16, MP0))
        f1 = self.b2_refill([8, 9, 10]) + self.b2_read([3, 4, 5]) + self.b2_refill([11, 12, 13])
        self.e(merge(m, f1, 8, self.o.get("fs1", 8)))
        self.e(self.stamp(11))
        VL, MX, OL, RR, RL, D = 96, 112, 116, 120, 124, 132
        m = L(f"""v_lshrrev_b32 v{t0}, 2, v{V_LANE}
v_lshlrev_b32 v{t0}, 3, v{t0}
v_add_u32 v{t0}, s{T0}, v{t0}
v_subrev_u32 v{t0}, 0x80, v{t0}""")
        for j in range(1, 5):
            k = 0x11111111 << (j - 1)
            m += L(f"""s_mov_b32 s{S_M0}, {hex(k)}
s_mov_b32 s{S_M0+1}, {hex(k)}
v_cndmask_b32 v{t1}, v{t2}, v{t0}, s[{S_M0}:{S_M0+1}]
ds_read_b64_tr_b16 v[{VL+4*(j-1)}:{VL+4*(j-1)+1}], v{t1} offset:{REC*(j-1)}
@t vl ds_read_b64_tr_b16 v[{VL+4*(j-1)+2}:{VL+4*(j-1)+3}], v{t1} offset:{REC*j}""")
        for j in (2, 3, 4, 1):
            A = ACC + 16 * j
            for r in range(4): m.append(f"v_max_f32 v{A+8+r}, v{A+8+r}, v{A+12+r}")
            m += L(f"v_max3_f32 v{MX+j-1}, v{A+8}, v{A+9}, v{A+10}\nv_max_f32 v{MX+j-1}, v{MX+j-1}, v{A+11}")
        m0, m1, m2, m3 = MX, MX + 1, MX + 2, MX + 3
        red = L(f"""v_permlane16_swap_b32 v{m2}, v{m3}
v_permlane16_swap_b32 v{m0}, v{m1}
v_max_f32 v{m2}, v{m2}, v{m3}
v_max_f32 v{m0}, v{m0}, v{m1}
v_permlane32_swap_b32 v{m0}, v{m2}
v_max_f32 v{m0}, v{m0}, v{m2}
v_mul_f32 v{m0}, v{m0}, v{VC}
v_mov_b32 v{m2}, v{m0}
v_permlane32_swap_b32 v{m0}, v{m2}
v_mov_b32 v{m1}, v{m0}
v_mov_b32 v{m3}, v{m2}
v_permlane16_swap_b32 v{m0}, v{m1}
v_permlane16_swap_b32 v{m2}, v{m3}""")
        adr = L(f"""v_and_b32 v{t0}, 31, v{V_LANE}
v_lshlrev_b32 v{t0}, 4, v{t0}
v_lshrrev_b32 v{t1}, 5, v{V_LANE}
s_mov_b32 s{T0}, {A2_RT}
v_mad_u32_u24 v{t0}, v{t1}, s{T0}, v{t0}
v_lshlrev_b32 v{t1}, 4, v{V_I}
v_mad_u32_u24 v{t1}, v{V_G}, s{T0}, v{t1}
s_lshl_b32 s{T0}, s{S_MT}, 1
s_add_u32 s{T0}, s{T0}, s{S_TG}
s_lshl_b32 s{T0}, s{T0}, 5
s_add_u32 s{T0}, s{T0}, s{S_NT}
s_mul_i32 s{T0}, s{T0}, {A2_BLK}
s_lshl_b32 s{T1}, s{S_H}, 9
s_add_u32 s{T1}, s{T1}, s{T0}
s_add_u32 s{T1}, s{T1}, 6144
s_lshl_b32 s{T2}, s{S_H}, 8
s_add_u32 s{T2}, s{T2}, s{T0}
s_add_u32 s{T2}, s{T2}, 8192""")
        m += merge(red, [adr[i:i+2] for i in range(0, len(adr), 2)], 1, 1)
        m.append("@wl vl")
        for j in range(1, 5):
            A = ACC + 16 * j
            for r in range(4): m.append(f"v_fma_f32 v{A+8+r}, v{A+8+r}, v{VC}, -v{MX+j-1}")
            for r in range(4): m.append(f"v_exp_f32 v{A+8+r}, v{A+8+r}")
            m += L(f"""v_cvt_pk_bf16_f32 v{A+12}, v{A+8}, v{A+9}
v_cvt_pk_bf16_f32 v{A+13}, v{A+10}, v{A+11}
v_and_b32 v{A+14}, v{A+12}, v{MB}
v_and_b32 v{A+15}, v{A+13}, v{MB+1}
v_xor_b32 v{A+12}, v{A+12}, v{A+14}
v_xor_b32 v{A+13}, v{A+13}, v{A+15}""")
            if j > 1: m.append(f"v_rcp_f32 v{RR+j-2}, v{A-16+4}")
            m += [mfma(A + 4, ON, A + 12, "0"), mfma(A, VOP + 2 * (j - 1), A + 12, "0"), mfma(OL, VL + 4 * (j - 1), A + 12, "0" if j == 1 else OL)]
        f2 = [self.flag_setup(), self.flag_issue(0)] + self.b2_read([6, 7]) + self.b2_refill([14, 15])
        self.e(merge(m, f2, 4, self.o.get("fs2", 7)))
        m = []
        for pr in range(2):
            Dp = ACC + 4 * pr
            for u in range(2):
                j = 1 + 2 * pr + u; A = ACC + 16 * j
                if j == 4: m.append(f"v_rcp_f32 v{RR+3}, v{A+4}")
                for r in range(4): m.append(f"v_mul_f32 v{A+r}, v{A+r}, v{RR+j-1}")
                m += L(f"v_cvt_pk_bf16_f32 v{Dp+2*u}, v{A}, v{A+1}\nv_cvt_pk_bf16_f32 v{Dp+2*u+1}, v{A+2}, v{A+3}")
                m.append(f"v_mov_b32_dpp v{RL}, v{RR+j-1} quad_perm:[0,1,2,3] row_mask:{hex(1<<(j-1))} bank_mask:0xf")
            m += L(f"""v_permlane32_swap_b32 v{Dp}, v{Dp+2}
v_permlane32_swap_b32 v{Dp+1}, v{Dp+3}
buffer_store_dwordx4 v[{Dp}:{Dp+3}], v{t0}, {srd(SRDWS)}, s{T1} offen sc1
s_add_u32 s{T1}, s{T1}, {2*A2_RT}""")
        for r in range(4): m.append(f"v_mul_f32 v{OL+r}, v{OL+r}, v{RL}")
        Dp = ACC + 8
        m += L(f"""v_cvt_pk_bf16_f32 v{Dp}, v{OL}, v{OL+1}
v_cvt_pk_bf16_f32 v{Dp+1}, v{OL+2}, v{OL+3}
v_mov_b32 v{Dp+2}, 0
v_mov_b32 v{Dp+3}, 0
@t st buffer_store_dwordx4 v[{Dp}:{Dp+3}], v{t1}, {srd(SRDWS)}, s{T2} offen sc1""")
        self.e(m); self.e(self.stamp(3))

    def mlp_epi(self):
        QA, CS, A2, E, D, a0, a1 = 96, 104, 116, 120, 136, 174, 175
        m = L(f"""v_and_b32 v{a0}, 31, v{V_LANE}
v_lshlrev_b32 v{a0}, 4, v{a0}
v_lshrrev_b32 v{a1}, 5, v{V_LANE}
s_mov_b32 s{T0}, {A2_RT}
v_mad_u32_u24 v{a0}, v{a1}, s{T0}, v{a0}
s_lshl_b32 s{T0}, s{S_MT}, 1
s_add_u32 s{T0}, s{T0}, s{S_TG}
s_lshl_b32 s{T0}, s{T0}, 5
s_add_u32 s{T0}, s{T0}, s{S_NT}
s_mul_i32 s{T0}, s{T0}, {A2_BLK}
s_lshl_b32 s{T1}, s{S_H}, 10
s_add_u32 s{T1}, s{T1}, s{T0}
s_lshl_b32 s{T2}, s{S_H}, 9
s_add_u32 s{T2}, s{T2}, s{T0}
s_add_u32 s{T2}, s{T2}, 4096
@wl st""")
        for j in range(4): m.append(f"v_mul_f32 v{A2+j}, {hex(f2u(-LOG2E))}, v{QA+2*j+1}")
        for j in range(4):
            A = ACC + 16 * (j + 1); Dn = D + 8 * (j & 1); Dd = D + 16 + 4 * (j >> 1)
            for r in range(12): m.append(f"v_fmac_f32 v{A+r}, v{QA+2*j}, v{CS+r}")
            for r in range(12): m.append(f"v_mul_f32 v{E+r}, v{A2+j}, v{A+r}")
            for r in range(12): m.append(f"v_exp_f32 v{E+r}, v{E+r}")
            for r in range(12): m.append(f"v_mul_f32 v{A+r}, v{QA+2*j+1}, v{A+r}")
            for r in range(12): m.append(f"v_add_f32 v{E+r}, 1.0, v{E+r}")
            for r in range(12): m.append(f"v_rcp_f32 v{E+r}, v{E+r}")
            for r in range(12): m.append(f"v_mul_f32 v{A+r}, v{A+r}, v{E+r}")
            for r in range(4): m.append(f"v_cvt_pk_bf16_f32 v{Dn+r}, v{A+2*r}, v{A+2*r+1}")
            m += L(f"buffer_store_dwordx4 v[{Dn}:{Dn+3}], v{V_L16}, {srd(SRDWS)}, s{T1} offen sc1\ns_add_u32 s{T1}, s{T1}, {A2_RT}")
            for r in range(2): m.append(f"v_cvt_pk_bf16_f32 v{Dd+2*(j&1)+r}, v{A+8+2*r}, v{A+9+2*r}")
            if j & 1:
                m += L(f"""v_permlane32_swap_b32 v{Dd}, v{Dd+2}
v_permlane32_swap_b32 v{Dd+1}, v{Dd+3}
@t st buffer_store_dwordx4 v[{Dd}:{Dd+3}], v{a0}, {srd(SRDWS)}, s{T2} offen sc1
s_add_u32 s{T2}, s{T2}, {2*A2_RT}""")
        f = self.b2_refill([8, 9, 10]) + self.b2_read([3, 4, 5]) + self.b2_refill([11, 12, 13]) + self.b2_read([6, 7]) + self.b2_refill([14, 15])
        self.e(merge(m, f, 20, self.o.get("fsm", 8)))
        self.e(self.stamp(3))

    def p2(self, n, typ):
        STG, NS = 112, 12
        NP1 = self.o.get("np1", 4); lead = self.o.get("lead", 6)
        F = BHK[3]; XR, RW, RRD, V_OUT = F, F + 6, F + 10, F + 11
        seq = [(j, ks) for j in range(n) for ks in range(NP1)] + [(j, ks) for j in range(n) for ks in range(NP1, 9)]
        q2 = n * NP1; qo = q2 + 6 - NP1
        cur = [None]
        def issue(q):
            j, ks = seq[q]; off = j * A2_RT + (ks >> 2) * 4096; r = STG + 4 * (q % NS); o = []
            if cur[0] != off: o.append(f"s_add_u32 s{S_DELTA}, s{S_A2}, {off}"); cur[0] = off
            return o + [f"@t a{q} buffer_load_dwordx4 v[{r}:{r+3}], v{V_L16}, {srd(SRDWS)}, s{S_DELTA} offen offset:{1024*(ks&3)} sc1"]
        step3 = self.b2_read([8, 9, 10]) + self.b2_read([11]) + self.b2_refill([16])
        first = [x for q in range(NS) for x in issue(q)]
        if typ == 1:
            self.e(self.flag_check(0)); self.e(first)
            for g in step3: self.e(g)
            self.e(self.publish(typ))
        else:
            self.e(self.flag_setup())
            for g in step3: self.e(g)
            self.e(self.publish(typ)); self.e(self.flag_issue(0)); self.e(self.flag_check(0)); self.e(first)
        self.e(self.stamp(5))
        setup = L(f"""v_xor_b32 v{RW}, v{V_I}, v{V_G}
v_lshlrev_b32 v{RW}, 4, v{RW}
v_lshl_add_u32 v{RW}, v{V_G}, 8, v{RW}
s_lshl_b32 s{T0}, s{S_W}, 12
v_add_u32 v{RW}, s{T0}, v{RW}
v_xor_b32 v{RW+1}, 0x440, v{RW}
v_xor_b32 v{RW+2}, 0x880, v{RW}
v_xor_b32 v{RW+3}, 0xcc0, v{RW}
s_and_b32 s{T0}, s{S_W}, 3
s_lshl_b32 s{T0}, s{T0}, 2
v_add_u32 v{V_OUT}, s{T0}, v{V_G}
v_xor_b32 v{RRD}, v{V_OUT}, v{V_I}
v_lshlrev_b32 v{RRD}, 4, v{RRD}
v_lshl_add_u32 v{RRD}, v{V_I}, 8, v{RRD}
s_lshl_b32 s{T1}, s{S_TG}, 15
v_add_u32 v{RRD}, s{T1}, v{RRD}
v_mul_u32_u24 v{V_OUT}, 2560, v{V_OUT}
v_lshl_add_u32 v{V_OUT}, v{V_I}, 3, v{V_OUT}
s_add_u32 s{T0}, s{S_TG}, s{S_RT0}
s_and_b32 s{T3}, s{T0}, 63
s_mul_i32 s{T3}, s{T3}, {16*2560}
s_lshr_b32 s{T0}, s{S_RT0}, 6
s_mul_i32 s{T0}, s{T0}, 1280
s_add_u32 s{T3}, s{T3}, s{T0}
s_lshl_b32 s{T0}, s{S_CT}, 7
s_add_u32 s{T3}, s{T3}, s{T0}""")
        for m in range(n // 2):
            setup += [f"s_add_u32 s{T0}, s{T3}, {m*32*2560}", f"@t x{m} buffer_load_dwordx2 v[{XR+2*m}:{XR+2*m+1}], v{V_OUT}, {srd(SRD0)}, s{T0} offen"]
        def writes(j):
            o = [[f"@t w{j} ds_write_b128 v{RW+t}, v[{ACC+16*j+4*t}:{ACC+16*j+4*t+3}] offset:{(j&1)*32768}"] for t in range(4)]
            if j & 1: o.append([f"v_xor_b32 v{RW+t}, 0x10000, v{RW+t}" for t in range(4)])
            return o
        def red_issue(m):
            T = ACC + 32 * m
            return [f"@wl w{2*m+1}", "s_barrier"] + [f"@t p{m}_{u} ds_read_b128 v[{T+4*u}:{T+4*u+3}], v{RRD} offset:{u*4096}" for u in range(8)] + [f"v_xor_b32 v{RRD}, 0x10000, v{RRD}"]
        def red_fin(m):
            T = ACC + 32 * m; x = XR + 2 * m; o = []
            for (a, b) in ((0, 1), (2, 3), (0, 2), (4, 5), (6, 7), (4, 6), (0, 4)):
                g = [f"@wl p{m}_{b}"] if b & 1 else []
                o.append(g + [f"v_add_f32 v{T+4*a+r}, v{T+4*a+r}, v{T+4*b+r}" for r in range(2)])
                o.append([f"v_add_f32 v{T+4*a+r}, v{T+4*a+r}, v{T+4*b+r}" for r in range(2, 4)])
            o += [[f"@wv x{m}", f"v_lshlrev_b32 v{T+4}, 16, v{x}", f"v_and_b32 v{T+5}, 0xffff0000, v{x}"],
                  [f"v_lshlrev_b32 v{T+6}, 16, v{x+1}", f"v_and_b32 v{T+7}, 0xffff0000, v{x+1}"],
                  [f"v_add_f32 v{T+r}, v{T+r}, v{T+4+r}" for r in range(2)], [f"v_add_f32 v{T+r}, v{T+r}, v{T+4+r}" for r in range(2, 4)],
                  [f"v_cvt_pk_bf16_f32 v{x}, v{T}, v{T+1}", f"v_cvt_pk_bf16_f32 v{x+1}, v{T+2}, v{T+3}"],
                  [f"s_add_u32 s{T0}, s{T3}, {m*32*2560}", f"buffer_store_dwordx2 v[{x}:{x+1}], v{V_OUT}, {srd(SRDOUT)}, s{T0} offen"]]
            return o
        fill = []; wr = []
        for q in range(len(seq)):
            j, ks = seq[q]; r = STG + 4 * (q % NS)
            if q == q2:
                self.e(self.stamp(6)); fill += [setup[i:i+3] for i in range(0, len(setup), 3)]
            if q == 0: self.e("@wl r11")
            if q == qo: self.e("@wl r16")
            if q > q2 and ks == NP1:
                for g in fill: self.e(g)
                fill = []
                if j == 1: self.e("s_barrier")
                wr = writes(j - 1)
                if j >= 3 and (j & 1): fill = red_fin((j - 3) // 2)
            self.e(f"@wv a{q}")
            for t in range(4):
                self.e(mfma(ACC + 16 * j + 4 * t, BHK[ks % 6] + 4 * t, r, "0" if ks == 0 else None))
                if fill: self.e(fill.pop(0))
            if wr: self.e(wr.pop(0))
            if q == q2 - NP1 + 2:
                fill += self.b2_read([12, 13]) + self.b2_read([14, 15]) + self.b2_read([16])
            if q + NS == qo - lead: self.e(self.flag_issue(1))
            if q + NS == qo: self.e(self.flag_check(1))
            if q + NS < len(seq): self.e(issue(q + NS))
            if q == qo - 1:
                for g in fill: self.e(g)
                fill = []
            if q > q2 and ks == 8 and j >= 2 and not (j & 1):
                assert not wr; self.e(red_issue((j - 2) // 2))
        for g in fill + wr: self.e(g)
        self.e(self.stamp(15))
        for g in writes(n - 1)[:4]: self.e(g)
        self.e(red_issue(n // 2 - 1))
        for g in red_fin(n // 2 - 1): self.e(g)
        self.e(self.stamp(7))
        if self.o.get("fixdur"):
            lp = self.lab("fix")
            self.e(f"{lp}:\ns_memrealtime s[{S_TS}:{S_TS+1}]\ns_waitcnt lgkmcnt(0)\ns_sub_u32 s{S_TS}, s{S_TS}, s{S_NONCE}\ns_cmp_lt_u32 s{S_TS}, {self.o['fixdur']}\ns_cbranch_scc1 {lp}")
        if self.diag:
            self.e(f"""s_lshl_b32 s{T0}, s2, 3
s_add_u32 s{T0}, s{T0}, s{S_W}
s_lshl_b32 s{T0}, s{T0}, 8
s_add_u32 s{T0}, s{T0}, {STAMP_BASE}
v_lshlrev_b32 v{V_L16}, 2, v{V_LANE}
buffer_store_dword v0, v{V_L16}, {srd(SRDWS)}, s{T0} offen""")
        self.e("s_endpgm")

    def kperm(self, dst, rho, t):
        self.e(f"""v_and_b32 v{dst}, 35, v{rho}
v_bfe_u32 v{t}, v{rho}, 2, 2
v_lshl_add_u32 v{dst}, v{t}, 3, v{dst}
v_bfe_u32 v{t}, v{rho}, 4, 1
v_lshl_add_u32 v{dst}, v{t}, 2, v{dst}""")
    def side_loads(self):
        a, b, c, d = TA, TB, TC, TD
        self.e(f"""v_lshlrev_b32 v{V_L16}, 4, v{V_LANE}
v_lshlrev_b32 v{a}, 2, v{V_LANE}
s_and_b32 s{T0}, s2, 3
s_lshl_b32 s{T1}, s{T0}, 8
s_and_b32 s{T2}, s2, 0xf8
s_add_u32 s{T1}, s{T1}, s{T2}
s_add_u32 s{T1}, s{T1}, s{S_W}
s_bfe_u32 s{T2}, s2, 0x10002
s_lshl_b32 s{T3}, s{T2}, 10
s_add_u32 s{T3}, s{T3}, s{T1}
s_lshl_b32 s{S_ROWS}, s{T3}, 5
s_add_u32 s{S_ROWS}, s{S_ROWS}, {ROWT}
s_mul_i32 s{T1}, s{T1}, 2560
s_mul_i32 s{T3}, s{T2}, 1280
s_add_u32 s{T1}, s{T1}, s{T3}
buffer_load_dwordx4 v[{RX}:{RX+3}], v{V_L16}, {srd(SRD0)}, s{T1} offen
buffer_load_dword v{RX+4}, v{a}, {srd(SRD0)}, s{T1} offen offset:1024
s_lshr_b32 s{T1}, s2, 3
s_min_u32 s{T1}, s{T1}, 29
s_lshl_b32 s{T2}, s{T2}, 1
s_cmp_ge_u32 s{T1}, 15
s_cselect_b32 s{T3}, 15, 0
s_addc_u32 s{T2}, s{T2}, 0
s_sub_u32 s{T1}, s{T1}, s{T3}
s_mul_i32 s{T3}, s{T1}, 86
s_lshr_b32 s{T3}, s{T3}, 8
s_mul_i32 s{T3}, s{T3}, 7
s_add_u32 s{T3}, s{T3}, s{T1}
s_mul_i32 s{T4}, s{T0}, 5
s_lshr_b32 s{T4}, s{T4}, 1
s_add_u32 s{T3}, s{T3}, s{T4}
s_mul_i32 s{T4}, s{T0}, 6
s_add_u32 s{T4}, s{T4}, s{T1}
s_sub_u32 s{T4}, s{T4}, 9
s_cmp_lt_u32 s{T1}, 9
s_cselect_b32 s{SRDC}, s{P_WQKV}, s{P_W1}
s_cselect_b32 s{SRDC+1}, s{P_WQKV+1}, s{P_W1+1}
s_cselect_b32 s{T3}, s{T3}, s{T4}
s_cselect_b32 s{T4}, 0, 30
s_cselect_b32 s{TF}, 15, 12
s_lshl_b32 s{TF}, s{TF}, 8
s_mul_i32 s{SRDC+2}, s{TF}, 640
s_mov_b32 s{SRDC+3}, 0x20000
s_add_u32 s{T4}, s{T4}, s{T3}
s_lshl_b32 s{T4}, s{T4}, 3
s_add_u32 s{T4}, s{T4}, s{S_W}
s_lshl_b32 s{T4}, s{T4}, 8
s_lshl_b32 s{S_COLS}, s{T2}, 3
s_add_u32 s{S_COLS}, s{S_COLS}, s{T4}
s_add_u32 s{S_COLS}, s{S_COLS}, {COLT}
s_lshl_b32 s{T2}, s{T2}, 3
s_add_u32 s{T2}, s{T2}, s{S_W}
s_mul_i32 s{T2}, s{T2}, 20
s_mul_i32 s{T2}, s{T2}, s{TF}
s_lshl_b32 s{T3}, s{T3}, 7
s_add_u32 s{T2}, s{T2}, s{T3}
v_lshrrev_b32 v{a}, 3, v{V_LANE}
v_mul_lo_u32 v{a}, v{a}, s{TF}
v_and_b32 v{b}, 7, v{V_LANE}
v_lshl_add_u32 v{a}, v{b}, 4, v{a}
v_lshrrev_b32 v{b}, 5, v{V_LANE}
v_lshl_add_u32 v{b}, v{b}, 30, v{a}
s_lshl_b32 s{TF}, s{TF}, 3
buffer_load_dwordx4 v[{CW}:{CW+3}], v{a}, {srd(SRDC)}, s{T2} offen
s_add_u32 s{T2}, s{T2}, s{TF}
buffer_load_dwordx4 v[{CW+4}:{CW+7}], v{a}, {srd(SRDC)}, s{T2} offen
s_add_u32 s{T2}, s{T2}, s{TF}
buffer_load_dwordx4 v[{CW+8}:{CW+11}], v{b}, {srd(SRDC)}, s{T2} offen""")
    def b2_pf(self):
        a = TA
        self.e(f"""s_mul_i32 s{T0}, s2, 6
s_add_u32 s{T0}, s{T0}, s{S_W}
s_mul_i32 s{T0}, s{T0}, 1280
s_lshl_b32 s{T1}, s2, 1
s_add_u32 s{T1}, s{T1}, s{S_W}
s_sub_u32 s{T1}, s{T1}, 6
s_mul_i32 s{T1}, s{T1}, {13*128}
s_cmp_lt_u32 s{S_W}, 6
s_cselect_b32 s{SRDPF}, s{SRDW2}, s{SRDWO}
s_cselect_b32 s{SRDPF+1}, s{SRDW2+1}, s{SRDWO+1}
s_cselect_b32 s{SRDPF+2}, s{SRDW2+2}, s{SRDWO+2}
s_mov_b32 s{SRDPF+3}, 0x20000
s_cselect_b32 s{T0}, s{T0}, s{T1}
s_cselect_b32 s{T1}, 10, 13
v_lshlrev_b32 v{V_PF}, 7, v{V_LANE}
v_mov_b32 v{a}, {hex(OOB)}
v_cmp_gt_u32 s[{S_M1}:{S_M1+1}], s{T1}, v{V_LANE}
v_cndmask_b32 v{V_PF}, v{a}, v{V_PF}, s[{S_M1}:{S_M1+1}]
buffer_load_dword v{V_PFD}, v{V_PF}, {srd(SRDPF)}, s{T0} offen""")
    def late_init(self, kind):
        a, b, c, d = TA, TB, TC, TD
        self.mksrd(SRDWS, P_WS, WS_BYTES); self.mksrd(SRDOUT, P_OUT, 2048 * 1280)
        self.e(f"s_mov_b32 s38, {640*1280}\ns_mov_b32 s39, 0x20000\ns_mov_b32 s40, s42\ns_mov_b32 s41, s43\ns_mov_b32 s42, {1536*1280}\ns_mov_b32 s43, 0x20000")
        self.e(f"""v_lshrrev_b32 v{V_G}, 4, v{V_LANE}
v_and_b32 v{V_I}, 15, v{V_LANE}
v_lshrrev_b32 v{a}, 1, v{V_I}
v_xor_b32 v{a}, v{a}, v{V_G}
v_lshlrev_b32 v{a}, 4, v{a}
v_lshl_add_u32 v{a}, v{V_I}, 7, v{a}
s_lshl_b32 s{T0}, s{S_TG}, 13
v_add_u32 v{V_X0}, s{T0}, v{a}
v_xor_b32 v{V_X1}, 64, v{V_X0}
v_lshrrev_b32 v{a}, 2, v{V_LANE}
v_and_b32 v{b}, 3, v{V_LANE}
v_bfe_u32 v{c}, v{V_LANE}, 3, 2
v_lshlrev_b32 v{V_TRB}, 7, v{a}
v_lshl_add_u32 v{V_TRB}, v{c}, 5, v{V_TRB}
v_lshl_add_u32 v{V_TRB}, v{b}, 3, v{V_TRB}""")
        if kind == "a":
            self.e(f"""v_mul_u32_u24 v{a}, 480, v{a}
s_mul_i32 s{T0}, s{S_H}, 40
s_add_u32 s{T0}, s{T0}, {XREG}
v_add_u32 v{a}, s{T0}, v{a}
v_lshl_add_u32 v{V_W0}, v{b}, 3, v{a}
v_min_u32 v{b}, 2, v{b}
v_mul_u32_u24 v{c}, 160, v{b}
v_add3_u32 v{V_W1}, v{a}, v{c}, 32
s_mul_i32 s{T0}, s{S_W}, {5*REC}
s_add_u32 s{T0}, s{T0}, {L_REC + 256}
v_min_u32 v{a}, 4, v{V_LANE}
v_mul_u32_u24 v{a}, {REC}, v{a}
v_add_u32 v{a}, s{T0}, v{a}
v_mov_b32 v{ACC}, 0
v_mov_b32 v{ACC+1}, 0
ds_write_b64 v{a}, v[{ACC}:{ACC+1}]""")
            nacc = range(ACC + 4, ACC + 80); his = [V_X0, V_X1, V_W0, V_W1]
            self.e(f"""v_lshlrev_b32 v{c}, 2, v{V_G}
v_sub_u32 v{c}, v{V_I}, v{c}
v_mov_b32 v{VC}, {hex(NEGBIG)}
v_mov_b32 v{MB}, 0
v_mov_b32 v{MB+1}, 0
s_and_b32 s{T0}, s{S_MT}, 7
s_or_b32 s{T0}, s{T0}, s{S_TG}
s_cmp_eq_u32 s{T0}, 0
s_cselect_b64 s[{S_M1}:{S_M1+1}], 0, -1""")
            for r in range(4):
                self.e(f"""v_subrev_u32 v{a}, {r}, v{c}
v_cmp_gt_u32 s[{S_M0}:{S_M0+1}], 8, v{a}
v_mov_b32 v{b}, {hex(0xffff << (16*(r&1)))}
v_cmp_gt_i32 vcc, -8, v{a}
v_cndmask_b32 v{MC+r}, v{VC}, 0, s[{S_M0}:{S_M0+1}]
v_cndmask_b32 v{b}, 0, v{b}, s[{S_M0}:{S_M0+1}]
v_or_b32 v{MB+(r>>1)}, v{MB+(r>>1)}, v{b}
v_cndmask_b32 v{MP+r}, v{VC}, 0, vcc
v_cndmask_b32 v{MP0+r}, v{VC}, v{MP+r}, s[{S_M1}:{S_M1+1}]""")
            self.e(f"v_mov_b32 v{VC}, {hex(f2u(20**-0.5 * LOG2E))}")
            self.e(f"""v_lshrrev_b32 v{a}, 2, v{V_I}
v_min_u32 v{a}, 2, v{a}
v_and_or_b32 v{b}, v{V_I}, 3, 16
v_cmp_eq_u32 s[{S_M0}:{S_M0+1}], 3, v{V_G}
s_lshl_b32 s{T0}, s{S_NT}, 2
s_add_u32 s{T0}, s{T0}, s{S_H}
s_mul_i32 s{T0}, s{T0}, 20
v_cndmask_b32 v{a}, v{V_G}, v{a}, s[{S_M0}:{S_M0+1}]
v_cndmask_b32 v{b}, v{V_I}, v{b}, s[{S_M0}:{S_M0+1}]
v_mul_u32_u24 v{a}, 640, v{a}
v_add3_u32 v{d}, v{a}, v{b}, s{T0}""")
        else:
            self.e(f"""v_mul_u32_u24 v{a}, 384, v{a}
v_lshl_add_u32 v{a}, v{b}, 3, v{a}
v_add_u32 v{a}, {XREG}, v{a}
s_mul_i32 s{T0}, s{S_H}, 3""")
            for t in range(3):
                self.e(f"""s_add_u32 s{T1}, s{T0}, {t}
s_lshr_b32 s{T2}, s{T1}, 2
s_lshl_b32 s{T2}, s{T2}, 7
s_and_b32 s{T1}, s{T1}, 3
v_xor_b32 v{b}, s{T1}, v{c}
v_lshl_add_u32 v{b}, v{b}, 5, v{a}
v_add_u32 v{[V_W0, V_W1, V_W2][t]}, s{T2}, v{b}""")
            nacc = [ACC + 16 * j + r for j in range(1, 5) for r in range(12)]; his = [V_X0, V_X1, V_W0, V_W1, V_W2]
            self.e(f"""s_lshl_b32 s{T0}, s{S_NT}, 2
s_add_u32 s{T0}, s{T0}, s{S_H}
s_mul_i32 s{T0}, s{T0}, 48
s_add_u32 s{T0}, s{T0}, 1920
v_min_u32 v{d}, 47, v{V_LANE}
v_add_u32 v{d}, s{T0}, v{d}""")
        for r in his: self.e(f"v_add_u32 v{HI[r]}, 0x10000, v{r}")
        nacc = list(nacc)
        for r in nacc[::2]: self.e(f"v_mov_b64 v[{r}:{r+1}], 0")
        lr, le = self.lab("crow"), self.lab("cend")
        self.e(f"""v_lshlrev_b32 v{c}, 2, v{V_LANE}
v_add_u32 v{V_CB}, {L_DUMMY}, v{c}
s_lshl_b32 s{T0}, s{S_H}, 8
s_cmp_eq_u32 s{S_TG}, 0
s_cbranch_scc1 {lr}
v_lshlrev_b32 v{V_CON}, 5, v{d}
v_add_u32 v{V_CON}, {COLT}, v{V_CON}
s_add_u32 s{T0}, s{T0}, {L_CS}
v_add_u32 v{V_CA}, s{T0}, v{c}
v_mov_b32 v{V_CK}, 1.0
s_branch {le}
{lr}:
s_lshl_b32 s{T1}, s{S_H}, 6
v_add_u32 v{a}, s{T1}, v{V_LANE}
v_cmp_gt_u32 vcc, 0x90, v{a}
v_min_u32 v{a}, 0x8f, v{a}
s_add_u32 s{T0}, s{T0}, {L_STAT}
v_add_u32 v{b}, s{T0}, v{c}
v_cndmask_b32 v{V_CA}, v{V_CB}, v{b}, vcc
v_add_u32 v{V_CB}, 640, v{V_CA}
s_and_b32 s{T0}, s{S_MT}, 7
s_lshl_b32 s{T0}, s{T0}, 7
s_sub_u32 s{T0}, s{T0}, 16
v_add_u32 v{a}, s{T0}, v{a}
v_max_i32 v{a}, 0, v{a}
s_lshr_b32 s{T0}, s{S_MT}, 3
s_lshl_b32 s{T0}, s{T0}, 15
s_add_u32 s{T0}, s{T0}, {ROWT}
v_lshl_add_u32 v{V_CON}, v{a}, 5, s{T0}
v_mov_b32 v{V_CK}, 0
{le}:""")
        self.e(f"""v_and_b32 v{a}, 7, v{V_LANE}
v_and_b32 v{b}, 1, v{V_G}
v_lshlrev_b32 v{b}, 4, v{b}
v_lshl_add_u32 v{b}, v{a}, 5, v{b}
s_lshl_b32 s{T0}, s{S_W}, 8
s_add_u32 s{T0}, s{T0}, {L_CP}
v_add_u32 v{V_CPW}, s{T0}, v{b}
v_lshrrev_b32 v{b}, 3, v{V_LANE}
v_lshlrev_b32 v{c}, 8, v{b}
v_lshl_add_u32 v{c}, v{a}, 2, v{c}
s_lshl_b32 s{T0}, s{S_W}, 5
s_add_u32 s{T0}, s{T0}, {L_CP}
v_add_u32 v{V_CPR}, s{T0}, v{c}
v_lshlrev_b32 v{V_CST}, 5, v{V_LANE}
v_lshl_add_u32 v{V_CST}, v{b}, 27, v{V_CST}
v_lshrrev_b32 v{b}, 1, v{V_LANE}
v_lshl_add_u32 v{V_RST}, v{b}, 25, v{V_L16}
v_and_b32 v{b}, 1, v{V_LANE}
v_lshlrev_b32 v{b}, 4, v{b}
v_mov_b32 v{c}, 0x3f80
v_lshlrev_b32 v{c}, v{b}, v{c}
v_lshrrev_b32 v{a}, 1, v{a}""")
        for p in range(4):
            self.e(f"v_cmp_eq_u32 s[{S_M0}:{S_M0+1}], {p}, v{a}\nv_cndmask_b32 v{CA+p}, 0, v{c}, s[{S_M0}:{S_M0+1}]")
        self.e(f"""v_lshrrev_b32 v{a}, 3, v{V_LANE}
v_lshlrev_b32 v{b}, 1, v{V_G}
v_and_b32 v{c}, 7, v{V_LANE}
v_xor_b32 v{b}, v{b}, v{c}
v_lshlrev_b32 v{b}, 4, v{b}
v_mul_u32_u24 v{V_B2}, 1280, v{a}
v_add_u32 v{V_B2}, v{V_B2}, v{b}
v_lshrrev_b32 v{c}, 5, v{V_LANE}
v_mul_u32_u24 v{c}, {16*1280}, v{c}
v_add_u32 v{V_B2L}, v{V_B2}, v{c}
s_lshl_b32 s{T0}, s{S_CT}, 7
s_mul_i32 s{S_B2H}, s{S_W}, {192*1280}
s_add_u32 s{S_B2H}, s{S_B2H}, s{T0}
s_mul_i32 s{S_B2O}, s{S_W}, {80*1280}
s_add_u32 s{S_B2O}, s{S_B2O}, s{T0}
s_mul_i32 s{S_RA}, s{S_W}, 6144
s_add_u32 s{S_RB}, s{S_RA}, {2*SLOT}
s_add_u32 s{S_RA}, s{S_RA}, {SLOT}
s_lshl_b32 s{S_RC}, s{S_W}, 12
s_lshl_b32 s{S_A2}, s{S_RT0}, 3
s_add_u32 s{S_A2}, s{S_A2}, s{S_W}
s_mul_i32 s{S_A2}, s{S_A2}, {A2_BLK}""")
    def start(self, kind, nd):
        sk = self.lab("non"); ini = self.o.get("init", 0)
        self.mksrd(SRDDBG, P_DBG, 256)
        if kind == "a":
            self.e(f"""s_or_b32 s{T0}, s2, s{S_W}
s_cmp_lg_u32 s{T0}, 0
s_cbranch_scc1 {sk}
s_or_b32 s{T0}, s{S_M0}, 1
v_mov_b32 v{TA}, s{T0}
s_mov_b64 exec, 1
@x buffer_store_dword v{TA}, off, {srd(SRDDBG)}, 0 sc1
s_mov_b64 exec, -1
{sk}:""")
        self.e(self.stamp(0))
        for g in self.stage(nd, 0): self.e(g)
        if ini == 1:
            for g in self.stage(nd, 1): self.e(g)
        self.side_loads()
        if ini == 1: self.e(f"@t s1 buffer_load_dword v{V_PFD}, off, {srd(SRDDBG)}, 0")
    def start2(self, kind, nd):
        ini = self.o.get("init", 0)
        self.late_init(kind)
        if self.o.get("b2pf", 1) == 1: self.b2_pf()
        if ini == 0:
            for g in self.stage(nd, 1): self.e(g)
        if self.o.get("b2pf", 1) == 2: self.b2_pf()
        self.e("@save pro")

    def gen(self):
        n = NAME + "_kernel"
        a, b, c, d = TA, TB, TC, TD
        self.e(f"""s_memrealtime s[{S_M0}:{S_M0+1}]
s_cmp_ge_u32 s2, 256
s_cbranch_scc1 L_exit
s_load_dwordx16 s[32:47], s[0:1], 0
s_load_dwordx2 s[48:49], s[0:1], 64
v_lshrrev_b32 v{a}, 6, v0
v_and_b32 v{V_LANE}, 63, v0
v_readfirstlane_b32 s{S_W}, v{a}
s_and_b32 s{S_XCD}, s2, 7
s_lshr_b32 s{T0}, s2, 3
s_and_b32 s{S_MT}, s{T0}, 7
s_and_b32 s{T1}, s2, 4
s_lshl_b32 s{T1}, s{T1}, 1
s_or_b32 s{S_MT}, s{S_MT}, s{T1}
s_and_b32 s{S_NT}, s2, 3
s_lshl_b32 s{S_NT}, s{S_NT}, 1
s_bfe_u32 s{T1}, s2, 0x10006
s_or_b32 s{S_NT}, s{S_NT}, s{T1}
s_lshr_b32 s{S_TG}, s{S_W}, 2
s_and_b32 s{S_H}, s{S_W}, 3""")
        if self.diag: self.e("v_mov_b32 v0, 0")
        self.e(f"""v_lshrrev_b32 v{a}, 3, v{V_LANE}
s_and_b32 s{T1}, s{S_W}, 1
s_lshl_b32 s{T1}, s{T1}, 2
v_lshrrev_b32 v{b}, 4, v{V_LANE}
v_or_b32 v{b}, s{T1}, v{b}
v_and_b32 v{c}, 7, v{V_LANE}
v_xor_b32 v{b}, v{b}, v{c}
s_lshl_b32 s{T1}, s{S_W}, 3
v_add_u32 v{a}, s{T1}, v{a}
v_mul_u32_u24 v{a}, 2560, v{a}
v_lshl_add_u32 v{V_DMA[0]}, v{b}, 4, v{a}
s_and_b32 s{T1}, s{S_MT}, 7
s_mul_i32 s{SOU[0]}, s{T1}, {128*2560}
s_lshr_b32 s{T2}, s{S_MT}, 3
s_mul_i32 s{T2}, s{T2}, 1280
s_add_u32 s{SOU[0]}, s{SOU[0]}, s{T2}
s_add_u32 s{SOU[1]}, s{SOU[0]}, {64*2560}
s_mov_b32 s{STEP[0]}, 128
s_lshl_b32 s{T2}, s{S_W}, 10
s_add_u32 s{DD[0]}, s{T2}, 2048
s_add_u32 s{DD[1]}, s{T2}, {2048+8192}
s_add_u32 s{DD[2]}, s{T2}, {XREG}
s_add_u32 s{DD[3]}, s{T2}, {XREG+8192}
s_add_u32 s{DD[4]}, s{T2}, {XREG+16384}
s_add_u32 s{DD[5]}, s{T2}, {XREG+24576}
s_lshl_b32 s{T3}, s{S_W}, 6
@save entry
s_cmp_ge_u32 s2, 128
s_cbranch_scc1 L_mlp""")
        for i in range(2, 6):
            v = V_DMA[i]
            self.e(f"""v_add_u32 v{a}, s{T3}, v{V_LANE}
v_add_u32 v{a}, {512*(i-2)}, v{a}
v_mul_u32_u24 v{b}, 2185, v{a}
v_lshrrev_b32 v{b}, 16, v{b}
v_mul_u32_u24 v{c}, 30, v{b}
v_sub_u32 v{a}, v{a}, v{c}""")
            self.kperm(c, b, d)
            self.e(f"""v_mul_u32_u24 v{v}, 3840, v{c}
v_mul_u32_u24 v{b}, 26, v{a}
v_lshrrev_b32 v{b}, 8, v{b}
v_mul_u32_u24 v{b}, {1280-160}, v{b}
v_lshl_add_u32 v{a}, v{a}, 4, v{b}
v_add_u32 v{v}, v{v}, v{a}""")
        self.e(f"""s_mul_i32 s{SOU[2]}, s{S_NT}, 160
s_mov_b32 s{SOU[5]}, s{SOU[2]}
s_mov_b32 s{STEP[2]}, {64*3840}
s_mov_b32 s{STEP[5]}, {64*3840}
s_waitcnt lgkmcnt(0)""")
        self.mksrd(SRD0, P_X, 2048 * 1280); self.mksrd(SRD1, P_WQKV, 640 * 3840); self.mksrd(SRD2, P_WQKV, 640 * 3840)
        self.e(f"""s_cmp_lt_u32 s{S_W}, 6
s_cbranch_scc1 L_a_go
s_mov_b32 s{SRD2}, s{P_X}
s_mov_b32 s{SRD2+1}, s{P_X+1}
s_mov_b32 s{SRD2+2}, {2048*1280}
v_mov_b32 v{V_DMA[5]}, v{V_DMA[0]}
s_mov_b32 s{STEP[5]}, 128
s_sub_u32 s{DD[5]}, s{T2}, 6144
s_sub_u32 s{SOU[5]}, s{SOU[0]}, {64*2560}
s_cmp_eq_u32 s{T1}, 0
s_cselect_b32 s{SOU[5]}, s{SOU[0]}, s{SOU[5]}
L_a_go:""")
        self.start("a", 6)
        self.e(f"""s_lshr_b32 s{T0}, s2, 3
s_sub_u32 s{T1}, s{T0}, 8
s_lshr_b32 s{T2}, s{T1}, 2
s_add_u32 s{T2}, s{T2}, 8
s_and_b32 s{T1}, s{T1}, 3
s_lshl_b32 s{T1}, s{T1}, 2
s_cmp_lt_u32 s{T0}, 8
s_cselect_b32 s{S_CT}, s{T0}, s{T2}
s_cselect_b32 s{S_RT0}, 0, s{T1}
s_lshl_b32 s{T0}, s{S_XCD}, 4
s_add_u32 s{S_RT0}, s{S_RT0}, s{T0}""")
        self.start2("a", 6)
        self.e(f"s_cmp_eq_u32 s{S_TG}, 1\ns_cbranch_scc1 L_a1")
        self.main_loop("a0")
        self.e("@chk a\ns_branch L_aepi\nL_a1:")
        self.main_loop("a1")
        self.e("@chk a\nL_aepi:")
        self.attn_epi()
        self.p2(4, 1)
        self.e(self.slow); self.slow = []
        self.e("L_mlp:\n@load entry")
        for i in range(2, 5):
            v = V_DMA[i]
            self.e(f"""v_add_u32 v{a}, s{T3}, v{V_LANE}
v_add_u32 v{a}, {512*(i-2)}, v{a}
v_mul_u32_u24 v{b}, 2731, v{a}
v_lshrrev_b32 v{b}, 16, v{b}
v_mul_u32_u24 v{c}, 24, v{b}
v_sub_u32 v{a}, v{a}, v{c}""")
            self.kperm(c, b, d)
            self.e(f"""v_mul_u32_u24 v{v}, 3072, v{c}
v_and_b32 v{b}, 6, v{b}
v_xor_b32 v{a}, v{a}, v{b}
v_lshl_add_u32 v{v}, v{a}, 4, v{v}""")
        self.e(f"""s_mul_i32 s{SOU[2]}, s{S_NT}, 384
s_mov_b32 s{STEP[2]}, {64*3072}
s_waitcnt lgkmcnt(0)""")
        self.mksrd(SRD0, P_X, 2048 * 1280); self.mksrd(SRD1, P_W1, 640 * 3072)
        self.start("m", 5)
        self.e(f"""s_lshr_b32 s{T0}, s2, 3
s_and_b32 s{S_CT}, s{T0}, 7
s_bfe_u32 s{T1}, s{T0}, 0x10003
s_mul_i32 s{T1}, s{T1}, 6
s_add_u32 s{T1}, s{T1}, 4
s_lshl_b32 s{T0}, s{S_XCD}, 4
s_add_u32 s{S_RT0}, s{T1}, s{T0}""")
        self.start2("m", 5)
        self.main_loop("m")
        self.mlp_epi()
        self.p2(6, 0)
        self.e(self.slow); self.slow = []
        self.e("L_exit:\ns_endpgm")
        self.join_check()
        lines = self.resolve([x for x in self.L if not x.startswith("@chk")])
        lines, nn = hz.fix(lines)
        hdr = open("cdna_kernels/" + NAME + ".s.ref").read().split("; Override")[0]
        s = hdr + f"; @launch grid=(256,1,1) block=(512,1,1) lds=163840\n" + TARGET + head(n) + "\n".join(lines) + "\n" + kd(n, 256, 100, 256)
        return s, nn
    def join_check(self):
        vm = lg = 0; tv = {}; tl = {}; saved = {}; snaps = []
        for x in self.L:
            if x.startswith("@save"): saved[x.split()[1]] = (vm, lg, dict(tv), dict(tl)); continue
            if x.startswith("@load"): vm, lg, tv, tl = saved[x.split()[1]]; tv = dict(tv); tl = dict(tl); continue
            if x.startswith("@chk"): snaps.append(({k: vm - v for k, v in tv.items()}, {k: lg - v for k, v in tl.items()})); continue
            tag = None
            if x.startswith("@t "): _, tag, x = x.split(None, 2)
            if x.startswith("buffer_"):
                vm += 1
                if tag: tv[tag] = vm
            elif x.startswith("ds_"):
                lg += 1
                if tag: tl[tag] = lg
        (v0, l0), (v1, l1) = snaps
        for k in v1: assert v1[k] <= v0[k], ("vm", k, v0[k], v1[k])

if __name__ == "__main__":
    diag = "--diag" in sys.argv
    out = [a for a in sys.argv[1:] if not a.startswith("--")]
    opt = {}
    for a in sys.argv[1:]:
        if a.startswith("--") and "=" in a:
            k, v = a[2:].split("="); opt[k] = int(v)
    s, nn = G(diag=diag, **opt).gen()
    open(out[0] if out else "cdna_kernels/" + NAME + ".s", "w").write(s)
    print("nops inserted:", nn, "lines:", s.count("\n"))
```

```python
import sys, math, struct
from asmlib import NAME, kd, head, TARGET
import hz

def f2u(x): return struct.unpack("<I", struct.pack("<f", x))[0]
SPIN = 0x40000
SLOT = 49152; XREG = 18432
S1 = 32768; S2 = 147456
L_STAT = S2; L_CS = S2 + 1280; L_CP = S2 + 2304; L_DUMMY = L_CP; L_REC = S2 + 4352; REC = 272
A2_BLK = 9216; A2_RT = 8 * A2_BLK
FLAG_BASE = 128 * A2_RT
ROWT = FLAG_BASE + 65536; COLT = ROWT + 65536
STAMP_BASE = COLT + 131072
WS_BYTES = STAMP_BASE + 256 * 8 * 256
OOB = 0x40000000
ONE2 = 0x3f803f80; NEGBIG = f2u(-1.0e30); LOG2E = math.log2(math.e)
DPP = "row_mask:0xf bank_mask:0xf"

SRD0, SRD1, SRD2, SRDWS, SRDDBG, SRDOUT, SRDC = 4, 8, 12, 16, 20, 24, 28
P_X, P_WQKV, P_WO, P_W1, P_W2, P_OUT, P_DBG, P_WS = 32, 34, 36, 40, 42, 44, 46, 48
SRDWO, SRDW2, SRDPF = 36, 40, 96
SOU = [50, 51, 52, 52, 52, 53]; STEP = [54, 54, 55, 55, 55, 56]; DD = [57, 58, 59, 60, 61, 62]
S_W, S_MT, S_NT, S_TG, S_H, S_CT, S_RT0, S_NONCE, S_B2H, S_B2O, S_XCD = 63, 64, 65, 66, 67, 68, 69, 70, 71, 72, 73
S_RA, S_RB, S_RC, S_ROWS, S_COLS, S_A2, S_DELTA, S_FL = 74, 75, 76, 77, 78, 79, 80, 87
T0, T1, T2, T3, T4, TF = 81, 82, 83, 84, 85, 86
S_M0, S_M1, S_TS = 88, 90, 92
S_PFC = 3
S_J, S_O = 44, 28
V_LANE, V_L16, V_B2, V_B2L, V_G, V_I, V_TRB = 1, 2, 3, 4, 5, 6, 7
V_X0, V_X1, V_W0, V_W1, V_W2 = 8, 9, 12, 14, 173
HI = {V_X0: 10, V_X1: 11, V_W0: 13, V_W1: 15, V_W2: 174}
AR = 8
V_FA, V_FD = 12, 13
ACC = 16; SETA, SETB = 96, 132
V_DMA = [168, 168, 169, 170, 171, 172]
BHK = [176, 192, 208, 224, 240, 160]
RX, RU, RT, V_NON = 176, 186, 206, 208
RS, CA, CD, CW = 92, 60, 76, [16, 20, 24, 28, 44]
V_CPW, V_CPR, V_CST, V_RST = 218, 219, 220, 221
V_CON, V_CA, V_CB, V_CK = 222, 223, 224, 225
CC = 226
V_PF, V_PFD = 234, 235
TA, TB, TC, TD = 236, 237, 238, 239
MC, MP, MP0, MB, VC = 240, 244, 248, 252, 254

def L(s): return [x.strip() for x in s.strip("\n").split("\n") if x.strip()]
def mfma(d, a, b, c=None):
    c = f"v[{d}:{d+3}]" if c is None else (c if isinstance(c, str) else f"v[{c}:{c+3}]")
    return f"v_mfma_f32_16x16x32_bf16 v[{d}:{d+3}], v[{a}:{a+3}], v[{b}:{b+3}], {c}"
def pk(op, d, *src, neg=None):
    ops = []; lo = []; hi = []
    for x in src:
        if isinstance(x, tuple): r = x[1]; ops.append(f"v[{r & ~1}:{(r & ~1) + 1}]"); lo.append(r & 1); hi.append(r & 1)
        elif isinstance(x, str): ops.append(x); lo.append(0); hi.append(0)
        else:
            assert x % 2 == 0; ops.append(f"v[{x}:{x+1}]"); lo.append(0); hi.append(1)
    assert d % 2 == 0
    f = lambda l: "[" + ",".join(map(str, l)) + "]"
    t = f"v_pk_{op}_f32 v[{d}:{d+1}], " + ", ".join(ops) + f" op_sel:{f(lo)} op_sel_hi:{f(hi)}"
    if neg: t += f" neg_lo:{f(neg)} neg_hi:{f(neg)}"
    return t
def srd(r): return f"s[{r}:{r+3}]"
def merge(main, groups, start, step):
    out = []; g = list(groups); nxt = start
    for i, x in enumerate(main):
        out.append(x)
        while g and i >= nxt:
            out += g.pop(0); nxt += step
    for x in g: out += x
    return out

def pace(main, groups, start, end):
    w = [4 if any("buffer_" in x for x in g) else 1 for g in groups]
    tot = sum(w); pos = {}; acc = 0
    for g, k in zip(groups, w):
        pos.setdefault(start + int(acc * (end - start) / tot), []).append(g); acc += k
    out = []
    for i, x in enumerate(main):
        out.append(x)
        for g in pos.get(i, []): out += g
    return out

class G:
    def __init__(self, diag=False, **opt):
        self.L = []; self.slow = []; self.diag = diag; self.o = opt; self.uid = 0
    def e(self, s):
        self.L += L(s) if isinstance(s, str) else list(s)
    def lab(self, p):
        self.uid += 1; return f"L_{p}_{self.uid}"
    def mksrd(self, r, ptr, nbytes):
        self.e(f"s_mov_b32 s{r}, s{ptr}\ns_mov_b32 s{r+1}, s{ptr+1}\ns_mov_b32 s{r+2}, {nbytes}\ns_mov_b32 s{r+3}, 0x20000")
    def stamp(self, idx):
        if not self.diag: return []
        return L(f"""s_memrealtime s[{S_TS}:{S_TS+1}]
s_memtime s[{S_TS+2}:{S_TS+3}]
s_waitcnt lgkmcnt(0)
v_writelane_b32 v0, s{S_TS}, {idx}
v_writelane_b32 v0, s{S_TS+2}, {idx+16}""")
    def resolve(self, lines):
        import copy
        out = []; st = [dict(vm=0, lg=0, tv={}, tl={}) for _ in range(2)]; saved = {}; live = (0, 1)
        for x in lines:
            if x.startswith("@save"): saved[x.split()[1]] = copy.deepcopy(st); continue
            if x.startswith("@load"): st = copy.deepcopy(saved[x.split()[1]]); continue
            if x.startswith("@only"): live = (int(x.split()[1]),); continue
            if x.startswith("@all"): live = (0, 1); continue
            if x.startswith("@x "): out.append(x[3:]); continue
            if x.startswith("@wv"):
                p = x.split(None, 2); n = min(st[k]["vm"] - st[k]["tv"][p[1]] for k in live)
                out.append(f"s_waitcnt vmcnt({min(62, n)}) {p[2] if len(p) > 2 else ''}".strip()); continue
            if x.startswith("@wl"):
                p = x.split(); n = [st[k]["lg"] - st[k]["tl"][p[1]] for k in live if p[1] in st[k]["tl"]]
                out.append(f"s_waitcnt lgkmcnt({min(14, min(n))})"); continue
            tag = None
            if x.startswith("@t "): _, tag, x = x.split(None, 2)
            for k in live:
                if x.startswith("buffer_"):
                    st[k]["vm"] += 1
                    if tag: st[k]["tv"][tag] = st[k]["vm"]
                elif x.startswith("ds_"):
                    st[k]["lg"] += 1
                    if tag: st[k]["tl"][tag] = st[k]["lg"]
            out.append(x)
        return [x if x.endswith(":") else "  " + x for x in out]
    def only(self, tg, groups):
        sk = self.lab("skip")
        self.e(f"s_cmp_lg_u32 s{S_TG}, {tg}\ns_cbranch_scc1 {sk}\n@only {tg}")
        for g in groups: self.e(g)
        self.e(f"@all\n{sk}:")
    def spin(self, check, reload_):
        sl, bk, lp = self.lab("slow"), self.lab("back"), self.lab("lp")
        self.slow += [f"{sl}:", f"s_mov_b32 s{TF}, 0", f"{lp}:", f"s_add_u32 s{TF}, s{TF}, 1", f"s_cmp_gt_u32 s{TF}, {SPIN}",
                      f"s_cbranch_scc1 {bk}", "s_sleep 1"] + ["@x " + x for x in reload_] + ["s_waitcnt vmcnt(0)"] + check + \
                     [f"s_cbranch_vccnz {lp}", f"s_branch {bk}"]
        return check + [f"s_cbranch_vccnz {sl}", f"{bk}:"]

    def u_dma(self, i, st):
        r = [SRD0, SRD0, SRD1, SRD1, SRD1, SRD2][i]
        o = [f"s_add_u32 m0, s{DD[i]}, {(st % 3) * SLOT}",
             f"@t s{st} buffer_load_dwordx4 v{V_DMA[i]}, {srd(r)}, s{SOU[i]} offen lds"]
        if i in (0, 1, 4, 5) and st < 9: o.append(f"s_add_u32 s{SOU[i]}, s{SOU[i]}, s{STEP[i]}")
        return o
    def stage(self, nd, st): return [self.u_dma(i, st) for i in range(nd)]
    def lds(self, reg, off): return f"v{reg} offset:{off}" if off < 65536 else f"v{HI[reg]} offset:{off-65536}"
    def p1_mfmas(self, kind, S, final=False, c=None):
        o = []
        if kind == "m":
            for j in range(1, 5):
                for t in range(3): o.append(mfma(ACC + 16 * j + 4 * t, S + 20 + 4 * t, S + 4 * j, c))
            return o
        jf = [(j, f) for j in (range(5) if kind == "a0" else range(1, 5)) for f in range(4) if (j, f) != (0, 0)]
        if final and kind == "a0": jf = [(4, 1), (4, 2), (4, 3)] + [x for x in jf if x not in ((4, 1), (4, 2), (4, 3))]
        for j, f in jf:
            w, x = S + 20 + 4 * f, S + 4 * j
            o.append(mfma(ACC + 16 * j + 4 * f, *((x, w) if f == 2 else (w, x)), c))
        return o
    def u_reads(self, kind, S, st, kk):
        xs = []; ws = []; sb = (st % 3) * SLOT; vx = [V_X0, V_X1][kk]
        for j in (range(5) if kind == "a0" else range(1, 5)):
            xs.append(f"ds_read_b128 v[{S+4*j}:{S+4*j+3}], {self.lds(vx, sb + 2048*j)}")
        for f in range(3 if kind == "m" else 4):
            for hf in range(2):
                r = S + 20 + 4 * f + 2 * hf; row = hf * 16 + kk * 32
                if kind == "m": a = self.lds([V_W0, V_W1, V_W2][f], sb + row * 384)
                elif f < 3: a = self.lds(V_W0, sb + row * 480 + 160 * f)
                else: a = self.lds(V_W1, sb + row * 480)
                ws.append(f"ds_read_b64_tr_b16 v[{r}:{r+1}], {a}")
        return [xs[0]] + ws + xs[1:]
    def u_phase(self, mf, reads, fill, dm, prios, last):
        reads = list(reads); n = len(mf)
        span = (n * 3) // 4 - 1 if last else n - 2
        dpos = {}
        for k in range(len(dm)): dpos.setdefault((k * span) // len(dm), []).append(dm[k])
        pend = []
        for idx, m in enumerate(mf):
            if prios and idx == 0: self.e(f"s_setprio {prios[0]}")
            if prios and idx == n // 2: self.e(f"s_setprio {prios[1]}")
            self.e(m); self.e(pend); pend = []
            if reads: self.e(reads.pop(0))
            budget = 2
            while fill and budget > 0 and not (last and idx > span):
                g = fill.pop(0); self.e(g); budget -= max(1, sum(1 for x in g if x.startswith(("v_", "ds_", "@t"))))
            ds = dpos.get(idx, [])
            for q, lines in enumerate(ds):
                bi = [i for i, x in enumerate(lines) if "buffer_" in x][0]
                if q == len(ds) - 1 and idx < n - 1: self.e(lines[:bi]); pend = lines[bi:]
                else: self.e(lines)
        assert not pend and not reads

    def hsum(self, r, t):
        return [f"v_add_f32_dpp v{r}, v{r}, v{r} {k} {DPP}" for k in ("quad_perm:[1,0,3,2]", "quad_perm:[2,3,0,1]", "row_half_mirror", "row_mirror")] + \
               L(f"v_mov_b32 v{t}, v{r}\nv_permlane16_swap_b32 v{r}, v{t}\nv_add_f32 v{r}, v{r}, v{t}")
    def gsum(self, r, t):
        return [[x] for x in L(f"""v_mov_b32 v{t}, v{r}
v_permlane16_swap_b32 v{r}, v{t}
v_add_f32 v{r}, v{r}, v{t}
v_mov_b32 v{t}, v{r}
v_permlane32_swap_b32 v{r}, v{t}
v_add_f32 v{r}, v{r}, v{t}""")]
    def prod1(self):
        s, q, t = RS, RS + 2, RT
        o = ["@wv rows"]
        for k in range(10): o += [f"v_lshlrev_b32 v{RU+2*k}, 16, v{RX+k}", f"v_and_b32 v{RU+2*k+1}, 0xffff0000, v{RX+k}"]
        o += [pk("add", s, RU, RU + 2), pk("add", t, RU + 4, RU + 6)]
        for k in range(4, 10): o.append(pk("add", [s, t][k & 1], [s, t][k & 1], RU + 2 * k))
        o += [pk("add", s, s, t), f"v_add_f32 v{s}, v{s}, v{s+1}"] + self.hsum(s, t)
        o.append(f"v_mul_f32 v{s}, {hex(f2u(1.0/640))}, v{s}")
        for k in range(10): o.append(pk("add", RU + 2 * k, RU + 2 * k, ("b", s), neg=[0, 1]))
        o += [pk("mul", q, RU, RU), pk("mul", t, RU + 2, RU + 2)]
        for k in range(2, 10): o.append(pk("fma", [q, t][k & 1], RU + 2 * k, RU + 2 * k, [q, t][k & 1]))
        o += [pk("add", q, q, t), f"v_add_f32 v{q}, v{q}, v{q+1}"]
        o += ["@wv side"] + [mfma(CD, CA, CW[k], "0" if k == 0 else None) for k in range(5)]
        o += self.hsum(q, t)
        o += L(f"""v_mul_f32 v{q}, {hex(f2u(1.0/640))}, v{q}
v_cvt_pk_bf16_f32 v{t}, v{s}, v{q}
v_lshlrev_b32 v{s}, 16, v{t}
v_and_b32 v{q}, 0xffff0000, v{t}
v_xor_b32 v{s}, 0x80000000, v{s}
v_add_f32 v{q}, {hex(f2u(1e-5))}, v{q}
v_cvt_pk_bf16_f32 v{t}, v{q}, v{q}
v_and_b32 v{q}, 0xffff0000, v{t}
v_sqrt_f32 v{q}, v{q}""")
        for r in range(4): o.append(f"v_add_f32_dpp v{CD+r}, v{CD+r}, v{CD+r} row_ror:8 {DPP}")
        o += L(f"""v_cvt_pk_bf16_f32 v{t}, v{q}, v{q}
ds_write_b128 v{V_CPW}, v[{CD}:{CD+3}]
v_and_b32 v{q}, 0xffff0000, v{t}
v_rcp_f32 v{q}, v{q}""")
        return o
    def ms1(self, nd):
        s1 = self.stage(nd, 1); s1[-1:-1] = [[self.nonce_ld()]]
        return s1 + (self.stage(nd, 2) if self.o.get("s2e", 0) else [])
    def nonce_ld(self): return f"buffer_load_dword v{V_NON}, off, {srd(SRDDBG)}, 0 sc1"
    def nonce_chk(self): return self.spin([f"v_cmp_eq_u32 vcc, 0, v{V_NON}"], [self.nonce_ld()]) + [f"v_readfirstlane_b32 s{S_NONCE}, v{V_NON}"]
    def prod2(self):
        a = [f"ds_read_b32 v{CD}, v{V_CPR}"] + self.nonce_chk() + [f"v_mov_b32 v{RS+1}, v{V_NON}", f"v_mov_b32 v{RS+3}, v{V_NON}",
             f"buffer_store_dwordx4 v[{RS}:{RS+3}], v{V_RST}, {srd(SRDWS)}, s{S_ROWS} offen sc1"]
        b = [[f"v_add_f32_dpp v{CD}, v{CD}, v{CD} row_ror:8 {DPP}"], [f"v_mov_b32 v{CD+1}, v{V_NON}"]] + self.gsum(CD, CD + 2)
        b += [[f"buffer_store_dwordx2 v[{CD}:{CD+1}], v{V_CST}, {srd(SRDWS)}, s{S_COLS} offen sc1"]]
        return a, b
    def cons_load(self): return f"buffer_load_dwordx4 v[{CC}:{CC+3}], v{V_CON}, {srd(SRDWS)}, 0 offen sc1"
    def cons(self):
        chk = L(f"""v_cmp_ne_u32 vcc, s{S_NONCE}, v{CC+1}
v_cmp_ne_u32 s[{S_M0}:{S_M0+1}], s{S_NONCE}, v{CC+3}
s_or_b64 vcc, vcc, s[{S_M0}:{S_M0+1}]""")
        return [["@wv con"] + self.spin(chk, [self.cons_load()]),
                [f"ds_write_b32 v{V_CB}, v{CC+2}"], [f"v_fmac_f32 v{CC}, v{V_CK}, v{CC+2}"], [f"ds_write_b32 v{V_CA}, v{CC}"]]

    def b2_dma(self, n, tag=None):
        if n < 16: r, base, ro, v = SRDW2, S_B2H, 48 * (n >> 2) + 8 * (n & 3), V_B2
        elif n < 24:
            m = n - 16; r, base, ro, v = SRDW2, S_B2H, 96 * (m >> 2) + 32 + 48 * (m & 1) + 8 * ((m >> 1) & 1), V_B2
        elif n < 32:
            m = n - 24; r, base, ro, v = SRDWO, S_B2O, 40 * (m >> 2) + 20 * (m & 1) + 8 * ((m >> 1) & 1), V_B2
        else: r, base, ro, v = SRDWO, S_B2O, 16 + 40 * (n - 32), V_B2L
        reg, off = self.b2_place(n >> 1)
        return [f"s_add_u32 m0, s{reg}, {off + 1024 * (n & 1)}", f"s_add_u32 s{TF}, s{base}, {ro*1280}",
                f"@t h{n>>1} buffer_load_dwordx4 v{v}, {srd(r)}, s{TF} offen lds"]
    def b2_place(self, hh):
        k = hh % 8
        return (S_RA, 2048 * k) if k < 3 else (S_RB, 2048 * (k - 3)) if k < 6 else (S_RC, 2048 * (k - 6))
    def b2_read(self, halves):
        reg = self.b2_place(halves[0])[0]
        o = [[f"@wv h{halves[-1]}", f"v_add_u32 v{AR}, s{reg}, v{V_TRB}", f"v_xor_b32 v{AR+1}, 32, v{AR}"],
             [f"v_xor_b32 v{AR+2}, 64, v{AR}", f"v_xor_b32 v{AR+3}, 0x60, v{AR}"]]
        for hh in halves:
            assert self.b2_place(hh)[0] == reg
            off = self.b2_place(hh)[1]; base = BHK[(hh >> 1) % 6]
            for t in range(4):
                r = base + 4 * t + 2 * (hh & 1)
                o.append([f"@t r{hh} ds_read_b64_tr_b16 v[{r}:{r+1}], v{AR+t} offset:{off}"])
                if hh == 16: o.append([f"@t r{hh} ds_read_b64_tr_b16 v[{r+2}:{r+3}], v{AR+t} offset:{off}"])
        return o
    def b2_refill(self, halves):
        o = []
        for hh in halves:
            for n in (2 * hh, 2 * hh + 1):
                o.append(([f"@wl r{hh-8}"] if n & 1 == 0 else []) + self.b2_dma(n))
        return o

    QA, CS, VA = 96, 106, [156, 120, 132, 140, 148]
    def stat_reads(self, kind, which):
        t0, t1 = 14, 15
        if kind == "m":
            o = [L(f"s_lshl_b32 s{TF}, s{S_TG}, 8\ns_add_u32 s{TF}, s{TF}, {L_STAT+64}\nv_lshl_add_u32 v{t0}, v{V_I}, 2, s{TF}"),
                 L(f"s_lshl_b32 s{TF}, s{S_H}, 8\ns_add_u32 s{TF}, s{TF}, {L_CS}\nv_lshl_add_u32 v{t1}, v{V_G}, 4, s{TF}")]
            for j in range(4): o.append([f"ds_read2_b32 v[{96+2*j}:{97+2*j}], v{t0} offset0:{16*j} offset1:{160+16*j}"])
            for t in range(3): o.append([f"@t st ds_read_b128 v[{104+4*t}:{107+4*t}], v{t1} offset:{64*t}"])
            return o
        QA, CS, VA = self.QA, self.CS, self.VA
        def va(j): return [[f"ds_read_b128 v[{VA[j]}:{VA[j]+3}], v{t1} offset:{64*j}"], [f"@t va{j} ds_read_b128 v[{VA[j]+4}:{VA[j]+7}], v{t1} offset:{640+64*j}"]]
        if which == 0:
            o = [L(f"s_lshl_b32 s{TF}, s{S_H}, 8\ns_add_u32 s{TF}, s{TF}, {L_CS}\nv_lshl_add_u32 v{t0}, v{V_G}, 4, s{TF}\nv_lshl_add_u32 v{t1}, v{V_I}, 2, s{TF}")]
            o += [[f"ds_read_b128 v[{CS}:{CS+3}], v{t0}"], [f"ds_read_b128 v[{CS+4}:{CS+7}], v{t0} offset:64"],
                  [f"ds_read_b128 v[{CS+8}:{CS+11}], v{t0} offset:192"], [f"ds_read_b32 v{CS+12}, v{t1} offset:128"]]
            o += [L(f"s_lshl_b32 s{TF}, s{S_TG}, 8\ns_add_u32 s{TF}, s{TF}, {L_STAT}\nv_lshl_add_u32 v{t0}, v{V_I}, 2, s{TF}\nv_lshl_add_u32 v{t1}, v{V_G}, 4, s{TF}")]
            for j in range(5): o.append([f"ds_read2_b32 v[{QA+2*j}:{QA+2*j+1}], v{t0} offset0:{16*j} offset1:{160+16*j}"])
            return o + va(1)
        return [x for g in va(which % 5) for x in g]

    def main_loop(self, kind):
        nd = 5 if kind == "m" else 6; o = self.o
        P = (lambda a, b: (a, b)) if o.get("prio", 1) else (lambda a, b: None)
        self.e("@wv s0 lgkmcnt(0)\ns_barrier"); self.e(self.stamp(1))
        M = kind == "m"
        SH = M and o.get("pfwho", 1) == 3
        fill = []
        self.e(self.u_reads(kind, SETA, 0, 0))
        if M:
            self.e(self.u_reads(kind, SETB, 0, 1))
            p2a, p2b = self.prod2()
            s1 = self.ms1(nd)[o.get("km", 0):]
            self.e("s_waitcnt lgkmcnt(%d)" % len(self.u_reads(kind, SETB, 0, 1)))
            self.u_phase(self.p1_mfmas(kind, SETA, c="0"), [], [], [], None, False)
            self.e("s_waitcnt lgkmcnt(0)")
            self.u_phase(self.p1_mfmas(kind, SETB), [], [], [], None, False)
            for g in s1: self.e(g)
            self.e(self.stamp(8)); self.e(self.prod1()); self.e(self.stamp(10))
            if not o.get("s2e", 0):
                for g in self.stage(nd, 2): self.e(g)
        else:
            k1 = o.get("k1", 3)
            self.e("s_waitcnt lgkmcnt(0)")
            self.u_phase(self.p1_mfmas(kind, SETA, c="0"), self.u_reads(kind, SETB, 0, 1), [], self.stage(nd, 1)[k1:] + self.stage(nd, 2), None, False)
        for it in range(1, 10):
            if it <= 7: dm = self.stage(nd, it + 2)
            elif SH: dm = [self.b2_dma(n) for n in range(6)] if it == 9 else []
            else: dm = [self.b2_dma(6 * (it - 8) + n) for n in range(6)]
            if SH and it == 7: dm = dm + [["@t con " + self.cons_load()], self.pfl]
            if it == 8 and not SH: dm = [["@t con " + self.cons_load()]] + dm
            if it == 3 and not M: dm = [[self.nonce_ld()]] + dm
            if it == 5 and not M: fill = [self.nonce_chk()]
            if it == o.get("pf0", 2) and o.get("pfwho", 1) in (2, 0 if M else 1): dm = dm + [self.pfl]
            if o.get("its"): self.e(f"s_memtime s[{S_TS+2}:{S_TS+3}]")
            self.e(f"@wv s{it} lgkmcnt(0)\ns_barrier")
            if o.get("its"): self.e(f"s_memtime s[{S_TS}:{S_TS+1}]\nv_writelane_b32 v0, s{S_TS+2}, {48+it}")
            if it == 1 and M:
                self.e(self.u_reads(kind, SETA, it, 0)); self.e(p2a); fill = p2b
            else:
                h = (len(dm) * 4 + 3) // 7
                self.u_phase(self.p1_mfmas(kind, SETB), self.u_reads(kind, SETA, it, 0), fill, dm[:h], P(3, 2), False)
                dm = dm[h:]
            self.e("s_waitcnt lgkmcnt(0)")
            if o.get("its"): self.e(f"v_writelane_b32 v0, s{S_TS}, {32+it}")
            if it == 9: assert not fill; fill = self.cons()
            self.u_phase(self.p1_mfmas(kind, SETA), self.u_reads(kind, SETB, it, 1), fill, dm, P(1, 0), not (it == 1 and M))
        for g in fill: self.e(g)
        self.e("s_waitcnt lgkmcnt(0)\ns_barrier")
        self.e(self.stamp(9))
        fill = self.stat_reads(kind, 0)
        if kind == "a0":
            hw = [L(f"s_mul_i32 s{TF}, s{S_H}, 3072\ns_add_u32 s{TF}, s{TF}, {S1}\nv_add_u32 v13, s{TF}, v{V_L16}")]
            hw += [[f"@t hw ds_write_b128 v13, v[{ACC+64+4*f}:{ACC+67+4*f}] offset:{1024*(f-1)}", "s_nop 0"] for f in (1, 2, 3)]
            fill = fill + hw
        if M and not SH: fill += self.b2_read([0, 1, 2])
        self.pre = [self.b2_dma(i) for i in range(10, 16)] + self.b2_read([0, 1, 2]) if SH else [] if M else self.b2_read([0, 1, 2])
        self.u_phase(self.p1_mfmas(kind, SETB, True), [], fill, [self.b2_dma((6 if SH else 12) + i) for i in range(4)], P(1, 0), False)
        for g in fill: self.e(g)
        if kind != "m":
            if kind == "a0": self.e("@wl hw\ns_barrier")
            else:
                self.e(f"s_barrier\ns_mul_i32 s{TF}, s{S_H}, 3072\ns_add_u32 s{TF}, s{TF}, {S1}\nv_add_u32 v13, s{TF}, v{V_L16}")
                for f in (1, 2, 3): self.e(f"@t halo ds_read_b128 v[{ACC+4*f}:{ACC+4*f+3}], v13 offset:{1024*(f-1)}")
        self.e(self.stamp(2))

    def flag_setup(self, n):
        return L(f"""v_and_b32 v{V_FA}, 1, v{V_LANE}
v_mul_u32_u24 v{V_FA}, {n-1}, v{V_FA}
v_add_u32 v{V_FA}, s{S_RT0}, v{V_FA}
v_and_b32 v{V_FA}, 0xf8, v{V_FA}
v_add_u32 v{V_FA}, s{S_W}, v{V_FA}
v_lshlrev_b32 v{V_FA}, 7, v{V_FA}""")
    def flag_load(self): return f"buffer_load_dword v{V_FD}, v{V_FA}, {srd(SRDWS)}, s{S_FL} offen sc1"
    def flag_issue(self, typ): return [f"s_mov_b32 s{S_FL}, {FLAG_BASE + typ*16384}", f"@t fl{typ} " + self.flag_load()]
    def flag_check(self, typ): return [f"@wv fl{typ}"] + self.spin([f"v_cmp_ne_u32 vcc, s{S_NONCE}, v{V_FD}"], [self.flag_load()])
    def publish(self, typ):
        sk = self.lab("nofl")
        return L(f"""@wv st
s_barrier
s_cmp_lg_u32 s{S_W}, 0
s_cbranch_scc1 {sk}
s_lshl_b32 s{T0}, s{S_MT}, 3
s_add_u32 s{T0}, s{T0}, s{S_NT}
s_lshl_b32 s{T0}, s{T0}, 7
s_add_u32 s{T0}, s{T0}, {FLAG_BASE + typ*16384}
v_mov_b32 v14, s{S_NONCE}
s_mov_b64 exec, 1
@x buffer_store_dword v14, off, {srd(SRDWS)}, s{T0} sc1
s_mov_b64 exec, -1
{sk}:""") + self.stamp(4)

    def attn_epi(self):
        QA, CS, VA = self.QA, self.CS, self.VA
        VOP, ON = 164, 128
        t0, t1, t2 = 174, 175, 255
        m = L(f"""s_mul_i32 s{T0}, s{S_W}, {5*REC}
s_add_u32 s{T0}, s{T0}, {L_REC}
v_lshlrev_b32 v{t0}, 6, v{V_G}
v_lshl_add_u32 v{t0}, v{V_I}, 3, v{t0}
v_add_u32 v{t1}, {L_DUMMY}, v{t0}
v_add_u32 v{t0}, s{T0}, v{t0}
s_mov_b32 s{S_M0}, 0xffff
s_mov_b32 s{S_M0+1}, 0xffff
v_cndmask_b32 v{t0}, v{t1}, v{t0}, s[{S_M0}:{S_M0+1}]
v_lshl_add_u32 v{t1}, v{V_I}, 3, s{T0}
s_add_u32 s{T0}, s{T0}, 256
v_mov_b32 v{t2}, s{T0}
s_mov_b32 s{S_M0}, 0xffff0000
s_mov_b32 s{S_M0+1}, 0
v_cndmask_b32 v{t1}, v{t2}, v{t1}, s[{S_M0}:{S_M0+1}]""")
        for r in range(4): m.append(f"v_mov_b32 v{ON+r}, {hex(ONE2)}")
        for j in (1, 2, 3, 4, 0):
            A = ACC + 16 * j
            if self.o.get("eprio", 1) and j in (1, 4): m.append(f"s_setprio {3 if j == 1 else 2}")
            if j: m += self.stat_reads("a", j + 1)
            m += [f"@wl va{j}"] + ([] if j else ["@wl halo"])
            for f, cs in ((3, CS + 8), (1, CS + 4), (0, CS)):
                if j == 0 and f == 0: continue
                for r in (0, 2): m.append(pk("fma", A+4*f+r, ("b", QA+2*j), cs+r, A+4*f+r))
                for r in (0, 2): m.append(pk("mul", A+4*f+r, ("b", QA+2*j+1), A+4*f+r))
            m += L(f"""v_cvt_pk_bf16_f32 v{A+4}, v{A+4}, v{A+5}
v_cvt_pk_bf16_f32 v{A+5}, v{A+6}, v{A+7}
v_cvt_pk_bf16_f32 v{A+6}, v{A+12}, v{A+13}
v_cvt_pk_bf16_f32 v{A+7}, v{A+14}, v{A+15}
ds_write_b64 v{t0}, v[{A+6}:{A+7}] offset:{REC*j}""")
            if j:
                m += L(f"v_cvt_pk_bf16_f32 v{A}, v{A}, v{A+1}\nv_cvt_pk_bf16_f32 v{A+1}, v{A+2}, v{A+3}\n@t ql{j} ds_read_b64 v[{A+2}:{A+3}], v{t1} offset:{REC*j}")
            for r in (0, 2): m.append(pk("fma", A+8+r, VA[j]+r, ("b", CS+12), A+8+r))
            for r in (0, 2): m.append(pk("mul", A+8+r, VA[j]+4+r, A+8+r))
            m += L(f"v_cvt_pk_bf16_f32 v{VOP+2*j}, v{A+8}, v{A+9}\nv_cvt_pk_bf16_f32 v{VOP+2*j+1}, v{A+10}, v{A+11}")
            if j >= 2 or j == 0:
                jj = j - 1 if j else 4
                B = ACC + 16 * jj
                m += [f"@wl ql{jj}", mfma(B + 8, B + 4, B, MC)]
                if jj >= 2: m.append(mfma(B + 12, B - 12, B, MP))
        m.append(mfma(ACC + 16 + 12, ACC + 4, ACC + 16, MP0))
        self.blk = self.b2_block(); k = self.cut(self.o.get("nia1", 5))
        self.e(pace(m, k, 10, len(m) - 1) if k else m)
        self.e(self.stamp(11))
        VL, MX, OL, RR, RL, D = 96, 112, 116, 120, 124, 132
        m = (["s_setprio 1"] if self.o.get("eprio", 1) else []) + L(f"""v_lshrrev_b32 v{t0}, 2, v{V_LANE}
v_lshlrev_b32 v{t0}, 3, v{t0}
v_add_u32 v{t0}, s{T0}, v{t0}
v_subrev_u32 v{t0}, 0x80, v{t0}""")
        for j in range(1, 5):
            k = 0x11111111 << (j - 1)
            m += L(f"""s_mov_b32 s{S_M0}, {hex(k)}
s_mov_b32 s{S_M0+1}, {hex(k)}
v_cndmask_b32 v{t1}, v{t2}, v{t0}, s[{S_M0}:{S_M0+1}]
ds_read_b64_tr_b16 v[{VL+4*(j-1)}:{VL+4*(j-1)+1}], v{t1} offset:{REC*(j-1)}
@t vl ds_read_b64_tr_b16 v[{VL+4*(j-1)+2}:{VL+4*(j-1)+3}], v{t1} offset:{REC*j}""")
        for j in (2, 3, 4, 1):
            A = ACC + 16 * j
            for r in range(4): m.append(f"v_max_f32 v{A+8+r}, v{A+8+r}, v{A+12+r}")
            m += L(f"v_max3_f32 v{MX+j-1}, v{A+8}, v{A+9}, v{A+10}\nv_max_f32 v{MX+j-1}, v{MX+j-1}, v{A+11}")
        m0, m1, m2, m3 = MX, MX + 1, MX + 2, MX + 3
        red = L(f"""v_permlane16_swap_b32 v{m2}, v{m3}
v_permlane16_swap_b32 v{m0}, v{m1}
v_max_f32 v{m2}, v{m2}, v{m3}
v_max_f32 v{m0}, v{m0}, v{m1}
v_permlane32_swap_b32 v{m0}, v{m2}
v_max_f32 v{m0}, v{m0}, v{m2}
v_mul_f32 v{m0}, v{m0}, v{VC}
v_mov_b32 v{m2}, v{m0}
v_permlane32_swap_b32 v{m0}, v{m2}
v_mov_b32 v{m1}, v{m0}
v_mov_b32 v{m3}, v{m2}
v_permlane16_swap_b32 v{m0}, v{m1}
v_permlane16_swap_b32 v{m2}, v{m3}""")
        adr = L(f"""v_and_b32 v{t0}, 31, v{V_LANE}
v_lshlrev_b32 v{t0}, 4, v{t0}
v_lshrrev_b32 v{t1}, 5, v{V_LANE}
s_mov_b32 s{T0}, {A2_RT}
v_mad_u32_u24 v{t0}, v{t1}, s{T0}, v{t0}
v_lshlrev_b32 v{t1}, 4, v{V_I}
v_mad_u32_u24 v{t1}, v{V_G}, s{T0}, v{t1}
s_lshl_b32 s{T0}, s{S_MT}, 1
s_add_u32 s{T0}, s{T0}, s{S_TG}
s_lshl_b32 s{T0}, s{T0}, 5
s_add_u32 s{T0}, s{T0}, s{S_NT}
s_mul_i32 s{T0}, s{T0}, {A2_BLK}
s_lshl_b32 s{T1}, s{S_H}, 9
s_add_u32 s{T1}, s{T1}, s{T0}
s_add_u32 s{T1}, s{T1}, 6144
s_lshl_b32 s{T2}, s{S_H}, 8
s_add_u32 s{T2}, s{T2}, s{T0}
s_add_u32 s{T2}, s{T2}, 8192""")
        m += merge(red, [adr[i:i+2] for i in range(0, len(adr), 2)], 1, 1)
        m.append("@wl vl")
        for j in range(1, 5):
            A = ACC + 16 * j
            for r in (0, 2): m.append(pk("fma", A+8+r, A+8+r, ("b", VC), ("b", MX+j-1), neg=[0, 0, 1]))
            for r in range(4): m.append(f"v_exp_f32 v{A+8+r}, v{A+8+r}")
            m += L(f"""v_cvt_pk_bf16_f32 v{A+12}, v{A+8}, v{A+9}
v_cvt_pk_bf16_f32 v{A+13}, v{A+10}, v{A+11}
v_and_b32 v{A+14}, v{A+12}, v{MB}
v_and_b32 v{A+15}, v{A+13}, v{MB+1}
v_xor_b32 v{A+12}, v{A+12}, v{A+14}
v_xor_b32 v{A+13}, v{A+13}, v{A+15}""")
            if j == 3 and self.o.get("eprio", 1): m.append("s_setprio 0")
            if j > 1: m.append(f"v_rcp_f32 v{RR+j-2}, v{A-16+4}")
            m += [mfma(A + 4, ON, A + 12, "0"), mfma(A, VOP + 2 * (j - 1), A + 12, "0"), mfma(OL, VL + 4 * (j - 1), A + 12, "0" if j == 1 else OL)]
        k = self.cut(self.o.get("nia2", 5)) + [self.flag_setup(4), self.flag_issue(0)]
        m = pace(m, k, 2, len(m) - 10)
        self.e(m)
        m = []
        for pr in range(2):
            Dp = ACC + 4 * pr
            for u in range(2):
                j = 1 + 2 * pr + u; A = ACC + 16 * j
                if j == 4: m.append(f"v_rcp_f32 v{RR+3}, v{A+4}")
                for r in (0, 2): m.append(pk("mul", A+r, A+r, ("b", RR+j-1)))
                m += L(f"v_cvt_pk_bf16_f32 v{Dp+2*u}, v{A}, v{A+1}\nv_cvt_pk_bf16_f32 v{Dp+2*u+1}, v{A+2}, v{A+3}")
                m.append(f"v_mov_b32_dpp v{RL}, v{RR+j-1} quad_perm:[0,1,2,3] row_mask:{hex(1<<(j-1))} bank_mask:0xf")
            m += L(f"""v_permlane32_swap_b32 v{Dp}, v{Dp+2}
v_permlane32_swap_b32 v{Dp+1}, v{Dp+3}
buffer_store_dwordx4 v[{Dp}:{Dp+3}], v{t0}, {srd(SRDWS)}, s{T1} offen sc1
s_add_u32 s{T1}, s{T1}, {2*A2_RT}""")
        for r in (0, 2): m.append(pk("mul", OL+r, OL+r, ("b", RL)))
        Dp = ACC + 8
        m += L(f"""v_cvt_pk_bf16_f32 v{Dp}, v{OL}, v{OL+1}
v_cvt_pk_bf16_f32 v{Dp+1}, v{OL+2}, v{OL+3}
v_mov_b32 v{Dp+2}, 0
v_mov_b32 v{Dp+3}, 0
@t st buffer_store_dwordx4 v[{Dp}:{Dp+3}], v{t1}, {srd(SRDWS)}, s{T2} offen sc1""")
        self.e(m); self.e(self.stamp(3))

    def mlp_epi(self):
        QA, CS, A2, E, D, a0, a1 = 96, 104, 116, 120, 136, 174, 175
        m = L(f"""v_and_b32 v{a0}, 31, v{V_LANE}
v_lshlrev_b32 v{a0}, 4, v{a0}
v_lshrrev_b32 v{a1}, 5, v{V_LANE}
s_mov_b32 s{T0}, {A2_RT}
v_mad_u32_u24 v{a0}, v{a1}, s{T0}, v{a0}
s_lshl_b32 s{T0}, s{S_MT}, 1
s_add_u32 s{T0}, s{T0}, s{S_TG}
s_lshl_b32 s{T0}, s{T0}, 5
s_add_u32 s{T0}, s{T0}, s{S_NT}
s_mul_i32 s{T0}, s{T0}, {A2_BLK}
s_lshl_b32 s{T1}, s{S_H}, 10
s_add_u32 s{T1}, s{T1}, s{T0}
s_lshl_b32 s{T2}, s{S_H}, 9
s_add_u32 s{T2}, s{T2}, s{T0}
s_add_u32 s{T2}, s{T2}, 4096
@wl st""")
        for j in range(4): m.append(f"v_mul_f32 v{A2+j}, {hex(f2u(-LOG2E))}, v{QA+2*j+1}")
        for j in range(4):
            A = ACC + 16 * (j + 1); Dn = D + 8 * (j & 1); Dd = D + 16 + 4 * (j >> 1)
            R2 = range(0, 12, 2)
            if self.o.get("eprio", 1): m.append(f"s_setprio {3-j}")
            for r in R2: m.append(pk("fma", A+r, ("b", QA+2*j), CS+r, A+r))
            for r in R2: m.append(pk("mul", E+r, ("b", A2+j), A+r))
            for r in range(12): m.append(f"v_exp_f32 v{E+r}, v{E+r}")
            for r in R2: m.append(pk("mul", A+r, ("b", QA+2*j+1), A+r))
            for r in R2: m.append(pk("add", E+r, E+r, "1.0"))
            for r in range(12): m.append(f"v_rcp_f32 v{E+r}, v{E+r}")
            for r in R2: m.append(pk("mul", A+r, A+r, E+r))
            for r in range(4): m.append(f"v_cvt_pk_bf16_f32 v{Dn+r}, v{A+2*r}, v{A+2*r+1}")
            m += L(f"buffer_store_dwordx4 v[{Dn}:{Dn+3}], v{V_L16}, {srd(SRDWS)}, s{T1} offen sc1\ns_add_u32 s{T1}, s{T1}, {A2_RT}")
            for r in range(2): m.append(f"v_cvt_pk_bf16_f32 v{Dd+2*(j&1)+r}, v{A+8+2*r}, v{A+9+2*r}")
            if j & 1:
                m += L(f"""v_permlane32_swap_b32 v{Dd}, v{Dd+2}
v_permlane32_swap_b32 v{Dd+1}, v{Dd+3}
@t st buffer_store_dwordx4 v[{Dd}:{Dd+3}], v{a0}, {srd(SRDWS)}, s{T2} offen sc1
s_add_u32 s{T2}, s{T2}, {2*A2_RT}""")
        self.blk = self.b2_block(); k = self.cut(self.o.get("nim", 6))
        self.e(pace(m, k, 10, len(m) * 3 // 4) if k else m)
        self.e(self.stamp(3))
    def cut(self, ndma):
        o = []
        while ndma > 0 and self.blk:
            g = self.blk.pop(0); o.append(g); ndma -= any("buffer_" in x for x in g)
        return o
    def b2_block(self):
        g = self.pre + self.b2_refill([8, 9, 10]) + self.b2_read([3, 4, 5]) + self.b2_refill([11, 12, 13]) + self.b2_read([6, 7]) + self.b2_refill([14, 15])
        sl = self.o.get("bsleep", 0)
        if sl: g = [x + ([f"s_sleep {sl}"] if any("buffer_" in y for y in x) else []) for x in g]
        return g

    def p2_scalars(self, n):
        o = [[f"s_mov_b32 s{T0}, s{S_CT}"]]
        for k in range(2): o.append(L(f"s_cmp_ge_u32 s{T0}, {n}\ns_cselect_b32 s{T1}, {n}, 0\ns_sub_u32 s{T0}, s{T0}, s{T1}"))
        for j in range(n):
            o.append(L(f"s_mul_i32 s{S_J+j}, s{T0}, {A2_RT}\ns_add_u32 s{S_J+j}, s{S_J+j}, s{S_A2}"))
            if j & 1 == 0: o.append([f"s_mov_b32 s{S_O+j//2}, s{T0}"])
            else: o.append(L(f"s_cmp_eq_u32 s{S_TG}, 1\ns_cselect_b32 s{S_O+j//2}, s{T0}, s{S_O+j//2}\ns_lshl_b32 s{S_O+3+j//2}, s{S_O+j//2}, 11\ns_mul_i32 s{S_O+j//2}, s{S_O+j//2}, {16*2560}"))
            if j < n - 1: o.append(L(f"s_add_u32 s{T0}, s{T0}, 1\ns_cmp_eq_u32 s{T0}, {n}\ns_cselect_b32 s{T0}, 0, s{T0}"))
        o += [L(f"s_and_b32 s{T3}, s{S_RT0}, 63\ns_mul_i32 s{T3}, s{T3}, {16*2560}\ns_lshr_b32 s{T0}, s{S_RT0}, 6"),
              L(f"s_mul_i32 s{T0}, s{T0}, 1280\ns_add_u32 s{T3}, s{T3}, s{T0}\ns_lshl_b32 s{T0}, s{S_CT}, 7\ns_add_u32 s{T3}, s{T3}, s{T0}")]
        for m in range(n // 2): o.append(L(f"s_add_u32 s{S_O+m}, s{S_O+m}, s{T3}"))
        return o
    def p2(self, n, typ):
        STG, NS = 112, self.o.get("ns", 6); assert NS <= 6
        lead = self.o.get("lead", 3)
        SEL, XR, RW, RRD, V_OUT, V_XA, V_XB = 136, 152, 154, 155, 156, 157, 158
        seq = [(j, ks) for j in range(n) for ks in range(6)] + [(j, ks) for j in range(n) for ks in range(6, 9)]
        q2 = 6 * n
        cur = [None]
        def issue(q):
            j, ks = seq[q]; off = (j, ks >> 2); r = STG + 4 * (q % NS); o = []; so = S_J + j
            if ks >= 4:
                so = S_DELTA
                if cur[0] != off: o.append(f"s_add_u32 s{S_DELTA}, s{S_J+j}, {(ks >> 2) * 4096}"); cur[0] = off
            return o + [f"@t a{q} buffer_load_dwordx4 v[{r}:{r+3}], v{V_L16}, {srd(SRDWS)}, s{so} offen offset:{1024*(ks&3)} sc1"]
        isd = lambda g: any("buffer_" in x for x in g)
        self.blk += self.b2_read([8, 9, 10]) + self.b2_read([11]) + self.b2_refill([16])
        first = [issue(q) for q in range(NS)]
        xd = [L(f"v_lshrrev_b32 v15, 3, v{V_LANE}\nv_mul_u32_u24 v15, 2560, v15"), L(f"v_and_b32 v{V_XB}, 7, v{V_LANE}\nv_lshl_add_u32 v15, v{V_XB}, 4, v15")]
        for k in range((2 * n + 7) // 8):
            xd.append(L(f"""s_add_u32 s{T0}, s{S_W}, {8*k}
s_min_u32 s{T0}, s{T0}, {2*n-1}
s_lshl_b32 s{T1}, s{T0}, 10
s_add_u32 m0, s{T1}, {S2}
s_mul_i32 s{T0}, s{T0}, {8*2560}
s_add_u32 s{T0}, s{T0}, s{T3}
buffer_load_dwordx4 v15, {srd(SRD0)}, s{T0} offen lds"""))
        ta, tb = XR, XR + 1
        RWX, RDX = [RW, BHK[4], BHK[4] + 1, BHK[4] + 2], [RRD, BHK[4] + 3, BHK[4] + 4, BHK[4] + 5]
        setup = [L(f"s_bfe_u32 s{T0}, s{S_W}, 0x10001\nv_xor_b32 v{RW}, v{V_I}, v{V_G}\nv_xor_b32 v{RW}, s{T0}, v{RW}"),
                 L(f"v_lshlrev_b32 v{RW}, 3, v{RW}\nv_lshl_add_u32 v{RW}, v{V_G}, 7, v{RW}"),
                 L(f"v_add_u32 v{RW}, s{S_RA}, v{RW}\ns_lshl_b32 s{T0}, s{S_H}, 2\nv_and_or_b32 v{RRD}, v{V_G}, 1, s{T0}"),
                 L(f"v_xor_b32 v{RRD}, v{RRD}, v{V_I}\nv_lshlrev_b32 v{RRD}, 3, v{RRD}"),
                 L(f"v_lshl_add_u32 v{RRD}, v{V_I}, 7, v{RRD}\nv_mul_u32_u24 v{ta}, 12288, v{V_G}"),
                 L(f"s_mul_i32 s{T0}, s{S_TG}, {SLOT}\ns_add_u32 s{T0}, s{T0}, {SLOT}\nv_add3_u32 v{RRD}, v{RRD}, v{ta}, s{T0}\n"
                   f"s_lshl_b32 s{T0}, s{S_H}, 2\nv_add_u32 v{ta}, s{T0}, v{V_G}"),
                 L(f"v_mul_u32_u24 v{V_OUT}, 2560, v{ta}\nv_lshl_add_u32 v{V_OUT}, v{V_I}, 3, v{V_OUT}"),
                 L(f"v_lshlrev_b32 v{V_XA}, 7, v{ta}\nv_lshl_add_u32 v{V_XA}, v{V_I}, 3, v{V_XA}"),
                 L(f"v_add_u32 v{V_XA}, {S2}, v{V_XA}\nv_and_b32 v{ta}, 1, v{V_LANE}"),
                 L(f"v_lshlrev_b32 v{ta}, 4, v{ta}\nv_mov_b32 v{tb}, 0x3f80"), L(f"v_lshlrev_b32 v{ta}, v{ta}, v{tb}")]
        setup2 = [[f"v_xor_b32 v{RWX[k]}, {32*k}, v{RW}", f"v_xor_b32 v{RDX[k]}, {8*k}, v{RRD}"] for k in (1, 2, 3)]
        for c in range(4):
            for hh in range(2):
                k = (3 << (4 * c + 2 * hh)) * 0x10001
                setup.append(L(f"""s_mov_b32 s{S_M0}, {hex(k)}
s_mov_b32 s{S_M0+1}, {hex(k)}
v_cndmask_b32 v{SEL+4*c+hh}, 0, v{ta}, s[{S_M0}:{S_M0+1}]
v_cndmask_b32 v{SEL+4*c+hh+2}, 0, v{ta}, s[{S_M0}:{S_M0+1}]"""))
        slow = []
        if typ == 1:
            hd = [g for g in self.blk if isd(g) and any(f"@t h{k} " in x for x in g for k in range(8, 12))]
            od = [g for g in self.blk if isd(g) and g not in hd]
            now = [g for g in self.blk if g not in od]
            self.e(self.flag_check(0)); self.e(self.stamp(13))
            k = self.o.get("nod", 3)
            for g in first + now + od[:k]: self.e(g)
            self.e(self.publish(typ))
            slow = od[k:] + xd; fill = setup
        else:
            self.e(self.flag_setup(n))
            for g in self.cut(self.o.get("npre", 5)): self.e(g)
            self.e(self.publish(typ))
            for g in xd + self.cut(sum(map(isd, self.blk)) - 2): self.e(g)
            self.e(self.flag_issue(0))
            for g in self.blk + setup: self.e(g)
            self.e(self.flag_check(0)); self.e(self.stamp(13))
            for g in first: self.e(g)
            fill = []
        self.e(self.stamp(5))
        def write(j, t):
            d = ACC + 16 * j + 4 * t
            return [f"v_cvt_pk_bf16_f32 v{d}, v{d}, v{d+1}", f"v_cvt_pk_bf16_f32 v{d+1}, v{d+2}, v{d+3}",
                    f"@t w{j} ds_write_b64 v{RWX[t]}, v[{d}:{d+1}] offset:{(j&1)*SLOT + 2048*(j>>1) + 512*t}"]
        def xread(m):
            C = ACC + 32 * m + 16
            return [f"v_add_u32 v{V_XB}, s{S_O+3+m}, v{V_XA}", f"@t x{m} ds_read_b64 v[{C+4}:{C+5}], v{V_XB}"]
        def reads(m):
            T = ACC + 32 * m
            return [[f"@t p{m}_{c} ds_read_b64 v[{T+4*c+2*u}:{T+4*c+2*u+1}], v{RDX[c]} offset:{2048*m + 6144*u}" for u in range(2)] for c in range(4)]
        def unpack(m, x):
            C = ACC + 32 * m + 16
            return [[f"@wl x{m}", f"v_lshlrev_b32 v{C}, 16, v{x}", f"v_and_b32 v{C+1}, 0xffff0000, v{x}"],
                    [f"v_lshlrev_b32 v{C+2}, 16, v{x+1}", f"v_and_b32 v{C+3}, 0xffff0000, v{x+1}"]]
        def redm(m, C=None):
            T = ACC + 32 * m; C = T + 16 if C is None else C
            return [[f"@wl p{m}_{c}", mfma(C, SEL + 4 * c, T + 4 * c)] for c in range(4)]
        def fin(m, C=None):
            C = ACC + 32 * m + 16 if C is None else C
            return [f"v_cvt_pk_bf16_f32 v{C}, v{C}, v{C+1}", f"v_cvt_pk_bf16_f32 v{C+1}, v{C+2}, v{C+3}",
                    f"buffer_store_dwordx2 v[{C}:{C+1}], v{V_OUT}, {srd(SRDOUT)}, s{S_O+m} offen" + ["", " sc1", " nt", " sc0 sc1", " sc1 nt"][self.o.get("ost", 0)]]
        pp = self.o.get("pprio", 1); M = n // 2 - 1; CL = BHK[3]
        nq = len(seq)
        bk = self.o.get("bk", 7)
        wr = []
        for q in range(nq):
            j, ks = seq[q]; r = STG + 4 * (q % NS)
            if q == q2: self.e(self.stamp(6)); fill = list(setup2)
            if q < 6: self.e(f"@wl r{2*q+1}")
            if q2 <= q < q2 + 3: self.e(f"@wl r{[13, 15, 16][q-q2]}")
            if q > q2 and ks == 6: wr = [[], []] + [write(j - 1, t) for t in range(4)]
            if pp == 1 and q % 3 == 0: self.e(f"s_setprio {3 - ((q // 3) & 3)}" if q < nq - 12 else f"s_setprio {(nq - q) // 3 - 1}")
            if pp == 2 and q % 6 == 0 and q < q2: self.e(f"s_setprio {3 - (q * 4) // q2}")
            if q == nq - 1:
                for g in fill: self.e(g)
                fill = []
            self.e(f"@wv a{q}")
            for t in range(4):
                self.e(mfma(ACC + 16 * j + 4 * t, BHK[ks % 6] + 4 * t, r, "0" if ks == 0 else None))
                g = wr.pop(0) if wr else []
                self.e(g)
                if fill and not g: self.e(fill.pop(0))
                if fill and q2 - 6 <= q < q2 + 2: self.e(fill.pop(0))
                if t == 1 and slow: self.e(slow.pop(0))
            if q == q2 - 6: assert not slow; fill += self.b2_read([12, 13])
            if q == q2 - 5: fill += self.b2_read([14, 15])
            if q == q2 - 4: fill += self.b2_read([16])
            if q + NS == q2 - lead: self.e(self.flag_issue(1))
            if q + NS == q2: self.e(self.flag_check(1))
            if q + NS < nq: self.e(issue(q + NS))
            if q == q2 - 1: assert not fill
            if q > q2 and ks == bk and j >= 2 and not (j & 1):
                m = j // 2 - 1
                for g in fill: self.e(g)
                self.e(f"@wl w{j-1}\ns_barrier")
                if m == M - 1: self.e(self.stamp(15))
                rd = reads(m); up = unpack(m, ACC + 32 * m + 20)
                self.e(xread(m)); self.e(rd[0])
                fill = [rd[1], rd[2], rd[3] + up[0], up[1]] + redm(m)
                if m == M - 1:
                    fill[0] = fill[0] + [f"v_add_u32 v{V_XB}, s{S_O+3+M}, v{V_XA}", f"@t x{M} ds_read_b64 v[{XR}:{XR+1}], v{V_XB}"]
                    fill += [[f"@wl x{M}", f"v_lshlrev_b32 v{CL}, 16, v{XR}", f"v_and_b32 v{CL+1}, 0xffff0000, v{XR}"],
                             [f"v_lshlrev_b32 v{CL+2}, 16, v{XR+1}", f"v_and_b32 v{CL+3}, 0xffff0000, v{XR+1}"]]
                else: fill += [[], []]
                fill += [fin(m)]
        self.e(self.stamp(14))
        for t in range(4): self.e(write(n - 1, t))
        self.e(f"@wl w{n-1}\ns_barrier")
        for g in reads(M) + redm(M, CL): self.e(g)
        self.e(fin(M, CL))
        self.e(self.stamp(7))
        if self.o.get("fixdur"):
            lp = self.lab("fix")
            self.e(f"{lp}:\ns_memrealtime s[{S_TS}:{S_TS+1}]\ns_waitcnt lgkmcnt(0)\ns_sub_u32 s{S_TS}, s{S_TS}, s{S_NONCE}\ns_cmp_lt_u32 s{S_TS}, {self.o['fixdur']}\ns_cbranch_scc1 {lp}")
        if self.diag:
            self.e(f"""s_lshl_b32 s{T0}, s2, 3
s_add_u32 s{T0}, s{T0}, s{S_W}
s_lshl_b32 s{T0}, s{T0}, 8
s_add_u32 s{T0}, s{T0}, {STAMP_BASE}
v_lshlrev_b32 v{V_L16}, 2, v{V_LANE}
buffer_store_dword v0, v{V_L16}, {srd(SRDWS)}, s{T0} offen""")
        self.e("s_endpgm")

    def kperm(self, dst, rho, t):
        self.e(f"""v_and_b32 v{dst}, 35, v{rho}
v_bfe_u32 v{t}, v{rho}, 2, 2
v_lshl_add_u32 v{dst}, v{t}, 3, v{dst}
v_bfe_u32 v{t}, v{rho}, 4, 1
v_lshl_add_u32 v{dst}, v{t}, 2, v{dst}""")
    def pfa(self):
        a, b, c = TA, TB, TC
        lo, n = self.o.get("pflo", 1), self.o.get("pfn", 0)
        if n == 0: return
        lw, le = self.lab("pfw"), self.lab("pfe")
        self.e(f"""s_cmp_ge_u32 s{S_H}, {n}
s_cbranch_scc1 {le}
s_add_u32 s{T0}, s{S_H}, {lo}
s_cmp_eq_u32 s{S_TG}, 1
s_cbranch_scc1 {lw}
s_lshl_b32 s{T0}, s{T0}, 7
s_and_b32 s{T1}, s{S_MT}, 7
s_lshl_b32 s{T1}, s{T1}, 1
s_bfe_u32 s{T2}, s2, 0x10006
s_add_u32 s{T1}, s{T1}, s{T2}
s_mul_i32 s{T1}, s{T1}, {64*2560}
s_add_u32 s{T0}, s{T0}, s{T1}
s_lshr_b32 s{T1}, s{S_MT}, 3
s_mul_i32 s{T1}, s{T1}, 1280
s_add_u32 s{T0}, s{T0}, s{T1}
v_mul_u32_u24 v{a}, 2560, v{V_LANE}
@x buffer_load_dword v{V_PFD}, v{a}, {srd(SRD0)}, s{T0} offen
s_branch {le}
{lw}:
s_mov_b32 s{SRDPF}, s{P_WQKV}
s_mov_b32 s{SRDPF+1}, s{P_WQKV+1}
s_mov_b32 s{SRDPF+2}, {640*3840}
s_mov_b32 s{SRDPF+3}, 0x20000
s_lshl_b32 s{T0}, s{T0}, 4
s_bfe_u32 s{T1}, s2, 0x40003
s_add_u32 s{T0}, s{T0}, s{T1}
s_mul_i32 s{T0}, s{T0}, {4*3840}
s_and_b32 s{T1}, s2, 3
s_mul_i32 s{T1}, s{T1}, 5
s_lshr_b32 s{T1}, s{T1}, 1
s_lshl_b32 s{T1}, s{T1}, 7
s_add_u32 s{T0}, s{T0}, s{T1}
v_mul_u32_u24 v{a}, 86, v{V_LANE}
v_lshrrev_b32 v{a}, 8, v{a}
v_mul_u32_u24 v{a}, {1280-384}, v{a}
v_lshl_add_u32 v{a}, v{V_LANE}, 7, v{a}
s_mov_b32 exec_hi, 15
@x buffer_load_dword v{V_PFD}, v{a}, {srd(SRDPF)}, s{T0} offen
s_mov_b32 exec_hi, -1
{le}:""")
    def side_loads(self):
        a, b, c, d = TA, TB, TC, TD
        self.e(f"""v_lshrrev_b32 v{c}, 5, v{V_LANE}
v_and_b32 v{d}, 31, v{V_LANE}
v_lshlrev_b32 v{V_RST}, 4, v{c}
v_lshl_add_u32 v{V_RST}, v{d}, 25, v{V_RST}
v_mul_u32_u24 v{c}, 2560, v{c}
v_lshl_add_u32 v{a}, v{d}, 4, v{c}
v_lshl_add_u32 v{b}, v{d}, 3, v{c}
s_and_b32 s{T0}, s2, 3
s_lshl_b32 s{T1}, s{T0}, 7
s_and_b32 s{T2}, s2, 0x78
s_add_u32 s{T1}, s{T1}, s{T2}
s_add_u32 s{T1}, s{T1}, s{S_W}
s_lshl_b32 s{T1}, s{T1}, 1
s_bfe_u32 s{T2}, s2, 0x10002
s_lshl_b32 s{T3}, s{T2}, 10
s_add_u32 s{T3}, s{T3}, s{T1}
s_lshl_b32 s{S_ROWS}, s{T3}, 4
s_add_u32 s{S_ROWS}, s{S_ROWS}, {ROWT}
s_mul_i32 s{T1}, s{T1}, 2560
s_mul_i32 s{T3}, s{T2}, 1280
s_add_u32 s{T1}, s{T1}, s{T3}
buffer_load_dwordx4 v[{RX}:{RX+3}], v{a}, {srd(SRD0)}, s{T1} offen
buffer_load_dwordx4 v[{RX+4}:{RX+7}], v{a}, {srd(SRD0)}, s{T1} offen offset:512
@t rows buffer_load_dwordx2 v[{RX+8}:{RX+9}], v{b}, {srd(SRD0)}, s{T1} offen offset:1024
s_bfe_u32 s{T1}, s2, 0x40003
s_min_u32 s{T1}, s{T1}, 14
s_mul_i32 s{T3}, s{T1}, 86
s_lshr_b32 s{T3}, s{T3}, 8
s_mul_i32 s{T3}, s{T3}, 7
s_add_u32 s{T3}, s{T3}, s{T1}
s_mul_i32 s{T4}, s{T0}, 5
s_lshr_b32 s{T4}, s{T4}, 1
s_add_u32 s{T3}, s{T3}, s{T4}
s_mul_i32 s{T4}, s{T0}, 6
s_add_u32 s{T4}, s{T4}, s{T1}
s_sub_u32 s{T4}, s{T4}, 9
s_cmp_lt_u32 s{T1}, 9
s_cselect_b32 s{SRDC}, s{P_WQKV}, s{P_W1}
s_cselect_b32 s{SRDC+1}, s{P_WQKV+1}, s{P_W1+1}
s_cselect_b32 s{T3}, s{T3}, s{T4}
s_cselect_b32 s{T4}, 0, 30
s_cselect_b32 s{TF}, 15, 12
s_lshl_b32 s{TF}, s{TF}, 8
s_mul_i32 s{SRDC+2}, s{TF}, 640
s_mov_b32 s{SRDC+3}, 0x20000
s_add_u32 s{T4}, s{T4}, s{T3}
s_lshl_b32 s{T4}, s{T4}, 3
s_add_u32 s{T4}, s{T4}, s{S_W}
s_lshl_b32 s{T4}, s{T4}, 7
s_lshl_b32 s{S_COLS}, s{T2}, 3
s_add_u32 s{S_COLS}, s{S_COLS}, s{T4}
s_add_u32 s{S_COLS}, s{S_COLS}, {COLT}
s_lshl_b32 s{T2}, s{T2}, 3
s_add_u32 s{T2}, s{T2}, s{S_W}
s_lshl_b32 s{T2}, s{T2}, 3
s_mul_i32 s{T2}, s{T2}, s{TF}
s_lshl_b32 s{T3}, s{T3}, 7
s_add_u32 s{T2}, s{T2}, s{T3}
v_lshrrev_b32 v{a}, 3, v{V_LANE}
v_mul_lo_u32 v{a}, v{a}, s{TF}
v_and_b32 v{b}, 7, v{V_LANE}
v_lshl_add_u32 v{a}, v{b}, 4, v{a}
s_lshl_b32 s{TF}, s{TF}, 7""")
        for k in range(5):
            self.e(f"@t side buffer_load_dwordx4 v[{CW[k]}:{CW[k]+3}], v{a}, {srd(SRDC)}, s{T2} offen")
            if k < 4: self.e(f"s_add_u32 s{T2}, s{T2}, s{TF}")
    def b2_pf(self):
        a = TA; al = self.o.get("pfwho", 1) == 2; k = 1 if al else 2
        self.e(f"""s_and_b32 s{T2}, s2, {255 if al else 127}
s_mul_i32 s{T0}, s{T2}, 6
s_add_u32 s{T0}, s{T0}, s{S_W}
s_mul_i32 s{T0}, s{T0}, {1280*k}
s_lshl_b32 s{T1}, s{T2}, 1
s_add_u32 s{T1}, s{T1}, s{S_W}
s_sub_u32 s{T1}, s{T1}, 6
s_mul_i32 s{T1}, s{T1}, {13*128*k}
s_cmp_lt_u32 s{S_W}, 6
s_cselect_b32 s{SRDPF}, s{SRDW2}, s{SRDWO}
s_cselect_b32 s{SRDPF+1}, s{SRDW2+1}, s{SRDWO+1}
s_cselect_b32 s{SRDPF+2}, s{SRDW2+2}, s{SRDWO+2}
s_mov_b32 s{SRDPF+3}, 0x20000
s_cselect_b32 s{S_PFC}, s{T0}, s{T1}
s_cselect_b32 s{T1}, {10*k}, {13*k}
v_lshlrev_b32 v{V_PF}, 7, v{V_LANE}
v_mov_b32 v{a}, {hex(OOB)}
v_cmp_gt_u32 s[{S_M1}:{S_M1+1}], s{T1}, v{V_LANE}
v_cndmask_b32 v{V_PF}, v{a}, v{V_PF}, s[{S_M1}:{S_M1+1}]""")
        self.pfl = [f"buffer_load_dword v{V_PFD}, v{V_PF}, {srd(SRDPF)}, s{S_PFC} offen"]
    def min_init(self, kind):
        a, b, c, d = TA, TB, TC, TD
        self.e(f"""v_lshrrev_b32 v{V_G}, 4, v{V_LANE}
v_and_b32 v{V_I}, 15, v{V_LANE}
v_lshlrev_b32 v{V_L16}, 4, v{V_LANE}
v_lshrrev_b32 v{a}, 1, v{V_I}
v_xor_b32 v{a}, v{a}, v{V_G}
v_lshlrev_b32 v{a}, 4, v{a}
v_lshl_add_u32 v{a}, v{V_I}, 7, v{a}
s_lshl_b32 s{T0}, s{S_TG}, 13
v_add_u32 v{V_X0}, s{T0}, v{a}
v_xor_b32 v{V_X1}, 64, v{V_X0}
v_lshrrev_b32 v{a}, 2, v{V_LANE}
v_and_b32 v{b}, 3, v{V_LANE}
v_bfe_u32 v{c}, v{V_LANE}, 3, 2
v_lshlrev_b32 v{V_TRB}, 7, v{a}
v_lshl_add_u32 v{V_TRB}, v{c}, 5, v{V_TRB}
v_lshl_add_u32 v{V_TRB}, v{b}, 3, v{V_TRB}""")
        if kind == "a":
            self.e(f"""v_mul_u32_u24 v{a}, 480, v{a}
s_mul_i32 s{T0}, s{S_H}, 40
s_add_u32 s{T0}, s{T0}, {XREG}
v_add_u32 v{a}, s{T0}, v{a}
v_lshl_add_u32 v{V_W0}, v{b}, 3, v{a}
v_min_u32 v{b}, 2, v{b}
v_mul_u32_u24 v{c}, 160, v{b}
v_add3_u32 v{V_W1}, v{a}, v{c}, 32""")
        else:
            self.e(f"""v_mul_u32_u24 v{a}, 384, v{a}
v_lshl_add_u32 v{a}, v{b}, 3, v{a}
v_add_u32 v{a}, {XREG}, v{a}
s_mul_i32 s{T0}, s{S_H}, 3""")
            for t in range(3):
                self.e(f"""s_add_u32 s{T1}, s{T0}, {t}
s_lshr_b32 s{T2}, s{T1}, 2
s_lshl_b32 s{T2}, s{T2}, 7
s_and_b32 s{T1}, s{T1}, 3
v_xor_b32 v{b}, s{T1}, v{c}
v_lshl_add_u32 v{b}, v{b}, 5, v{a}
v_add_u32 v{[V_W0, V_W1, V_W2][t]}, s{T2}, v{b}""")
    def late_init(self, kind):
        a, b, c, d = TA, TB, TC, TD
        self.mksrd(SRDWS, P_WS, WS_BYTES); self.mksrd(SRDOUT, P_OUT, 2048 * 1280)
        self.e(f"s_mov_b32 s38, {640*1280}\ns_mov_b32 s39, 0x20000\ns_mov_b32 s40, s42\ns_mov_b32 s41, s43\ns_mov_b32 s42, {1536*1280}\ns_mov_b32 s43, 0x20000")
        if kind == "a":
            self.e(f"""s_mul_i32 s{T0}, s{S_W}, {5*REC}
s_add_u32 s{T0}, s{T0}, {L_REC + 256}
v_min_u32 v{a}, 4, v{V_LANE}
v_mul_u32_u24 v{a}, {REC}, v{a}
v_add_u32 v{a}, s{T0}, v{a}
v_mov_b32 v{ACC}, 0
v_mov_b32 v{ACC+1}, 0
ds_write_b64 v{a}, v[{ACC}:{ACC+1}]""")
            his = [V_X0, V_X1, V_W0, V_W1]
            self.e(f"""v_lshlrev_b32 v{c}, 2, v{V_G}
v_sub_u32 v{c}, v{V_I}, v{c}
v_mov_b32 v{VC}, {hex(NEGBIG)}
v_mov_b32 v{MB}, 0
v_mov_b32 v{MB+1}, 0
s_and_b32 s{T0}, s{S_MT}, 7
s_or_b32 s{T0}, s{T0}, s{S_TG}
s_cmp_eq_u32 s{T0}, 0
s_cselect_b64 s[{S_M1}:{S_M1+1}], 0, -1""")
            for r in range(4):
                self.e(f"""v_subrev_u32 v{a}, {r}, v{c}
v_cmp_gt_u32 s[{S_M0}:{S_M0+1}], 8, v{a}
v_mov_b32 v{b}, {hex(0xffff << (16*(r&1)))}
v_cmp_gt_i32 vcc, -8, v{a}
v_cndmask_b32 v{MC+r}, v{VC}, 0, s[{S_M0}:{S_M0+1}]
v_cndmask_b32 v{b}, 0, v{b}, s[{S_M0}:{S_M0+1}]
v_or_b32 v{MB+(r>>1)}, v{MB+(r>>1)}, v{b}
v_cndmask_b32 v{MP+r}, v{VC}, 0, vcc
v_cndmask_b32 v{MP0+r}, v{VC}, v{MP+r}, s[{S_M1}:{S_M1+1}]""")
            self.e(f"v_mov_b32 v{VC}, {hex(f2u(20**-0.5 * LOG2E))}")
            self.e(f"""v_lshrrev_b32 v{a}, 2, v{V_I}
v_min_u32 v{a}, 2, v{a}
v_and_or_b32 v{b}, v{V_I}, 3, 16
v_cmp_eq_u32 s[{S_M0}:{S_M0+1}], 3, v{V_G}
s_lshl_b32 s{T0}, s{S_NT}, 2
s_add_u32 s{T0}, s{T0}, s{S_H}
s_mul_i32 s{T0}, s{T0}, 20
v_cndmask_b32 v{a}, v{V_G}, v{a}, s[{S_M0}:{S_M0+1}]
v_cndmask_b32 v{b}, v{V_I}, v{b}, s[{S_M0}:{S_M0+1}]
v_mul_u32_u24 v{a}, 640, v{a}
v_add3_u32 v{d}, v{a}, v{b}, s{T0}""")
        else:
            his = [V_X0, V_X1, V_W0, V_W1, V_W2]
            self.e(f"""s_lshl_b32 s{T0}, s{S_NT}, 2
s_add_u32 s{T0}, s{T0}, s{S_H}
s_mul_i32 s{T0}, s{T0}, 48
s_add_u32 s{T0}, s{T0}, 1920
v_min_u32 v{d}, 47, v{V_LANE}
v_add_u32 v{d}, s{T0}, v{d}""")
        for r in his: self.e(f"v_add_u32 v{HI[r]}, 0x10000, v{r}")
        lr, le = self.lab("crow"), self.lab("cend")
        self.e(f"""v_lshlrev_b32 v{c}, 2, v{V_LANE}
v_add_u32 v{V_CB}, {L_DUMMY}, v{c}
s_lshl_b32 s{T0}, s{S_H}, 8
s_cmp_eq_u32 s{S_TG}, 0
s_cbranch_scc1 {lr}
v_lshlrev_b32 v{V_CON}, 4, v{d}
v_add_u32 v{V_CON}, {COLT}, v{V_CON}
s_add_u32 s{T0}, s{T0}, {L_CS}
v_add_u32 v{V_CA}, s{T0}, v{c}
v_mov_b32 v{V_CK}, 1.0
s_branch {le}
{lr}:
s_lshl_b32 s{T1}, s{S_H}, 6
v_add_u32 v{a}, s{T1}, v{V_LANE}
v_cmp_gt_u32 vcc, 0x90, v{a}
v_min_u32 v{a}, 0x8f, v{a}
s_add_u32 s{T0}, s{T0}, {L_STAT}
v_add_u32 v{b}, s{T0}, v{c}
v_cndmask_b32 v{V_CA}, v{V_CB}, v{b}, vcc
v_add_u32 v{V_CB}, 640, v{V_CA}
s_and_b32 s{T0}, s{S_MT}, 7
s_lshl_b32 s{T0}, s{T0}, 7
s_sub_u32 s{T0}, s{T0}, 16
v_add_u32 v{a}, s{T0}, v{a}
v_max_i32 v{a}, 0, v{a}
s_lshr_b32 s{T0}, s{S_MT}, 3
s_lshl_b32 s{T0}, s{T0}, 14
s_add_u32 s{T0}, s{T0}, {ROWT}
v_lshl_add_u32 v{V_CON}, v{a}, 4, s{T0}
v_mov_b32 v{V_CK}, 0
{le}:""")
        if kind == "m": self.e(f"""v_and_b32 v{a}, 7, v{V_LANE}
v_and_b32 v{b}, 1, v{V_G}
v_lshlrev_b32 v{b}, 4, v{b}
v_lshl_add_u32 v{b}, v{a}, 5, v{b}
s_lshl_b32 s{T0}, s{S_W}, 8
s_add_u32 s{T0}, s{T0}, {L_CP}
v_add_u32 v{V_CPW}, s{T0}, v{b}
v_lshrrev_b32 v{b}, 3, v{V_LANE}
v_lshlrev_b32 v{c}, 8, v{b}
v_lshl_add_u32 v{c}, v{a}, 2, v{c}
s_lshl_b32 s{T0}, s{S_W}, 5
s_add_u32 s{T0}, s{T0}, {L_CP}
v_add_u32 v{V_CPR}, s{T0}, v{c}
v_lshl_add_u32 v{V_CST}, v{b}, 27, v{V_L16}
v_and_b32 v{b}, 1, v{V_LANE}
v_lshlrev_b32 v{b}, 4, v{b}
v_mov_b32 v{c}, 0x3f80
v_lshlrev_b32 v{c}, v{b}, v{c}
v_lshrrev_b32 v{a}, 1, v{a}""")
        for p in (range(4) if kind == "m" else []):
            self.e(f"v_cmp_eq_u32 s[{S_M0}:{S_M0+1}], {p}, v{a}\nv_cndmask_b32 v{CA+p}, 0, v{c}, s[{S_M0}:{S_M0+1}]")
        self.e(f"""v_lshrrev_b32 v{a}, 3, v{V_LANE}
v_lshlrev_b32 v{b}, 1, v{V_G}
v_and_b32 v{c}, 7, v{V_LANE}
v_xor_b32 v{b}, v{b}, v{c}
v_lshlrev_b32 v{b}, 4, v{b}
v_mul_u32_u24 v{V_B2}, 1280, v{a}
v_add_u32 v{V_B2}, v{V_B2}, v{b}
v_lshrrev_b32 v{c}, 5, v{V_LANE}
v_mul_u32_u24 v{c}, {16*1280}, v{c}
v_add_u32 v{V_B2L}, v{V_B2}, v{c}
s_lshl_b32 s{T0}, s{S_CT}, 7
s_mul_i32 s{S_B2H}, s{S_W}, {192*1280}
s_add_u32 s{S_B2H}, s{S_B2H}, s{T0}
s_mul_i32 s{S_B2O}, s{S_W}, {80*1280}
s_add_u32 s{S_B2O}, s{S_B2O}, s{T0}
s_mul_i32 s{S_RA}, s{S_W}, 6144
s_add_u32 s{S_RB}, s{S_RA}, {2*SLOT}
s_add_u32 s{S_RA}, s{S_RA}, {SLOT}
s_lshl_b32 s{S_RC}, s{S_W}, 12
s_lshl_b32 s{S_A2}, s{S_RT0}, 3
s_add_u32 s{S_A2}, s{S_A2}, s{S_W}
s_mul_i32 s{S_A2}, s{S_A2}, {A2_BLK}""")
    def start(self, kind, nd):
        sk = self.lab("non"); ini = self.o.get("init", 0)
        self.mksrd(SRDDBG, P_DBG, 256)
        if kind == "a":
            self.e(f"""s_or_b32 s{T0}, s2, s{S_W}
s_cmp_lg_u32 s{T0}, 0
s_cbranch_scc1 {sk}
s_or_b32 s{T0}, s{S_M0}, 1
v_mov_b32 v{TA}, s{T0}
s_mov_b64 exec, 1
@x buffer_store_dword v{TA}, off, {srd(SRDDBG)}, 0 sc1
s_mov_b64 exec, -1
{sk}:""")
        self.e(self.stamp(0))
        if kind == "m" and self.o.get("pfirst", 0): self.pfa()
        for g in self.stage(nd, 0): self.e(g)
        if kind == "m":
            if not self.o.get("pfirst", 0): self.pfa()
            self.side_loads()
        self.min_init(kind)
        self.p2_tile(0 if kind == "m" else 1)
        self.late_init(kind)
        for g in self.p2_scalars(6 if kind == "m" else 4): self.e(g)
        if self.o.get("pfwho", 1) in ((0, 2, 3) if kind == "m" else (1, 2)): self.b2_pf()
        if kind == "m":
            for g in self.ms1(nd)[:self.o.get("km", 0)]: self.e(g)
        if kind == "a":
            for g in self.stage(nd, 1)[:self.o.get("k1", 3)]: self.e(g)
    def p2_tile(self, typ):
        m = self.o.get("map", 0)
        if m == 0:
            tab = [[(j & 7, 4 + 6 * (j >> 3)) for j in range(16)],
                   [(j, 0) for j in range(8)] + [(8 + (j >> 2), 4 * (j & 3)) for j in range(8)]][typ]
        else:
            t6 = [(c, 6 * k) for c in range(3) for k in range(4)] + [(c, 6 * k) for c in (3, 4) for k in range(2)]
            t4 = [(c, 24 + 4 * k) for c in range(3) for k in range(2)] + [(c, 12 + 4 * k) for c in (3, 4) for k in range(5)]
            tab = [t6, t4][typ]
        by = [c | ((r // 2) << 4) for c, r in tab]
        w = [sum(by[4 * k + i] << (8 * i) for i in range(4)) for k in range(4)]
        self.e(f"""s_mov_b32 s{S_M1}, {hex(w[0])}
s_mov_b32 s{S_M1+1}, {hex(w[1])}
s_mov_b32 s{T1}, {hex(w[2])}
s_mov_b32 s{T2}, {hex(w[3])}
s_bitcmp1_b32 s2, 6
s_cselect_b32 s{S_M1}, s{T1}, s{S_M1}
s_cselect_b32 s{S_M1+1}, s{T2}, s{S_M1+1}
s_and_b32 s{T0}, s2, 0x38
s_lshr_b64 s[{S_M1}:{S_M1+1}], s[{S_M1}:{S_M1+1}], s{T0}
s_and_b32 s{S_CT}, s{S_M1}, 15
s_bfe_u32 s{S_RT0}, s{S_M1}, 0x40004
s_lshl_b32 s{S_RT0}, s{S_RT0}, 1""")
        if m == 0:
            self.e(f"s_lshl_b32 s{T0}, s{S_XCD}, 4\ns_add_u32 s{S_RT0}, s{S_RT0}, s{T0}")
        else:
            self.e(f"""s_lshr_b32 s{T0}, s{S_XCD}, 1
s_lshl_b32 s{T0}, s{T0}, 5
s_add_u32 s{S_RT0}, s{S_RT0}, s{T0}
s_and_b32 s{T0}, s{S_XCD}, 1
s_mul_i32 s{T0}, s{T0}, 5
s_add_u32 s{S_CT}, s{S_CT}, s{T0}""")

    def gen(self):
        n = NAME + "_kernel"
        a, b, c, d = TA, TB, TC, TD
        self.e(f"""s_memrealtime s[{S_M0}:{S_M0+1}]
s_cmp_ge_u32 s2, 256
s_cbranch_scc1 L_exit
s_load_dwordx16 s[32:47], s[0:1], 0
s_load_dwordx2 s[48:49], s[0:1], 64
v_lshrrev_b32 v{a}, 6, v0
v_and_b32 v{V_LANE}, 63, v0
v_readfirstlane_b32 s{S_W}, v{a}
s_and_b32 s{S_XCD}, s2, 7
s_lshr_b32 s{T0}, s2, 3
s_and_b32 s{S_MT}, s{T0}, 7
s_and_b32 s{T1}, s2, 4
s_lshl_b32 s{T1}, s{T1}, 1
s_or_b32 s{S_MT}, s{S_MT}, s{T1}
s_and_b32 s{S_NT}, s2, 3
s_lshl_b32 s{S_NT}, s{S_NT}, 1
s_bfe_u32 s{T1}, s2, 0x10006
s_or_b32 s{S_NT}, s{S_NT}, s{T1}
s_lshr_b32 s{S_TG}, s{S_W}, 2
s_and_b32 s{S_H}, s{S_W}, 3""")
        if self.diag: self.e("v_mov_b32 v0, 0")
        self.e(f"""v_lshrrev_b32 v{a}, 3, v{V_LANE}
s_and_b32 s{T1}, s{S_W}, 1
s_lshl_b32 s{T1}, s{T1}, 2
v_lshrrev_b32 v{b}, 4, v{V_LANE}
v_or_b32 v{b}, s{T1}, v{b}
v_and_b32 v{c}, 7, v{V_LANE}
v_xor_b32 v{b}, v{b}, v{c}
s_lshl_b32 s{T1}, s{S_W}, 3
v_add_u32 v{a}, s{T1}, v{a}
v_mul_u32_u24 v{a}, 2560, v{a}
v_lshl_add_u32 v{V_DMA[0]}, v{b}, 4, v{a}
s_and_b32 s{T1}, s{S_MT}, 7
s_mul_i32 s{SOU[0]}, s{T1}, {128*2560}
s_lshr_b32 s{T2}, s{S_MT}, 3
s_mul_i32 s{T2}, s{T2}, 1280
s_add_u32 s{SOU[0]}, s{SOU[0]}, s{T2}
s_add_u32 s{SOU[1]}, s{SOU[0]}, {64*2560}
s_mov_b32 s{STEP[0]}, 128
s_lshl_b32 s{T2}, s{S_W}, 10
s_add_u32 s{DD[0]}, s{T2}, 2048
s_add_u32 s{DD[1]}, s{T2}, {2048+8192}
s_add_u32 s{DD[2]}, s{T2}, {XREG}
s_add_u32 s{DD[3]}, s{T2}, {XREG+8192}
s_add_u32 s{DD[4]}, s{T2}, {XREG+16384}
s_add_u32 s{DD[5]}, s{T2}, {XREG+24576}
s_lshl_b32 s{T3}, s{S_W}, 6
@save entry
s_cmp_ge_u32 s2, 128
s_cbranch_scc1 L_mlp""")
        for i in range(2, 6):
            v = V_DMA[i]
            self.e(f"""v_add_u32 v{a}, s{T3}, v{V_LANE}
v_add_u32 v{a}, {512*(i-2)}, v{a}
v_mul_u32_u24 v{b}, 2185, v{a}
v_lshrrev_b32 v{b}, 16, v{b}
v_mul_u32_u24 v{c}, 30, v{b}
v_sub_u32 v{a}, v{a}, v{c}""")
            self.kperm(c, b, d)
            self.e(f"""v_mul_u32_u24 v{v}, 3840, v{c}
v_mul_u32_u24 v{b}, 26, v{a}
v_lshrrev_b32 v{b}, 8, v{b}
v_mul_u32_u24 v{b}, {1280-160}, v{b}
v_lshl_add_u32 v{a}, v{a}, 4, v{b}
v_add_u32 v{v}, v{v}, v{a}""")
        self.e(f"""s_mul_i32 s{SOU[2]}, s{S_NT}, 160
s_mov_b32 s{SOU[5]}, s{SOU[2]}
s_mov_b32 s{STEP[2]}, {64*3840}
s_mov_b32 s{STEP[5]}, {64*3840}
s_waitcnt lgkmcnt(0)""")
        self.mksrd(SRD0, P_X, 2048 * 1280); self.mksrd(SRD1, P_WQKV, 640 * 3840); self.mksrd(SRD2, P_WQKV, 640 * 3840)
        self.e(f"""s_cmp_lt_u32 s{S_W}, 6
s_cbranch_scc1 L_a_go
s_mov_b32 s{SRD2}, s{P_X}
s_mov_b32 s{SRD2+1}, s{P_X+1}
s_mov_b32 s{SRD2+2}, {2048*1280}
v_mov_b32 v{V_DMA[5]}, v{V_DMA[0]}
s_mov_b32 s{STEP[5]}, 128
s_sub_u32 s{DD[5]}, s{T2}, 6144
s_sub_u32 s{SOU[5]}, s{SOU[0]}, {64*2560}
s_cmp_eq_u32 s{T1}, 0
s_cselect_b32 s{SOU[5]}, s{SOU[0]}, s{SOU[5]}
L_a_go:""")
        self.start("a", 6)
        self.e(f"s_cmp_eq_u32 s{S_TG}, 1\ns_cbranch_scc1 L_a1\n@only 0")
        self.main_loop("a0")
        self.e("s_branch L_aepi\nL_a1:\n@only 1")
        self.main_loop("a1")
        self.e("@all\nL_aepi:")
        self.attn_epi()
        self.p2(4, 1)
        self.e(self.slow); self.slow = []
        self.e("L_mlp:\n@load entry")
        for i in range(2, 5):
            v = V_DMA[i]
            self.e(f"""v_add_u32 v{a}, s{T3}, v{V_LANE}
v_add_u32 v{a}, {512*(i-2)}, v{a}
v_mul_u32_u24 v{b}, 2731, v{a}
v_lshrrev_b32 v{b}, 16, v{b}
v_mul_u32_u24 v{c}, 24, v{b}
v_sub_u32 v{a}, v{a}, v{c}""")
            self.kperm(c, b, d)
            self.e(f"""v_mul_u32_u24 v{v}, 3072, v{c}
v_and_b32 v{b}, 6, v{b}
v_xor_b32 v{a}, v{a}, v{b}
v_lshl_add_u32 v{v}, v{a}, 4, v{v}""")
        self.e(f"""s_mul_i32 s{SOU[2]}, s{S_NT}, 384
s_mov_b32 s{STEP[2]}, {64*3072}
s_waitcnt lgkmcnt(0)""")
        self.mksrd(SRD0, P_X, 2048 * 1280); self.mksrd(SRD1, P_W1, 640 * 3072)
        self.start("m", 5)
        self.main_loop("m")
        self.mlp_epi()
        self.p2(6, 0)
        self.e(self.slow); self.slow = []
        self.e("L_exit:\ns_endpgm")
        lines = self.resolve(self.L)
        lines, nn = hz.fix(lines)
        hdr = open("cdna_kernels/" + NAME + ".s.ref").read().split("; Override")[0]
        s = hdr + f"; @launch grid=(256,1,1) block=(512,1,1) lds=163840\n" + TARGET + head(n) + "\n".join(lines) + "\n" + kd(n, 256, 100, 256)
        return s, nn

if __name__ == "__main__":
    diag = "--diag" in sys.argv
    out = [a for a in sys.argv[1:] if not a.startswith("--")]
    opt = {}
    for a in sys.argv[1:]:
        if a.startswith("--") and "=" in a:
            k, v = a[2:].split("="); opt[k] = int(v)
    s, nn = G(diag=diag, **opt).gen()
    open(out[0] if out else "cdna_kernels/" + NAME + ".s", "w").write(s)
    print("nops inserted:", nn, "lines:", s.count("\n"))
```

```python
import sys, math, struct
from asmlib import NAME, kd, head, TARGET
import hz

def f2u(x): return struct.unpack("<I", struct.pack("<f", x))[0]
SPIN = 0x40000
SLOT = 49152; XREG = 18432
S1 = 32768; S2 = 147456
L_STAT = S2; L_CS = S2 + 1280; L_CP = S2 + 2304; L_DUMMY = L_CP; L_REC = S2 + 4352; REC = 272
A2_BLK = 9216; A2_RT = 8 * A2_BLK
FLAG_BASE = 128 * A2_RT
ROWT = FLAG_BASE + 65536; COLT = ROWT + 65536
STAMP_BASE = COLT + 131072
WS_BYTES = STAMP_BASE + 256 * 8 * 256
OOB = 0x40000000
ONE2 = 0x3f803f80; NEGBIG = f2u(-1.0e30); LOG2E = math.log2(math.e)
DPP = "row_mask:0xf bank_mask:0xf"

SRD0, SRD1, SRD2, SRDWS, SRDDBG, SRDOUT, SRDC = 4, 8, 12, 16, 20, 24, 28
P_X, P_WQKV, P_WO, P_W1, P_W2, P_OUT, P_DBG, P_WS = 32, 34, 36, 40, 42, 44, 46, 48
SRDWO, SRDW2, SRDPF = 36, 40, 96
SOU = [50, 51, 52, 52, 52, 53]; STEP = [54, 54, 55, 55, 55, 56]; DD = [57, 58, 59, 60, 61, 62]
S_W, S_MT, S_NT, S_TG, S_H, S_CT, S_RT0, S_NONCE, S_B2H, S_B2O, S_XCD = 63, 64, 65, 66, 67, 68, 69, 70, 71, 72, 73
S_RA, S_RB, S_RC, S_ROWS, S_COLS, S_A2, S_DELTA, S_FL = 74, 75, 76, 77, 78, 79, 80, 87
T0, T1, T2, T3, T4, TF = 81, 82, 83, 84, 85, 86
S_M0, S_M1, S_TS = 88, 90, 92
S_PFC = 3
V_LANE, V_L16, V_B2, V_B2L, V_G, V_I, V_TRB = 1, 2, 3, 4, 5, 6, 7
V_X0, V_X1, V_W0, V_W1, V_W2 = 8, 9, 12, 14, 173
HI = {V_X0: 10, V_X1: 11, V_W0: 13, V_W1: 15, V_W2: 174}
AR = 8
V_FA, V_FD = 12, 13
ACC = 16; SETA, SETB = 96, 132
V_DMA = [168, 168, 169, 170, 171, 172]
BHK = [176, 192, 208, 224, 240, 160]
RX = 176
V_NON = 181
RU = 182
RS = 192
CW = 198
CA = 210
CD = 214
V_CPW, V_CPR, V_CST, V_RST = 218, 219, 220, 221
V_CON, V_CA, V_CB, V_CK = 222, 223, 224, 225
CC = 226
V_PF, V_PFD = 234, 235
TA, TB, TC, TD = 236, 237, 238, 239
MC, MP, MP0, MB, VC = 240, 244, 248, 252, 254

def L(s): return [x.strip() for x in s.strip("\n").split("\n") if x.strip()]
def mfma(d, a, b, c=None):
    c = f"v[{d}:{d+3}]" if c is None else (c if isinstance(c, str) else f"v[{c}:{c+3}]")
    return f"v_mfma_f32_16x16x32_bf16 v[{d}:{d+3}], v[{a}:{a+3}], v[{b}:{b+3}], {c}"
def pk(op, d, *src, neg=None):
    ops = []; lo = []; hi = []
    for x in src:
        if isinstance(x, tuple): r = x[1]; ops.append(f"v[{r & ~1}:{(r & ~1) + 1}]"); lo.append(r & 1); hi.append(r & 1)
        elif isinstance(x, str): ops.append(x); lo.append(0); hi.append(0)
        else:
            assert x % 2 == 0; ops.append(f"v[{x}:{x+1}]"); lo.append(0); hi.append(1)
    assert d % 2 == 0
    f = lambda l: "[" + ",".join(map(str, l)) + "]"
    t = f"v_pk_{op}_f32 v[{d}:{d+1}], " + ", ".join(ops) + f" op_sel:{f(lo)} op_sel_hi:{f(hi)}"
    if neg: t += f" neg_lo:{f(neg)} neg_hi:{f(neg)}"
    return t
def srd(r): return f"s[{r}:{r+3}]"
def merge(main, groups, start, step):
    out = []; g = list(groups); nxt = start
    for i, x in enumerate(main):
        out.append(x)
        while g and i >= nxt:
            out += g.pop(0); nxt += step
    for x in g: out += x
    return out

def pace(main, groups, start, end):
    w = [4 if any("buffer_" in x for x in g) else 1 for g in groups]
    tot = sum(w); pos = {}; acc = 0
    for g, k in zip(groups, w):
        pos.setdefault(start + int(acc * (end - start) / tot), []).append(g); acc += k
    out = []
    for i, x in enumerate(main):
        out.append(x)
        for g in pos.get(i, []): out += g
    return out

class G:
    def __init__(self, diag=False, **opt):
        self.L = []; self.slow = []; self.diag = diag; self.o = opt; self.uid = 0
    def e(self, s):
        self.L += L(s) if isinstance(s, str) else list(s)
    def lab(self, p):
        self.uid += 1; return f"L_{p}_{self.uid}"
    def mksrd(self, r, ptr, nbytes):
        self.e(f"s_mov_b32 s{r}, s{ptr}\ns_mov_b32 s{r+1}, s{ptr+1}\ns_mov_b32 s{r+2}, {nbytes}\ns_mov_b32 s{r+3}, 0x20000")
    def stamp(self, idx):
        if not self.diag: return []
        return L(f"""s_memrealtime s[{S_TS}:{S_TS+1}]
s_memtime s[{S_TS+2}:{S_TS+3}]
s_waitcnt lgkmcnt(0)
v_writelane_b32 v0, s{S_TS}, {idx}
v_writelane_b32 v0, s{S_TS+2}, {idx+16}""")
    def resolve(self, lines):
        out = []; vm = lg = 0; tv = {}; tl = {}; saved = {}
        for x in lines:
            if x.startswith("@save"): saved[x.split()[1]] = (vm, lg, dict(tv), dict(tl)); continue
            if x.startswith("@load"):
                vm, lg, tv, tl = saved[x.split()[1]]; tv = dict(tv); tl = dict(tl); continue
            if x.startswith("@x "): out.append(x[3:]); continue
            if x.startswith("@wv"):
                p = x.split(None, 2); out.append(f"s_waitcnt vmcnt({min(63, vm - tv[p[1]])}) {p[2] if len(p) > 2 else ''}".strip()); continue
            if x.startswith("@wl"):
                p = x.split(); out.append(f"s_waitcnt lgkmcnt({min(15, lg - tl[p[1]])})"); continue
            tag = None
            if x.startswith("@t "): _, tag, x = x.split(None, 2)
            if x.startswith("buffer_"):
                vm += 1
                if tag: tv[tag] = vm
            elif x.startswith("ds_"):
                lg += 1
                if tag: tl[tag] = lg
            out.append(x)
        return [x if x.endswith(":") else "  " + x for x in out]
    def spin(self, check, reload_):
        sl, bk, lp = self.lab("slow"), self.lab("back"), self.lab("lp")
        self.slow += [f"{sl}:", f"s_mov_b32 s{TF}, 0", f"{lp}:", f"s_add_u32 s{TF}, s{TF}, 1", f"s_cmp_gt_u32 s{TF}, {SPIN}",
                      f"s_cbranch_scc1 {bk}", "s_sleep 1"] + ["@x " + x for x in reload_] + ["s_waitcnt vmcnt(0)"] + check + \
                     [f"s_cbranch_vccnz {lp}", f"s_branch {bk}"]
        return check + [f"s_cbranch_vccnz {sl}", f"{bk}:"]

    def u_dma(self, i, st):
        r = [SRD0, SRD0, SRD1, SRD1, SRD1, SRD2][i]
        o = [f"s_add_u32 m0, s{DD[i]}, {(st % 3) * SLOT}",
             f"@t s{st} buffer_load_dwordx4 v{V_DMA[i]}, {srd(r)}, s{SOU[i]} offen lds"]
        if i in (0, 1, 4, 5) and st < 9: o.append(f"s_add_u32 s{SOU[i]}, s{SOU[i]}, s{STEP[i]}")
        return o
    def stage(self, nd, st): return [self.u_dma(i, st) for i in range(nd)]
    def lds(self, reg, off): return f"v{reg} offset:{off}" if off < 65536 else f"v{HI[reg]} offset:{off-65536}"
    def p1_mfmas(self, kind, S, final=False, c=None):
        o = []
        if kind == "m":
            for j in range(1, 5):
                for t in range(3): o.append(mfma(ACC + 16 * j + 4 * t, S + 20 + 4 * t, S + 4 * j, c))
            return o
        jf = [(j, f) for j in (range(5) if kind == "a0" else range(1, 5)) for f in range(4) if (j, f) != (0, 0)]
        if final and kind == "a0": jf = [(4, 1), (4, 2), (4, 3)] + [x for x in jf if x not in ((4, 1), (4, 2), (4, 3))]
        for j, f in jf:
            w, x = S + 20 + 4 * f, S + 4 * j
            o.append(mfma(ACC + 16 * j + 4 * f, *((x, w) if f == 2 else (w, x)), c))
        return o
    def u_reads(self, kind, S, st, kk):
        xs = []; ws = []; sb = (st % 3) * SLOT; vx = [V_X0, V_X1][kk]
        for j in (range(5) if kind == "a0" else range(1, 5)):
            xs.append(f"ds_read_b128 v[{S+4*j}:{S+4*j+3}], {self.lds(vx, sb + 2048*j)}")
        for f in range(3 if kind == "m" else 4):
            for hf in range(2):
                r = S + 20 + 4 * f + 2 * hf; row = hf * 16 + kk * 32
                if kind == "m": a = self.lds([V_W0, V_W1, V_W2][f], sb + row * 384)
                elif f < 3: a = self.lds(V_W0, sb + row * 480 + 160 * f)
                else: a = self.lds(V_W1, sb + row * 480)
                ws.append(f"ds_read_b64_tr_b16 v[{r}:{r+1}], {a}")
        return [xs[0]] + ws + xs[1:]
    def u_phase(self, mf, reads, fill, dm, prios, last):
        reads = list(reads); n = len(mf)
        span = (n * 3) // 4 - 1 if last else n - 2
        dpos = {}
        for k in range(len(dm)): dpos.setdefault((k * span) // len(dm), []).append(dm[k])
        pend = []
        for idx, m in enumerate(mf):
            if prios and idx == 0: self.e(f"s_setprio {prios[0]}")
            if prios and idx == n // 2: self.e(f"s_setprio {prios[1]}")
            self.e(m); self.e(pend); pend = []
            if reads: self.e(reads.pop(0))
            budget = 2
            while fill and budget > 0 and not (last and idx > span):
                g = fill.pop(0); self.e(g); budget -= max(1, sum(1 for x in g if x.startswith(("v_", "ds_", "@t"))))
            ds = dpos.get(idx, [])
            for q, lines in enumerate(ds):
                bi = [i for i, x in enumerate(lines) if "buffer_" in x][0]
                if q == len(ds) - 1 and idx < n - 1: self.e(lines[:bi]); pend = lines[bi:]
                else: self.e(lines)
        assert not pend and not reads

    def wsum(self, r, t):
        return [[f"v_add_f32_dpp v{r}, v{r}, v{r} {k} {DPP}", "s_nop 0"] for k in ("quad_perm:[1,0,3,2]", "quad_perm:[2,3,0,1]", "row_half_mirror", "row_mirror")] + self.gsum(r, t)
    def gsum(self, r, t):
        return [[x] for x in L(f"""v_mov_b32 v{t}, v{r}
v_permlane16_swap_b32 v{r}, v{t}
v_add_f32 v{r}, v{r}, v{t}
v_mov_b32 v{t}, v{r}
v_permlane32_swap_b32 v{r}, v{t}
v_add_f32 v{r}, v{r}, v{t}""")]
    def prod1(self):
        s, q, t = RS, RS + 2, RS + 4
        o = [[mfma(CD, CA, CW, "0")], [mfma(CD, CA, CW + 4)], [mfma(CD, CA, CW + 8)]]
        for k in range(5): o += [[f"v_lshlrev_b32 v{RU+2*k}, 16, v{RX+k}"], [f"v_and_b32 v{RU+2*k+1}, 0xffff0000, v{RX+k}"]]
        o += [[f"v_add_f32 v{s}, v{RU}, v{RU+1}"], [f"v_add_f32 v{t}, v{RU+2}, v{RU+3}"]]
        for k in range(4, 10): o.append([f"v_add_f32 v{[s, t][k & 1]}, v{[s, t][k & 1]}, v{RU+k}"])
        for r in range(4): o.append([f"v_add_f32_dpp v{CD+r}, v{CD+r}, v{CD+r} row_ror:8 {DPP}"])
        o += [[f"v_add_f32 v{s}, v{s}, v{t}"], [f"ds_write_b128 v{V_CPW}, v[{CD}:{CD+3}]"]]
        o += self.wsum(s, t)
        o.append([f"v_mul_f32 v{s}, {hex(f2u(1.0/640))}, v{s}"])
        for k in range(10): o.append([f"v_sub_f32 v{RU+k}, v{RU+k}, v{s}"])
        o += [[f"v_mul_f32 v{q}, v{RU}, v{RU}"], [f"v_mul_f32 v{t}, v{RU+1}, v{RU+1}"]]
        for k in range(2, 10): o.append([f"v_fmac_f32 v{[q, t][k & 1]}, v{RU+k}, v{RU+k}"])
        o.append([f"v_add_f32 v{q}, v{q}, v{t}"])
        o += self.wsum(q, t)
        o += [[x] for x in L(f"""v_mul_f32 v{q}, {hex(f2u(1.0/640))}, v{q}
v_cvt_pk_bf16_f32 v{t}, v{s}, v{q}
v_lshlrev_b32 v{s}, 16, v{t}
v_and_b32 v{q}, 0xffff0000, v{t}
v_xor_b32 v{s}, 0x80000000, v{s}
v_add_f32 v{q}, {hex(f2u(1e-5))}, v{q}
v_cvt_pk_bf16_f32 v{t}, v{q}, v{q}
v_and_b32 v{q}, 0xffff0000, v{t}
v_sqrt_f32 v{q}, v{q}
v_cvt_pk_bf16_f32 v{t}, v{q}, v{q}
v_and_b32 v{q}, 0xffff0000, v{t}
v_rcp_f32 v{q}, v{q}""")]
        return o
    def prod2(self):
        ld = f"buffer_load_dword v{V_NON}, off, {srd(SRDDBG)}, 0 sc1"
        a = [[f"ds_read_b32 v{CD}, v{V_CPR}"],
             self.spin([f"v_cmp_eq_u32 vcc, 0, v{V_NON}"], [ld]) + [f"v_readfirstlane_b32 s{S_NONCE}, v{V_NON}"]]
        b = [[f"v_add_f32_dpp v{CD}, v{CD}, v{CD} row_ror:8 {DPP}"], [f"v_mov_b32 v{CD+1}, v{V_NON}"]] + self.gsum(CD, CD + 2)
        b += [[f"buffer_store_dwordx2 v[{CD}:{CD+1}], v{V_CST}, {srd(SRDWS)}, s{S_COLS} offen sc1"]]
        c = [[f"v_mov_b32 v{RS+1}, v{V_NON}"], [f"v_mov_b32 v{RS+3}, v{V_NON}"],
             [f"buffer_store_dwordx4 v[{RS}:{RS+3}], v{V_RST}, {srd(SRDWS)}, s{S_ROWS} offen sc1"]]
        return a, b, c
    def cons_loads(self):
        return [f"buffer_load_dwordx4 v[{CC}:{CC+3}], v{V_CON}, {srd(SRDWS)}, 0 offen sc1",
                f"buffer_load_dwordx4 v[{CC+4}:{CC+7}], v{V_CON}, {srd(SRDWS)}, 0 offen offset:16 sc1"]
    def cons(self):
        chk = L(f"""v_cmp_ne_u32 vcc, s{S_NONCE}, v{CC+1}
v_cmp_ne_u32 s[{S_M0}:{S_M0+1}], s{S_NONCE}, v{CC+3}
v_cmp_ne_u32 s[{S_M1}:{S_M1+1}], s{S_NONCE}, v{CC+5}
s_or_b64 vcc, vcc, s[{S_M0}:{S_M0+1}]
v_cmp_ne_u32 s[{S_M0}:{S_M0+1}], s{S_NONCE}, v{CC+7}
s_or_b64 vcc, vcc, s[{S_M1}:{S_M1+1}]
s_or_b64 vcc, vcc, s[{S_M0}:{S_M0+1}]""")
        return [["@wv con"] + self.spin(chk, self.cons_loads()),
                [f"v_add_f32 v{CC+4}, v{CC+4}, v{CC+6}"], [f"ds_write_b32 v{V_CB}, v{CC+2}"], [f"v_add_f32 v{CC+4}, v{CC+4}, v{CC+2}"],
                [f"v_fmac_f32 v{CC}, v{V_CK}, v{CC+4}"], [f"ds_write_b32 v{V_CA}, v{CC}"]]

    def b2_dma(self, n, tag=None):
        if n < 16: r, base, ro, v = SRDW2, S_B2H, 48 * (n >> 2) + 8 * (n & 3), V_B2
        elif n < 24:
            m = n - 16; r, base, ro, v = SRDW2, S_B2H, 96 * (m >> 2) + 32 + 48 * (m & 1) + 8 * ((m >> 1) & 1), V_B2
        elif n < 32:
            m = n - 24; r, base, ro, v = SRDWO, S_B2O, 40 * (m >> 2) + 20 * (m & 1) + 8 * ((m >> 1) & 1), V_B2
        else: r, base, ro, v = SRDWO, S_B2O, 16 + 40 * (n - 32), V_B2L
        reg, off = self.b2_place(n >> 1)
        return [f"s_add_u32 m0, s{reg}, {off + 1024 * (n & 1)}", f"s_add_u32 s{TF}, s{base}, {ro*1280}",
                f"@t h{n>>1} buffer_load_dwordx4 v{v}, {srd(r)}, s{TF} offen lds"]
    def b2_place(self, hh):
        k = hh % 8
        return (S_RA, 2048 * k) if k < 3 else (S_RB, 2048 * (k - 3)) if k < 6 else (S_RC, 2048 * (k - 6))
    def b2_read(self, halves):
        reg = self.b2_place(halves[0])[0]
        o = [[f"@wv h{halves[-1]}", f"v_add_u32 v{AR}, s{reg}, v{V_TRB}", f"v_xor_b32 v{AR+1}, 32, v{AR}"],
             [f"v_xor_b32 v{AR+2}, 64, v{AR}", f"v_xor_b32 v{AR+3}, 0x60, v{AR}"]]
        for hh in halves:
            assert self.b2_place(hh)[0] == reg
            off = self.b2_place(hh)[1]; base = BHK[(hh >> 1) % 6]
            for t in range(4):
                r = base + 4 * t + 2 * (hh & 1)
                o.append([f"@t r{hh} ds_read_b64_tr_b16 v[{r}:{r+1}], v{AR+t} offset:{off}"])
                if hh == 16: o.append([f"@t r{hh} ds_read_b64_tr_b16 v[{r+2}:{r+3}], v{AR+t} offset:{off}"])
        return o
    def b2_refill(self, halves):
        o = []
        for hh in halves:
            for n in (2 * hh, 2 * hh + 1):
                o.append(([f"@wl r{hh-8}"] if n & 1 == 0 else []) + self.b2_dma(n))
        return o

    QA, CS, VA = 96, 106, [156, 120, 132, 140, 148]
    def stat_reads(self, kind, which):
        t0, t1 = 14, 15
        if kind == "m":
            o = [L(f"s_lshl_b32 s{TF}, s{S_TG}, 8\ns_add_u32 s{TF}, s{TF}, {L_STAT+64}\nv_lshl_add_u32 v{t0}, v{V_I}, 2, s{TF}"),
                 L(f"s_lshl_b32 s{TF}, s{S_H}, 8\ns_add_u32 s{TF}, s{TF}, {L_CS}\nv_lshl_add_u32 v{t1}, v{V_G}, 4, s{TF}")]
            for j in range(4): o.append([f"ds_read2_b32 v[{96+2*j}:{97+2*j}], v{t0} offset0:{16*j} offset1:{160+16*j}"])
            for t in range(3): o.append([f"@t st ds_read_b128 v[{104+4*t}:{107+4*t}], v{t1} offset:{64*t}"])
            return o
        QA, CS, VA = self.QA, self.CS, self.VA
        def va(j): return [[f"ds_read_b128 v[{VA[j]}:{VA[j]+3}], v{t1} offset:{64*j}"], [f"@t va{j} ds_read_b128 v[{VA[j]+4}:{VA[j]+7}], v{t1} offset:{640+64*j}"]]
        if which == 0:
            o = [L(f"s_lshl_b32 s{TF}, s{S_H}, 8\ns_add_u32 s{TF}, s{TF}, {L_CS}\nv_lshl_add_u32 v{t0}, v{V_G}, 4, s{TF}\nv_lshl_add_u32 v{t1}, v{V_I}, 2, s{TF}")]
            o += [[f"ds_read_b128 v[{CS}:{CS+3}], v{t0}"], [f"ds_read_b128 v[{CS+4}:{CS+7}], v{t0} offset:64"],
                  [f"ds_read_b128 v[{CS+8}:{CS+11}], v{t0} offset:192"], [f"ds_read_b32 v{CS+12}, v{t1} offset:128"]]
            o += [L(f"s_lshl_b32 s{TF}, s{S_TG}, 8\ns_add_u32 s{TF}, s{TF}, {L_STAT}\nv_lshl_add_u32 v{t0}, v{V_I}, 2, s{TF}\nv_lshl_add_u32 v{t1}, v{V_G}, 4, s{TF}")]
            for j in range(5): o.append([f"ds_read2_b32 v[{QA+2*j}:{QA+2*j+1}], v{t0} offset0:{16*j} offset1:{160+16*j}"])
            return o + va(1)
        return va(2) + va(3) + va(4) + va(0)

    def main_loop(self, kind):
        nd = 5 if kind == "m" else 6; o = self.o
        P = (lambda a, b: (a, b)) if o.get("prio", 1) else (lambda a, b: None)
        self.e("@load pro\n@wv s0 lgkmcnt(0)\ns_barrier"); self.e(self.stamp(1))
        self.e(self.u_reads(kind, SETA, 0, 0)); self.e(self.u_reads(kind, SETB, 0, 1))
        p2a, p2b, p2c = self.prod2()
        cit = o.get("cit", 8)
        s1 = self.stage(nd, 1); s1[-1:-1] = [[f"buffer_load_dword v{V_NON}, off, {srd(SRDDBG)}, 0 sc1"]]
        k1 = o.get("k1", 3)
        self.e("s_waitcnt lgkmcnt(%d)" % len(self.u_reads(kind, SETB, 0, 1)))
        self.u_phase(self.p1_mfmas(kind, SETA, c="0"), [], [], s1[:k1], None, False)
        self.e("s_waitcnt lgkmcnt(0)")
        self.u_phase(self.p1_mfmas(kind, SETB), [], [], [], None, False)
        for g in s1[k1:]: self.e(g)
        self.e(self.stamp(8))
        self.p2_tile(0 if kind == "m" else 1)
        self.late_init(kind[0])
        if o.get("b2pf", 2) == 3: self.pf_setup()
        if o.get("b2pf", 2) in (1, 2): pfl = self.b2_pf()
        if o.get("b2pf", 2) == 1: self.e(pfl)
        self.e("@wv side")
        self.e(self.stamp(9))
        for g in self.prod1(): self.e(g)
        self.e(self.stamp(10))
        fill = []
        for it in range(1, 10):
            if it == 1: dm = self.stage(nd, 2) + self.stage(nd, 3)
            elif it <= 7: dm = self.stage(nd, it + 2)
            else: dm = [self.b2_dma(6 * (it - 8) + n) for n in range(6)]
            cl = self.cons_loads(); cl = [[cl[0]], ["@t con " + cl[1]]]
            if it == cit == 8: dm = cl + dm
            if it == cit == 7: dm = dm + cl
            pf0 = o.get("pf0", 1)
            if o.get("b2pf", 2) == 3 and pf0 <= it < pf0 + 6: dm = dm + [self.pf_round(it - pf0)]
            if o.get("b2pf", 2) == 2 and it == pf0: dm = dm + [pfl]
            if o.get("its"): self.e(f"s_memtime s[{S_TS+2}:{S_TS+3}]")
            if it == 1 and o.get("s2early", 1):
                for g in dm[:nd]: self.e(g)
                dm = dm[nd:]
            self.e(f"@wv s{it} lgkmcnt(0)\ns_barrier")
            if o.get("its"): self.e(f"s_memtime s[{S_TS}:{S_TS+1}]\nv_writelane_b32 v0, s{S_TS+2}, {48+it}")
            if it == 1:
                self.e(self.u_reads(kind, SETA, it, 0))
                for g in p2a + p2c: self.e(g)
                fill = p2b
            else:
                h = (len(dm) * 4 + 3) // 7
                self.u_phase(self.p1_mfmas(kind, SETB), self.u_reads(kind, SETA, it, 0), fill, dm[:h], P(3, 2), False)
                dm = dm[h:]
            self.e("s_waitcnt lgkmcnt(0)")
            if o.get("its"): self.e(f"v_writelane_b32 v0, s{S_TS}, {32+it}")
            if it == 9: assert not fill; fill = self.cons()
            self.u_phase(self.p1_mfmas(kind, SETA), self.u_reads(kind, SETB, it, 1), fill, dm, P(1, 0), it != 1)
        for g in fill: self.e(g)
        self.e("s_waitcnt lgkmcnt(0)\ns_barrier")
        fill = self.stat_reads(kind, 0)
        if kind == "a0":
            hw = [L(f"s_mul_i32 s{TF}, s{S_H}, 3072\ns_add_u32 s{TF}, s{TF}, {S1}\nv_add_u32 v13, s{TF}, v{V_L16}")]
            hw += [[f"ds_write_b128 v13, v[{ACC+64+4*f}:{ACC+67+4*f}] offset:{1024*(f-1)}", "s_nop 0"] for f in (1, 2, 3)]
            fill = fill + hw
        fill += self.b2_read([0, 1, 2])
        self.u_phase(self.p1_mfmas(kind, SETB, True), [], fill, [self.b2_dma(12 + i) for i in range(4)], P(1, 0), False)
        for g in fill: self.e(g)
        if kind != "m":
            for g in self.stat_reads(kind, 1): self.e(g)
            if kind == "a0": self.e("s_waitcnt lgkmcnt(0)\ns_barrier")
            else:
                self.e(f"s_barrier\ns_mul_i32 s{TF}, s{S_H}, 3072\ns_add_u32 s{TF}, s{TF}, {S1}\nv_add_u32 v13, s{TF}, v{V_L16}")
                for f in (1, 2, 3): self.e(f"@t halo ds_read_b128 v[{ACC+4*f}:{ACC+4*f+3}], v13 offset:{1024*(f-1)}")
        self.e(self.stamp(2))

    def flag_setup(self, n):
        return L(f"""v_and_b32 v{V_FA}, 1, v{V_LANE}
v_mul_u32_u24 v{V_FA}, {n-1}, v{V_FA}
v_add_u32 v{V_FA}, s{S_RT0}, v{V_FA}
v_and_b32 v{V_FA}, 0xf8, v{V_FA}
v_add_u32 v{V_FA}, s{S_W}, v{V_FA}
v_lshlrev_b32 v{V_FA}, 7, v{V_FA}""")
    def flag_load(self): return f"buffer_load_dword v{V_FD}, v{V_FA}, {srd(SRDWS)}, s{S_FL} offen sc1"
    def flag_issue(self, typ): return [f"s_mov_b32 s{S_FL}, {FLAG_BASE + typ*16384}", f"@t fl{typ} " + self.flag_load()]
    def flag_check(self, typ): return [f"@wv fl{typ}"] + self.spin([f"v_cmp_ne_u32 vcc, s{S_NONCE}, v{V_FD}"], [self.flag_load()])
    def publish(self, typ):
        sk = self.lab("nofl")
        return L(f"""@wv st
s_barrier
s_cmp_lg_u32 s{S_W}, 0
s_cbranch_scc1 {sk}
s_lshl_b32 s{T0}, s{S_MT}, 3
s_add_u32 s{T0}, s{T0}, s{S_NT}
s_lshl_b32 s{T0}, s{T0}, 7
s_add_u32 s{T0}, s{T0}, {FLAG_BASE + typ*16384}
v_mov_b32 v14, s{S_NONCE}
s_mov_b64 exec, 1
@x buffer_store_dword v14, off, {srd(SRDWS)}, s{T0} sc1
s_mov_b64 exec, -1
{sk}:""") + self.stamp(4)

    def attn_epi(self):
        QA, CS, VA = self.QA, self.CS, self.VA
        VOP, ON = 164, 128
        t0, t1, t2 = 174, 175, 255
        m = L(f"""s_mul_i32 s{T0}, s{S_W}, {5*REC}
s_add_u32 s{T0}, s{T0}, {L_REC}
v_lshlrev_b32 v{t0}, 6, v{V_G}
v_lshl_add_u32 v{t0}, v{V_I}, 3, v{t0}
v_add_u32 v{t1}, {L_DUMMY}, v{t0}
v_add_u32 v{t0}, s{T0}, v{t0}
s_mov_b32 s{S_M0}, 0xffff
s_mov_b32 s{S_M0+1}, 0xffff
v_cndmask_b32 v{t0}, v{t1}, v{t0}, s[{S_M0}:{S_M0+1}]
v_lshl_add_u32 v{t1}, v{V_I}, 3, s{T0}
s_add_u32 s{T0}, s{T0}, 256
v_mov_b32 v{t2}, s{T0}
s_mov_b32 s{S_M0}, 0xffff0000
s_mov_b32 s{S_M0+1}, 0
v_cndmask_b32 v{t1}, v{t2}, v{t1}, s[{S_M0}:{S_M0+1}]""")
        for r in range(4): m.append(f"v_mov_b32 v{ON+r}, {hex(ONE2)}")
        for j in (1, 2, 3, 4, 0):
            A = ACC + 16 * j
            if self.o.get("eprio", 1) and j in (1, 4): m.append(f"s_setprio {3 if j == 1 else 2}")
            m.append(f"@wl va{j}" if j else "@wl halo")
            for f, cs in ((3, CS + 8), (1, CS + 4), (0, CS)):
                if j == 0 and f == 0: continue
                for r in (0, 2): m.append(pk("fma", A+4*f+r, ("b", QA+2*j), cs+r, A+4*f+r))
                for r in (0, 2): m.append(pk("mul", A+4*f+r, ("b", QA+2*j+1), A+4*f+r))
            m += L(f"""v_cvt_pk_bf16_f32 v{A+4}, v{A+4}, v{A+5}
v_cvt_pk_bf16_f32 v{A+5}, v{A+6}, v{A+7}
v_cvt_pk_bf16_f32 v{A+6}, v{A+12}, v{A+13}
v_cvt_pk_bf16_f32 v{A+7}, v{A+14}, v{A+15}
ds_write_b64 v{t0}, v[{A+6}:{A+7}] offset:{REC*j}""")
            if j:
                m += L(f"v_cvt_pk_bf16_f32 v{A}, v{A}, v{A+1}\nv_cvt_pk_bf16_f32 v{A+1}, v{A+2}, v{A+3}\n@t ql{j} ds_read_b64 v[{A+2}:{A+3}], v{t1} offset:{REC*j}")
            for r in (0, 2): m.append(pk("fma", A+8+r, VA[j]+r, ("b", CS+12), A+8+r))
            for r in (0, 2): m.append(pk("mul", A+8+r, VA[j]+4+r, A+8+r))
            m += L(f"v_cvt_pk_bf16_f32 v{VOP+2*j}, v{A+8}, v{A+9}\nv_cvt_pk_bf16_f32 v{VOP+2*j+1}, v{A+10}, v{A+11}")
            if j >= 2 or j == 0:
                jj = j - 1 if j else 4
                B = ACC + 16 * jj
                m += [f"@wl ql{jj}", mfma(B + 8, B + 4, B, MC)]
                if jj >= 2: m.append(mfma(B + 12, B - 12, B, MP))
        m.append(mfma(ACC + 16 + 12, ACC + 4, ACC + 16, MP0))
        f1 = self.b2_refill([8, 9, 10]) + self.b2_read([3, 4, 5]) + self.b2_refill([11, 12, 13])
        self.e(pace(m, f1, 4, len(m) - 1))
        self.e(self.stamp(11))
        VL, MX, OL, RR, RL, D = 96, 112, 116, 120, 124, 132
        m = (["s_setprio 1"] if self.o.get("eprio", 1) else []) + L(f"""v_lshrrev_b32 v{t0}, 2, v{V_LANE}
v_lshlrev_b32 v{t0}, 3, v{t0}
v_add_u32 v{t0}, s{T0}, v{t0}
v_subrev_u32 v{t0}, 0x80, v{t0}""")
        for j in range(1, 5):
            k = 0x11111111 << (j - 1)
            m += L(f"""s_mov_b32 s{S_M0}, {hex(k)}
s_mov_b32 s{S_M0+1}, {hex(k)}
v_cndmask_b32 v{t1}, v{t2}, v{t0}, s[{S_M0}:{S_M0+1}]
ds_read_b64_tr_b16 v[{VL+4*(j-1)}:{VL+4*(j-1)+1}], v{t1} offset:{REC*(j-1)}
@t vl ds_read_b64_tr_b16 v[{VL+4*(j-1)+2}:{VL+4*(j-1)+3}], v{t1} offset:{REC*j}""")
        for j in (2, 3, 4, 1):
            A = ACC + 16 * j
            for r in range(4): m.append(f"v_max_f32 v{A+8+r}, v{A+8+r}, v{A+12+r}")
            m += L(f"v_max3_f32 v{MX+j-1}, v{A+8}, v{A+9}, v{A+10}\nv_max_f32 v{MX+j-1}, v{MX+j-1}, v{A+11}")
        m0, m1, m2, m3 = MX, MX + 1, MX + 2, MX + 3
        red = L(f"""v_permlane16_swap_b32 v{m2}, v{m3}
v_permlane16_swap_b32 v{m0}, v{m1}
v_max_f32 v{m2}, v{m2}, v{m3}
v_max_f32 v{m0}, v{m0}, v{m1}
v_permlane32_swap_b32 v{m0}, v{m2}
v_max_f32 v{m0}, v{m0}, v{m2}
v_mul_f32 v{m0}, v{m0}, v{VC}
v_mov_b32 v{m2}, v{m0}
v_permlane32_swap_b32 v{m0}, v{m2}
v_mov_b32 v{m1}, v{m0}
v_mov_b32 v{m3}, v{m2}
v_permlane16_swap_b32 v{m0}, v{m1}
v_permlane16_swap_b32 v{m2}, v{m3}""")
        adr = L(f"""v_and_b32 v{t0}, 31, v{V_LANE}
v_lshlrev_b32 v{t0}, 4, v{t0}
v_lshrrev_b32 v{t1}, 5, v{V_LANE}
s_mov_b32 s{T0}, {A2_RT}
v_mad_u32_u24 v{t0}, v{t1}, s{T0}, v{t0}
v_lshlrev_b32 v{t1}, 4, v{V_I}
v_mad_u32_u24 v{t1}, v{V_G}, s{T0}, v{t1}
s_lshl_b32 s{T0}, s{S_MT}, 1
s_add_u32 s{T0}, s{T0}, s{S_TG}
s_lshl_b32 s{T0}, s{T0}, 5
s_add_u32 s{T0}, s{T0}, s{S_NT}
s_mul_i32 s{T0}, s{T0}, {A2_BLK}
s_lshl_b32 s{T1}, s{S_H}, 9
s_add_u32 s{T1}, s{T1}, s{T0}
s_add_u32 s{T1}, s{T1}, 6144
s_lshl_b32 s{T2}, s{S_H}, 8
s_add_u32 s{T2}, s{T2}, s{T0}
s_add_u32 s{T2}, s{T2}, 8192""")
        m += merge(red, [adr[i:i+2] for i in range(0, len(adr), 2)], 1, 1)
        m.append("@wl vl")
        for j in range(1, 5):
            A = ACC + 16 * j
            for r in (0, 2): m.append(pk("fma", A+8+r, A+8+r, ("b", VC), ("b", MX+j-1), neg=[0, 0, 1]))
            for r in range(4): m.append(f"v_exp_f32 v{A+8+r}, v{A+8+r}")
            m += L(f"""v_cvt_pk_bf16_f32 v{A+12}, v{A+8}, v{A+9}
v_cvt_pk_bf16_f32 v{A+13}, v{A+10}, v{A+11}
v_and_b32 v{A+14}, v{A+12}, v{MB}
v_and_b32 v{A+15}, v{A+13}, v{MB+1}
v_xor_b32 v{A+12}, v{A+12}, v{A+14}
v_xor_b32 v{A+13}, v{A+13}, v{A+15}""")
            if j == 3 and self.o.get("eprio", 1): m.append("s_setprio 0")
            if j > 1: m.append(f"v_rcp_f32 v{RR+j-2}, v{A-16+4}")
            m += [mfma(A + 4, ON, A + 12, "0"), mfma(A, VOP + 2 * (j - 1), A + 12, "0"), mfma(OL, VL + 4 * (j - 1), A + 12, "0" if j == 1 else OL)]
        f2 = [self.flag_setup(4), self.flag_issue(0)] + self.b2_read([6, 7]) + self.b2_refill([14, 15])
        self.e(pace(m, f2, 2, len(m) - 1))
        m = []
        for pr in range(2):
            Dp = ACC + 4 * pr
            for u in range(2):
                j = 1 + 2 * pr + u; A = ACC + 16 * j
                if j == 4: m.append(f"v_rcp_f32 v{RR+3}, v{A+4}")
                for r in (0, 2): m.append(pk("mul", A+r, A+r, ("b", RR+j-1)))
                m += L(f"v_cvt_pk_bf16_f32 v{Dp+2*u}, v{A}, v{A+1}\nv_cvt_pk_bf16_f32 v{Dp+2*u+1}, v{A+2}, v{A+3}")
                m.append(f"v_mov_b32_dpp v{RL}, v{RR+j-1} quad_perm:[0,1,2,3] row_mask:{hex(1<<(j-1))} bank_mask:0xf")
            m += L(f"""v_permlane32_swap_b32 v{Dp}, v{Dp+2}
v_permlane32_swap_b32 v{Dp+1}, v{Dp+3}
buffer_store_dwordx4 v[{Dp}:{Dp+3}], v{t0}, {srd(SRDWS)}, s{T1} offen sc1
s_add_u32 s{T1}, s{T1}, {2*A2_RT}""")
        for r in (0, 2): m.append(pk("mul", OL+r, OL+r, ("b", RL)))
        Dp = ACC + 8
        m += L(f"""v_cvt_pk_bf16_f32 v{Dp}, v{OL}, v{OL+1}
v_cvt_pk_bf16_f32 v{Dp+1}, v{OL+2}, v{OL+3}
v_mov_b32 v{Dp+2}, 0
v_mov_b32 v{Dp+3}, 0
@t st buffer_store_dwordx4 v[{Dp}:{Dp+3}], v{t1}, {srd(SRDWS)}, s{T2} offen sc1""")
        self.e(m); self.e(self.stamp(3))

    def mlp_epi(self):
        QA, CS, A2, E, D, a0, a1 = 96, 104, 116, 120, 136, 174, 175
        m = L(f"""v_and_b32 v{a0}, 31, v{V_LANE}
v_lshlrev_b32 v{a0}, 4, v{a0}
v_lshrrev_b32 v{a1}, 5, v{V_LANE}
s_mov_b32 s{T0}, {A2_RT}
v_mad_u32_u24 v{a0}, v{a1}, s{T0}, v{a0}
s_lshl_b32 s{T0}, s{S_MT}, 1
s_add_u32 s{T0}, s{T0}, s{S_TG}
s_lshl_b32 s{T0}, s{T0}, 5
s_add_u32 s{T0}, s{T0}, s{S_NT}
s_mul_i32 s{T0}, s{T0}, {A2_BLK}
s_lshl_b32 s{T1}, s{S_H}, 10
s_add_u32 s{T1}, s{T1}, s{T0}
s_lshl_b32 s{T2}, s{S_H}, 9
s_add_u32 s{T2}, s{T2}, s{T0}
s_add_u32 s{T2}, s{T2}, 4096
@wl st""")
        for j in range(4): m.append(f"v_mul_f32 v{A2+j}, {hex(f2u(-LOG2E))}, v{QA+2*j+1}")
        for j in range(4):
            A = ACC + 16 * (j + 1); Dn = D + 8 * (j & 1); Dd = D + 16 + 4 * (j >> 1)
            R2 = range(0, 12, 2)
            if self.o.get("eprio", 1): m.append(f"s_setprio {3-j}")
            for r in R2: m.append(pk("fma", A+r, ("b", QA+2*j), CS+r, A+r))
            for r in R2: m.append(pk("mul", E+r, ("b", A2+j), A+r))
            for r in range(12): m.append(f"v_exp_f32 v{E+r}, v{E+r}")
            for r in R2: m.append(pk("mul", A+r, ("b", QA+2*j+1), A+r))
            for r in R2: m.append(pk("add", E+r, E+r, "1.0"))
            for r in range(12): m.append(f"v_rcp_f32 v{E+r}, v{E+r}")
            for r in R2: m.append(pk("mul", A+r, A+r, E+r))
            for r in range(4): m.append(f"v_cvt_pk_bf16_f32 v{Dn+r}, v{A+2*r}, v{A+2*r+1}")
            m += L(f"buffer_store_dwordx4 v[{Dn}:{Dn+3}], v{V_L16}, {srd(SRDWS)}, s{T1} offen sc1\ns_add_u32 s{T1}, s{T1}, {A2_RT}")
            for r in range(2): m.append(f"v_cvt_pk_bf16_f32 v{Dd+2*(j&1)+r}, v{A+8+2*r}, v{A+9+2*r}")
            if j & 1:
                m += L(f"""v_permlane32_swap_b32 v{Dd}, v{Dd+2}
v_permlane32_swap_b32 v{Dd+1}, v{Dd+3}
@t st buffer_store_dwordx4 v[{Dd}:{Dd+3}], v{a0}, {srd(SRDWS)}, s{T2} offen sc1
s_add_u32 s{T2}, s{T2}, {2*A2_RT}""")
        f = self.b2_refill([8, 9, 10]) + self.b2_read([3, 4, 5]) + self.b2_refill([11, 12, 13]) + self.b2_read([6, 7]) + self.b2_refill([14, 15])
        self.e(pace(m, f, 4, len(m) - 10))
        self.e(self.stamp(3))

    def p2(self, n, typ):
        STG, NS = 112, 12
        NP1 = self.o.get("np1", 6); lead = self.o.get("lead", 4)
        F = BHK[3]; XR, RW, RRD, V_OUT = F, F + 6, F + 7, F + 8; SEL = BHK[4]
        seq = [(j, ks) for j in range(n) for ks in range(NP1)] + [(j, ks) for j in range(n) for ks in range(NP1, 9)]
        q2 = n * NP1; qo = q2 + 6 - NP1
        cur = [None]
        def issue(q):
            j, ks = seq[q]; off = j * A2_RT + (ks >> 2) * 4096; r = STG + 4 * (q % NS); o = []
            if cur[0] != off: o.append(f"s_add_u32 s{S_DELTA}, s{S_A2}, {off}"); cur[0] = off
            return o + [f"@t a{q} buffer_load_dwordx4 v[{r}:{r+3}], v{V_L16}, {srd(SRDWS)}, s{S_DELTA} offen offset:{1024*(ks&3)} sc1"]
        step3 = self.b2_read([8, 9, 10]) + self.b2_read([11]) + self.b2_refill([16])
        first = [x for q in range(NS) for x in issue(q)]
        if typ == 1:
            self.e(self.flag_check(0)); self.e(first)
            for g in step3: self.e(g)
            self.e(self.publish(typ))
        else:
            self.e(self.flag_setup(n))
            for g in step3: self.e(g)
            self.e(self.publish(typ)); self.e(self.flag_issue(0)); self.e(self.flag_check(0)); self.e(first)
        self.e(self.stamp(5))
        US = 2112; SPB = 8 * US
        ta, tb = F + 9, F + 10
        setup = L(f"""s_mul_i32 s{T0}, s{S_W}, {US}
v_lshl_add_u32 v{RW}, v{V_LANE}, 3, s{T0}
v_mul_u32_u24 v{RRD}, {2*US}, v{V_G}
v_lshl_add_u32 v{RRD}, v{V_I}, 3, v{RRD}
s_mul_i32 s{T0}, s{S_TG}, {SPB}
s_lshl_b32 s{T1}, s{S_H}, 9
s_add_u32 s{T0}, s{T0}, s{T1}
v_add_u32 v{RRD}, s{T0}, v{RRD}
v_mul_u32_u24 v{V_OUT}, 2560, v{V_I}
v_lshl_add_u32 v{V_OUT}, v{V_G}, 3, v{V_OUT}
s_add_u32 s{T0}, s{S_TG}, s{S_RT0}
s_and_b32 s{T3}, s{T0}, 63
s_mul_i32 s{T3}, s{T3}, {16*2560}
s_lshr_b32 s{T0}, s{S_RT0}, 6
s_mul_i32 s{T0}, s{T0}, 1280
s_add_u32 s{T3}, s{T3}, s{T0}
s_lshl_b32 s{T0}, s{S_CT}, 7
s_add_u32 s{T3}, s{T3}, s{T0}
s_lshl_b32 s{T0}, s{S_H}, 5
s_add_u32 s{T3}, s{T3}, s{T0}""")
        for m in range(n // 2):
            setup += [f"s_add_u32 s{T0}, s{T3}, {m*32*2560}", f"@t x{m} buffer_load_dwordx2 v[{XR+2*m}:{XR+2*m+1}], v{V_OUT}, {srd(SRD0)}, s{T0} offen"]
        setup = [setup[i:i+2] for i in range(0, len(setup), 2)]
        setup += [L(f"v_and_b32 v{ta}, 1, v{V_LANE}\nv_lshlrev_b32 v{ta}, 4, v{ta}"), L(f"v_mov_b32 v{tb}, 0x3f80\nv_lshlrev_b32 v{ta}, v{ta}, v{tb}")]
        for c in range(4):
            for hh in range(2):
                k = (3 << (4 * c + 2 * hh)) * 0x10001
                setup.append(L(f"""s_mov_b32 s{S_M0}, {hex(k)}
s_mov_b32 s{S_M0+1}, {hex(k)}
v_cndmask_b32 v{SEL+4*c+hh}, 0, v{ta}, s[{S_M0}:{S_M0+1}]
v_cndmask_b32 v{SEL+4*c+hh+2}, 0, v{ta}, s[{S_M0}:{S_M0+1}]"""))
        def writes(j):
            o = []
            for t in range(4):
                d = ACC + 16 * j + 4 * t
                o += [[f"v_cvt_pk_bf16_f32 v{d}, v{d}, v{d+1}", f"v_cvt_pk_bf16_f32 v{d+1}, v{d+2}, v{d+3}",
                       f"@t w{j} ds_write_b64 v{RW}, v[{d}:{d+1}] offset:{(j&1)*SPB + 512*t}"]]
            if j & 1: o.append([f"v_add_u32 v{RW}, {2*SPB}, v{RW}"])
            return o
        def red_issue(m):
            T = ACC + 32 * m
            return [f"@wl w{2*m+1}", "s_barrier"] + [f"@t p{m}_{c} ds_read_b64 v[{T+4*c+2*u}:{T+4*c+2*u+1}], v{RRD} offset:{128*c + US*u}" for c in range(4) for u in range(2)] + \
                   [f"v_add_u32 v{RRD}, {2*SPB}, v{RRD}"]
        def red_fin(m):
            T = ACC + 32 * m; x = XR + 2 * m; C = T + 16
            o = [[f"@wv x{m}", f"v_lshlrev_b32 v{C}, 16, v{x}", f"v_and_b32 v{C+1}, 0xffff0000, v{x}"],
                 [f"v_lshlrev_b32 v{C+2}, 16, v{x+1}", f"v_and_b32 v{C+3}, 0xffff0000, v{x+1}"]]
            o += [[f"@wl p{m}_{c}", mfma(C, SEL + 4 * c, T + 4 * c)] for c in range(4)]
            o += [[f"s_add_u32 s{T0}, s{T3}, {m*32*2560}"], [], [],
                  [f"v_cvt_pk_bf16_f32 v{x}, v{C}, v{C+1}", f"v_cvt_pk_bf16_f32 v{x+1}, v{C+2}, v{C+3}",
                   f"buffer_store_dwordx2 v[{x}:{x+1}], v{V_OUT}, {srd(SRDOUT)}, s{T0} offen"]]
            return o
        fill = []
        nored = self.o.get("nored")
        for q in range(len(seq)):
            j, ks = seq[q]; r = STG + 4 * (q % NS)
            if q == q2: self.e(self.stamp(6))
            if q == q2 - NP1 + 5: fill += setup
            if q == 0: self.e("@wl r11")
            if q == qo: self.e("@wl r16")
            if q > q2 and ks == NP1:
                for g in fill: self.e(g)
                fill = []
                if not nored:
                    if j == 1: self.e("s_barrier")
                    fill = [[], []] + writes(j - 1)
                    if j >= 3 and (j & 1):
                        rf = red_fin((j - 3) // 2); fill = rf[:2] + [x + y for x, y in zip(fill[2:6], rf[2:6])] + rf[6:]
            self.e(f"@wv a{q}")
            for t in range(4):
                self.e(mfma(ACC + 16 * j + 4 * t, BHK[ks % 6] + 4 * t, r, "0" if ks == 0 else None))
                if fill: self.e(fill.pop(0))
                if fill and q < qo + 3: self.e(fill.pop(0))
            if q == q2 - NP1 + 2:
                fill += self.b2_read([12, 13]) + self.b2_read([14, 15]) + self.b2_read([16])
                nb = len(fill)
            if q + NS == qo - lead: self.e(self.flag_issue(1))
            if q + NS == qo: self.e(self.flag_check(1))
            if q + NS < len(seq): self.e(issue(q + NS))
            if q == qo - 1:
                while any("@t r1" in x for g in fill for x in g): self.e(fill.pop(0))
            if q > q2 and ks == 8 and j >= 2 and not (j & 1) and not nored:
                for g in fill: self.e(g)
                fill = []
                self.e(red_issue((j - 2) // 2))
        for g in fill: self.e(g)
        self.e(self.stamp(15))
        for g in writes(n - 1)[:4]: self.e(g)
        rf = red_fin(n // 2 - 1); ri = red_issue(n // 2 - 1)
        self.e(ri)
        for g in rf: self.e(g)
        self.e(self.stamp(7))
        if self.o.get("fixdur"):
            lp = self.lab("fix")
            self.e(f"{lp}:\ns_memrealtime s[{S_TS}:{S_TS+1}]\ns_waitcnt lgkmcnt(0)\ns_sub_u32 s{S_TS}, s{S_TS}, s{S_NONCE}\ns_cmp_lt_u32 s{S_TS}, {self.o['fixdur']}\ns_cbranch_scc1 {lp}")
        if self.diag:
            self.e(f"""s_lshl_b32 s{T0}, s2, 3
s_add_u32 s{T0}, s{T0}, s{S_W}
s_lshl_b32 s{T0}, s{T0}, 8
s_add_u32 s{T0}, s{T0}, {STAMP_BASE}
v_lshlrev_b32 v{V_L16}, 2, v{V_LANE}
buffer_store_dword v0, v{V_L16}, {srd(SRDWS)}, s{T0} offen""")
        self.e("s_endpgm")

    def kperm(self, dst, rho, t):
        self.e(f"""v_and_b32 v{dst}, 35, v{rho}
v_bfe_u32 v{t}, v{rho}, 2, 2
v_lshl_add_u32 v{dst}, v{t}, 3, v{dst}
v_bfe_u32 v{t}, v{rho}, 4, 1
v_lshl_add_u32 v{dst}, v{t}, 2, v{dst}""")
    def side_loads(self):
        a, b, c, d = TA, TB, TC, TD
        self.e(f"""v_lshlrev_b32 v{V_L16}, 4, v{V_LANE}
v_lshlrev_b32 v{a}, 2, v{V_LANE}
s_and_b32 s{T0}, s2, 3
s_lshl_b32 s{T1}, s{T0}, 8
s_and_b32 s{T2}, s2, 0xf8
s_add_u32 s{T1}, s{T1}, s{T2}
s_add_u32 s{T1}, s{T1}, s{S_W}
s_bfe_u32 s{T2}, s2, 0x10002
s_lshl_b32 s{T3}, s{T2}, 10
s_add_u32 s{T3}, s{T3}, s{T1}
s_lshl_b32 s{S_ROWS}, s{T3}, 5
s_add_u32 s{S_ROWS}, s{S_ROWS}, {ROWT}
s_mul_i32 s{T1}, s{T1}, 2560
s_mul_i32 s{T3}, s{T2}, 1280
s_add_u32 s{T1}, s{T1}, s{T3}
buffer_load_dwordx4 v[{RX}:{RX+3}], v{V_L16}, {srd(SRD0)}, s{T1} offen
buffer_load_dword v{RX+4}, v{a}, {srd(SRD0)}, s{T1} offen offset:1024
s_lshr_b32 s{T1}, s2, 3
s_min_u32 s{T1}, s{T1}, 29
s_lshl_b32 s{T2}, s{T2}, 1
s_cmp_ge_u32 s{T1}, 15
s_cselect_b32 s{T3}, 15, 0
s_addc_u32 s{T2}, s{T2}, 0
s_sub_u32 s{T1}, s{T1}, s{T3}
s_mul_i32 s{T3}, s{T1}, 86
s_lshr_b32 s{T3}, s{T3}, 8
s_mul_i32 s{T3}, s{T3}, 7
s_add_u32 s{T3}, s{T3}, s{T1}
s_mul_i32 s{T4}, s{T0}, 5
s_lshr_b32 s{T4}, s{T4}, 1
s_add_u32 s{T3}, s{T3}, s{T4}
s_mul_i32 s{T4}, s{T0}, 6
s_add_u32 s{T4}, s{T4}, s{T1}
s_sub_u32 s{T4}, s{T4}, 9
s_cmp_lt_u32 s{T1}, 9
s_cselect_b32 s{SRDC}, s{P_WQKV}, s{P_W1}
s_cselect_b32 s{SRDC+1}, s{P_WQKV+1}, s{P_W1+1}
s_cselect_b32 s{T3}, s{T3}, s{T4}
s_cselect_b32 s{T4}, 0, 30
s_cselect_b32 s{TF}, 15, 12
s_lshl_b32 s{TF}, s{TF}, 8
s_mul_i32 s{SRDC+2}, s{TF}, 640
s_mov_b32 s{SRDC+3}, 0x20000
s_add_u32 s{T4}, s{T4}, s{T3}
s_lshl_b32 s{T4}, s{T4}, 3
s_add_u32 s{T4}, s{T4}, s{S_W}
s_lshl_b32 s{T4}, s{T4}, 8
s_lshl_b32 s{S_COLS}, s{T2}, 3
s_add_u32 s{S_COLS}, s{S_COLS}, s{T4}
s_add_u32 s{S_COLS}, s{S_COLS}, {COLT}
s_lshl_b32 s{T2}, s{T2}, 3
s_add_u32 s{T2}, s{T2}, s{S_W}
s_mul_i32 s{T2}, s{T2}, 20
s_mul_i32 s{T2}, s{T2}, s{TF}
s_lshl_b32 s{T3}, s{T3}, 7
s_add_u32 s{T2}, s{T2}, s{T3}
v_lshrrev_b32 v{a}, 3, v{V_LANE}
v_mul_lo_u32 v{a}, v{a}, s{TF}
v_and_b32 v{b}, 7, v{V_LANE}
v_lshl_add_u32 v{a}, v{b}, 4, v{a}
v_lshrrev_b32 v{b}, 5, v{V_LANE}
v_lshl_add_u32 v{b}, v{b}, 30, v{a}
s_lshl_b32 s{TF}, s{TF}, 3
buffer_load_dwordx4 v[{CW}:{CW+3}], v{a}, {srd(SRDC)}, s{T2} offen
s_add_u32 s{T2}, s{T2}, s{TF}
buffer_load_dwordx4 v[{CW+4}:{CW+7}], v{a}, {srd(SRDC)}, s{T2} offen
s_add_u32 s{T2}, s{T2}, s{TF}
@t side buffer_load_dwordx4 v[{CW+8}:{CW+11}], v{b}, {srd(SRDC)}, s{T2} offen""")
    def b2_pf(self):
        a = TA
        self.e(f"""s_mul_i32 s{T0}, s2, 6
s_add_u32 s{T0}, s{T0}, s{S_W}
s_mul_i32 s{T0}, s{T0}, 1280
s_lshl_b32 s{T1}, s2, 1
s_add_u32 s{T1}, s{T1}, s{S_W}
s_sub_u32 s{T1}, s{T1}, 6
s_mul_i32 s{T1}, s{T1}, {13*128}
s_cmp_lt_u32 s{S_W}, 6
s_cselect_b32 s{SRDPF}, s{SRDW2}, s{SRDWO}
s_cselect_b32 s{SRDPF+1}, s{SRDW2+1}, s{SRDWO+1}
s_cselect_b32 s{SRDPF+2}, s{SRDW2+2}, s{SRDWO+2}
s_mov_b32 s{SRDPF+3}, 0x20000
s_cselect_b32 s{S_PFC}, s{T0}, s{T1}
s_cselect_b32 s{T1}, 10, 13
v_lshlrev_b32 v{V_PF}, 7, v{V_LANE}
v_mov_b32 v{a}, {hex(OOB)}
v_cmp_gt_u32 s[{S_M1}:{S_M1+1}], s{T1}, v{V_LANE}
v_cndmask_b32 v{V_PF}, v{a}, v{V_PF}, s[{S_M1}:{S_M1+1}]""")
        return [f"buffer_load_dword v{V_PFD}, v{V_PF}, {srd(SRDPF)}, s{S_PFC} offen"]
    def min_init(self, kind):
        a, b, c, d = TA, TB, TC, TD
        self.e(f"""v_lshrrev_b32 v{V_G}, 4, v{V_LANE}
v_and_b32 v{V_I}, 15, v{V_LANE}
v_lshrrev_b32 v{a}, 1, v{V_I}
v_xor_b32 v{a}, v{a}, v{V_G}
v_lshlrev_b32 v{a}, 4, v{a}
v_lshl_add_u32 v{a}, v{V_I}, 7, v{a}
s_lshl_b32 s{T0}, s{S_TG}, 13
v_add_u32 v{V_X0}, s{T0}, v{a}
v_xor_b32 v{V_X1}, 64, v{V_X0}
v_lshrrev_b32 v{a}, 2, v{V_LANE}
v_and_b32 v{b}, 3, v{V_LANE}
v_bfe_u32 v{c}, v{V_LANE}, 3, 2
v_lshlrev_b32 v{V_TRB}, 7, v{a}
v_lshl_add_u32 v{V_TRB}, v{c}, 5, v{V_TRB}
v_lshl_add_u32 v{V_TRB}, v{b}, 3, v{V_TRB}""")
        if kind == "a":
            self.e(f"""v_mul_u32_u24 v{a}, 480, v{a}
s_mul_i32 s{T0}, s{S_H}, 40
s_add_u32 s{T0}, s{T0}, {XREG}
v_add_u32 v{a}, s{T0}, v{a}
v_lshl_add_u32 v{V_W0}, v{b}, 3, v{a}
v_min_u32 v{b}, 2, v{b}
v_mul_u32_u24 v{c}, 160, v{b}
v_add3_u32 v{V_W1}, v{a}, v{c}, 32""")
        else:
            self.e(f"""v_mul_u32_u24 v{a}, 384, v{a}
v_lshl_add_u32 v{a}, v{b}, 3, v{a}
v_add_u32 v{a}, {XREG}, v{a}
s_mul_i32 s{T0}, s{S_H}, 3""")
            for t in range(3):
                self.e(f"""s_add_u32 s{T1}, s{T0}, {t}
s_lshr_b32 s{T2}, s{T1}, 2
s_lshl_b32 s{T2}, s{T2}, 7
s_and_b32 s{T1}, s{T1}, 3
v_xor_b32 v{b}, s{T1}, v{c}
v_lshl_add_u32 v{b}, v{b}, 5, v{a}
v_add_u32 v{[V_W0, V_W1, V_W2][t]}, s{T2}, v{b}""")
    def late_init(self, kind):
        a, b, c, d = TA, TB, TC, TD
        self.mksrd(SRDWS, P_WS, WS_BYTES); self.mksrd(SRDOUT, P_OUT, 2048 * 1280)
        self.e(f"s_mov_b32 s38, {640*1280}\ns_mov_b32 s39, 0x20000\ns_mov_b32 s40, s42\ns_mov_b32 s41, s43\ns_mov_b32 s42, {1536*1280}\ns_mov_b32 s43, 0x20000")
        if kind == "a":
            self.e(f"""s_mul_i32 s{T0}, s{S_W}, {5*REC}
s_add_u32 s{T0}, s{T0}, {L_REC + 256}
v_min_u32 v{a}, 4, v{V_LANE}
v_mul_u32_u24 v{a}, {REC}, v{a}
v_add_u32 v{a}, s{T0}, v{a}
v_mov_b32 v{ACC}, 0
v_mov_b32 v{ACC+1}, 0
ds_write_b64 v{a}, v[{ACC}:{ACC+1}]""")
            his = [V_X0, V_X1, V_W0, V_W1]
            self.e(f"""v_lshlrev_b32 v{c}, 2, v{V_G}
v_sub_u32 v{c}, v{V_I}, v{c}
v_mov_b32 v{VC}, {hex(NEGBIG)}
v_mov_b32 v{MB}, 0
v_mov_b32 v{MB+1}, 0
s_and_b32 s{T0}, s{S_MT}, 7
s_or_b32 s{T0}, s{T0}, s{S_TG}
s_cmp_eq_u32 s{T0}, 0
s_cselect_b64 s[{S_M1}:{S_M1+1}], 0, -1""")
            for r in range(4):
                self.e(f"""v_subrev_u32 v{a}, {r}, v{c}
v_cmp_gt_u32 s[{S_M0}:{S_M0+1}], 8, v{a}
v_mov_b32 v{b}, {hex(0xffff << (16*(r&1)))}
v_cmp_gt_i32 vcc, -8, v{a}
v_cndmask_b32 v{MC+r}, v{VC}, 0, s[{S_M0}:{S_M0+1}]
v_cndmask_b32 v{b}, 0, v{b}, s[{S_M0}:{S_M0+1}]
v_or_b32 v{MB+(r>>1)}, v{MB+(r>>1)}, v{b}
v_cndmask_b32 v{MP+r}, v{VC}, 0, vcc
v_cndmask_b32 v{MP0+r}, v{VC}, v{MP+r}, s[{S_M1}:{S_M1+1}]""")
            self.e(f"v_mov_b32 v{VC}, {hex(f2u(20**-0.5 * LOG2E))}")
            self.e(f"""v_lshrrev_b32 v{a}, 2, v{V_I}
v_min_u32 v{a}, 2, v{a}
v_and_or_b32 v{b}, v{V_I}, 3, 16
v_cmp_eq_u32 s[{S_M0}:{S_M0+1}], 3, v{V_G}
s_lshl_b32 s{T0}, s{S_NT}, 2
s_add_u32 s{T0}, s{T0}, s{S_H}
s_mul_i32 s{T0}, s{T0}, 20
v_cndmask_b32 v{a}, v{V_G}, v{a}, s[{S_M0}:{S_M0+1}]
v_cndmask_b32 v{b}, v{V_I}, v{b}, s[{S_M0}:{S_M0+1}]
v_mul_u32_u24 v{a}, 640, v{a}
v_add3_u32 v{d}, v{a}, v{b}, s{T0}""")
        else:
            his = [V_X0, V_X1, V_W0, V_W1, V_W2]
            self.e(f"""s_lshl_b32 s{T0}, s{S_NT}, 2
s_add_u32 s{T0}, s{T0}, s{S_H}
s_mul_i32 s{T0}, s{T0}, 48
s_add_u32 s{T0}, s{T0}, 1920
v_min_u32 v{d}, 47, v{V_LANE}
v_add_u32 v{d}, s{T0}, v{d}""")
        for r in his: self.e(f"v_add_u32 v{HI[r]}, 0x10000, v{r}")
        lr, le = self.lab("crow"), self.lab("cend")
        self.e(f"""v_lshlrev_b32 v{c}, 2, v{V_LANE}
v_add_u32 v{V_CB}, {L_DUMMY}, v{c}
s_lshl_b32 s{T0}, s{S_H}, 8
s_cmp_eq_u32 s{S_TG}, 0
s_cbranch_scc1 {lr}
v_lshlrev_b32 v{V_CON}, 5, v{d}
v_add_u32 v{V_CON}, {COLT}, v{V_CON}
s_add_u32 s{T0}, s{T0}, {L_CS}
v_add_u32 v{V_CA}, s{T0}, v{c}
v_mov_b32 v{V_CK}, 1.0
s_branch {le}
{lr}:
s_lshl_b32 s{T1}, s{S_H}, 6
v_add_u32 v{a}, s{T1}, v{V_LANE}
v_cmp_gt_u32 vcc, 0x90, v{a}
v_min_u32 v{a}, 0x8f, v{a}
s_add_u32 s{T0}, s{T0}, {L_STAT}
v_add_u32 v{b}, s{T0}, v{c}
v_cndmask_b32 v{V_CA}, v{V_CB}, v{b}, vcc
v_add_u32 v{V_CB}, 640, v{V_CA}
s_and_b32 s{T0}, s{S_MT}, 7
s_lshl_b32 s{T0}, s{T0}, 7
s_sub_u32 s{T0}, s{T0}, 16
v_add_u32 v{a}, s{T0}, v{a}
v_max_i32 v{a}, 0, v{a}
s_lshr_b32 s{T0}, s{S_MT}, 3
s_lshl_b32 s{T0}, s{T0}, 15
s_add_u32 s{T0}, s{T0}, {ROWT}
v_lshl_add_u32 v{V_CON}, v{a}, 5, s{T0}
v_mov_b32 v{V_CK}, 0
{le}:""")
        self.e(f"""v_and_b32 v{a}, 7, v{V_LANE}
v_and_b32 v{b}, 1, v{V_G}
v_lshlrev_b32 v{b}, 4, v{b}
v_lshl_add_u32 v{b}, v{a}, 5, v{b}
s_lshl_b32 s{T0}, s{S_W}, 8
s_add_u32 s{T0}, s{T0}, {L_CP}
v_add_u32 v{V_CPW}, s{T0}, v{b}
v_lshrrev_b32 v{b}, 3, v{V_LANE}
v_lshlrev_b32 v{c}, 8, v{b}
v_lshl_add_u32 v{c}, v{a}, 2, v{c}
s_lshl_b32 s{T0}, s{S_W}, 5
s_add_u32 s{T0}, s{T0}, {L_CP}
v_add_u32 v{V_CPR}, s{T0}, v{c}
v_lshlrev_b32 v{V_CST}, 5, v{V_LANE}
v_lshl_add_u32 v{V_CST}, v{b}, 27, v{V_CST}
v_lshrrev_b32 v{b}, 1, v{V_LANE}
v_lshl_add_u32 v{V_RST}, v{b}, 25, v{V_L16}
v_and_b32 v{b}, 1, v{V_LANE}
v_lshlrev_b32 v{b}, 4, v{b}
v_mov_b32 v{c}, 0x3f80
v_lshlrev_b32 v{c}, v{b}, v{c}
v_lshrrev_b32 v{a}, 1, v{a}""")
        for p in range(4):
            self.e(f"v_cmp_eq_u32 s[{S_M0}:{S_M0+1}], {p}, v{a}\nv_cndmask_b32 v{CA+p}, 0, v{c}, s[{S_M0}:{S_M0+1}]")
        self.e(f"""v_lshrrev_b32 v{a}, 3, v{V_LANE}
v_lshlrev_b32 v{b}, 1, v{V_G}
v_and_b32 v{c}, 7, v{V_LANE}
v_xor_b32 v{b}, v{b}, v{c}
v_lshlrev_b32 v{b}, 4, v{b}
v_mul_u32_u24 v{V_B2}, 1280, v{a}
v_add_u32 v{V_B2}, v{V_B2}, v{b}
v_lshrrev_b32 v{c}, 5, v{V_LANE}
v_mul_u32_u24 v{c}, {16*1280}, v{c}
v_add_u32 v{V_B2L}, v{V_B2}, v{c}
s_lshl_b32 s{T0}, s{S_CT}, 7
s_mul_i32 s{S_B2H}, s{S_W}, {192*1280}
s_add_u32 s{S_B2H}, s{S_B2H}, s{T0}
s_mul_i32 s{S_B2O}, s{S_W}, {80*1280}
s_add_u32 s{S_B2O}, s{S_B2O}, s{T0}
s_mul_i32 s{S_RA}, s{S_W}, 6144
s_add_u32 s{S_RB}, s{S_RA}, {2*SLOT}
s_add_u32 s{S_RA}, s{S_RA}, {SLOT}
s_lshl_b32 s{S_RC}, s{S_W}, 12
s_lshl_b32 s{S_A2}, s{S_RT0}, 3
s_add_u32 s{S_A2}, s{S_A2}, s{S_W}
s_mul_i32 s{S_A2}, s{S_A2}, {A2_BLK}""")
    def start(self, kind, nd):
        sk = self.lab("non"); ini = self.o.get("init", 0)
        self.mksrd(SRDDBG, P_DBG, 256)
        if kind == "a":
            self.e(f"""s_or_b32 s{T0}, s2, s{S_W}
s_cmp_lg_u32 s{T0}, 0
s_cbranch_scc1 {sk}
s_or_b32 s{T0}, s{S_M0}, 1
v_mov_b32 v{TA}, s{T0}
s_mov_b64 exec, 1
@x buffer_store_dword v{TA}, off, {srd(SRDDBG)}, 0 sc1
s_mov_b64 exec, -1
{sk}:""")
        self.e(self.stamp(0))
        for g in self.stage(nd, 0): self.e(g)
        if kind == "a": self.min_init(kind)
        self.side_loads()
        if kind == "m": self.min_init(kind)
    def start2(self, kind, nd):
        self.e("@save pro")
    def pf_setup(self):
        a, b = TA, TB
        m = self.o.get("map", 0)
        if m == 0:
            self.e(f"""s_lshr_b32 s{T0}, s2, 3
s_mul_i32 s{T0}, s{T0}, {15*128}
v_lshlrev_b32 v{V_PF}, 7, v{V_LANE}
v_add_u32 v{V_PF}, s{T0}, v{V_PF}
v_cmp_gt_u32 s[{S_M1}:{S_M1+1}], 15, v{V_LANE}""")
        else:
            self.e(f"""s_and_b32 s{T0}, s2, 0xf8
v_add_u32 v{a}, s{T0}, v{V_LANE}
v_mul_u32_u24 v{b}, 205, v{a}
v_lshrrev_b32 v{b}, 10, v{b}
v_mul_u32_u24 v{b}, 5, v{b}
v_add_u32 v{a}, v{a}, v{b}
s_and_b32 s{T0}, s2, 1
s_mul_i32 s{T0}, s{T0}, 640
v_lshl_add_u32 v{V_PF}, v{a}, 7, s{T0}
v_cmp_gt_u32 s[{S_M1}:{S_M1+1}], 8, v{V_LANE}""")
        sh = 0 if m == 0 else 1
        self.e(f"""v_mov_b32 v{a}, {hex(OOB)}
v_cndmask_b32 v{V_PF}, v{a}, v{V_PF}, s[{S_M1}:{S_M1+1}]
s_lshr_b32 s{S_PFC}, s{S_XCD}, {sh}
s_mul_i32 s{S_PFC}, s{S_PFC}, {3 << sh}
s_lshr_b32 s{S_PFC}, s{S_PFC}, 2
s_mov_b32 s{SRDPF+3}, 0x20000""")
        if not self.o.get("rot", 1): self.e(f"s_mov_b32 s{S_PFC}, 0")
    def pf_round(self, u):
        return L(f"""s_lshl_b32 s{T0}, s{S_W}, 2
s_add_u32 s{T0}, s{T0}, s{S_PFC}
s_mul_i32 s{T0}, s{T0}, {48*1280}
s_lshl_b32 s{T1}, s{S_W}, 1
s_add_u32 s{T1}, s{T1}, s{S_PFC}
s_sub_u32 s{T1}, s{T1}, 4
s_mul_i32 s{T1}, s{T1}, {40*1280}
s_cmp_lt_u32 s{S_PFC}, 4
s_cselect_b32 s{T0}, s{T0}, s{T1}
s_cselect_b64 s[{SRDPF}:{SRDPF+1}], s[{SRDW2}:{SRDW2+1}], s[{SRDWO}:{SRDWO+1}]
s_cselect_b32 s{SRDPF+2}, s{SRDW2+2}, s{SRDWO+2}
buffer_load_dword v{V_PFD}, v{V_PF}, {srd(SRDPF)}, s{T0} offen
s_add_u32 s{S_PFC}, s{S_PFC}, 1
s_cmp_eq_u32 s{S_PFC}, 6
s_cselect_b32 s{S_PFC}, 0, s{S_PFC}""")
    def p2_tile(self, typ):
        m = self.o.get("map", 0)
        if m == 0:
            tab = [[(j & 7, 4 + 6 * (j >> 3)) for j in range(16)],
                   [(j, 0) for j in range(8)] + [(8 + (j >> 2), 4 * (j & 3)) for j in range(8)]][typ]
        else:
            t6 = [(c, 6 * k) for c in range(3) for k in range(4)] + [(c, 6 * k) for c in (3, 4) for k in range(2)]
            t4 = [(c, 24 + 4 * k) for c in range(3) for k in range(2)] + [(c, 12 + 4 * k) for c in (3, 4) for k in range(5)]
            tab = [t6, t4][typ]
        by = [c | ((r // 2) << 4) for c, r in tab]
        w = [sum(by[4 * k + i] << (8 * i) for i in range(4)) for k in range(4)]
        self.e(f"""s_mov_b32 s{S_M1}, {hex(w[0])}
s_mov_b32 s{S_M1+1}, {hex(w[1])}
s_mov_b32 s{T1}, {hex(w[2])}
s_mov_b32 s{T2}, {hex(w[3])}
s_bitcmp1_b32 s2, 6
s_cselect_b32 s{S_M1}, s{T1}, s{S_M1}
s_cselect_b32 s{S_M1+1}, s{T2}, s{S_M1+1}
s_and_b32 s{T0}, s2, 0x38
s_lshr_b64 s[{S_M1}:{S_M1+1}], s[{S_M1}:{S_M1+1}], s{T0}
s_and_b32 s{S_CT}, s{S_M1}, 15
s_bfe_u32 s{S_RT0}, s{S_M1}, 0x40004
s_lshl_b32 s{S_RT0}, s{S_RT0}, 1""")
        if m == 0:
            self.e(f"s_lshl_b32 s{T0}, s{S_XCD}, 4\ns_add_u32 s{S_RT0}, s{S_RT0}, s{T0}")
        else:
            self.e(f"""s_lshr_b32 s{T0}, s{S_XCD}, 1
s_lshl_b32 s{T0}, s{T0}, 5
s_add_u32 s{S_RT0}, s{S_RT0}, s{T0}
s_and_b32 s{T0}, s{S_XCD}, 1
s_mul_i32 s{T0}, s{T0}, 5
s_add_u32 s{S_CT}, s{S_CT}, s{T0}""")

    def gen(self):
        n = NAME + "_kernel"
        a, b, c, d = TA, TB, TC, TD
        self.e(f"""s_memrealtime s[{S_M0}:{S_M0+1}]
s_cmp_ge_u32 s2, 256
s_cbranch_scc1 L_exit
s_load_dwordx16 s[32:47], s[0:1], 0
s_load_dwordx2 s[48:49], s[0:1], 64
v_lshrrev_b32 v{a}, 6, v0
v_and_b32 v{V_LANE}, 63, v0
v_readfirstlane_b32 s{S_W}, v{a}
s_and_b32 s{S_XCD}, s2, 7
s_lshr_b32 s{T0}, s2, 3
s_and_b32 s{S_MT}, s{T0}, 7
s_and_b32 s{T1}, s2, 4
s_lshl_b32 s{T1}, s{T1}, 1
s_or_b32 s{S_MT}, s{S_MT}, s{T1}
s_and_b32 s{S_NT}, s2, 3
s_lshl_b32 s{S_NT}, s{S_NT}, 1
s_bfe_u32 s{T1}, s2, 0x10006
s_or_b32 s{S_NT}, s{S_NT}, s{T1}
s_lshr_b32 s{S_TG}, s{S_W}, 2
s_and_b32 s{S_H}, s{S_W}, 3""")
        if self.diag: self.e("v_mov_b32 v0, 0")
        self.e(f"""v_lshrrev_b32 v{a}, 3, v{V_LANE}
s_and_b32 s{T1}, s{S_W}, 1
s_lshl_b32 s{T1}, s{T1}, 2
v_lshrrev_b32 v{b}, 4, v{V_LANE}
v_or_b32 v{b}, s{T1}, v{b}
v_and_b32 v{c}, 7, v{V_LANE}
v_xor_b32 v{b}, v{b}, v{c}
s_lshl_b32 s{T1}, s{S_W}, 3
v_add_u32 v{a}, s{T1}, v{a}
v_mul_u32_u24 v{a}, 2560, v{a}
v_lshl_add_u32 v{V_DMA[0]}, v{b}, 4, v{a}
s_and_b32 s{T1}, s{S_MT}, 7
s_mul_i32 s{SOU[0]}, s{T1}, {128*2560}
s_lshr_b32 s{T2}, s{S_MT}, 3
s_mul_i32 s{T2}, s{T2}, 1280
s_add_u32 s{SOU[0]}, s{SOU[0]}, s{T2}
s_add_u32 s{SOU[1]}, s{SOU[0]}, {64*2560}
s_mov_b32 s{STEP[0]}, 128
s_lshl_b32 s{T2}, s{S_W}, 10
s_add_u32 s{DD[0]}, s{T2}, 2048
s_add_u32 s{DD[1]}, s{T2}, {2048+8192}
s_add_u32 s{DD[2]}, s{T2}, {XREG}
s_add_u32 s{DD[3]}, s{T2}, {XREG+8192}
s_add_u32 s{DD[4]}, s{T2}, {XREG+16384}
s_add_u32 s{DD[5]}, s{T2}, {XREG+24576}
s_lshl_b32 s{T3}, s{S_W}, 6
@save entry
s_cmp_ge_u32 s2, 128
s_cbranch_scc1 L_mlp""")
        for i in range(2, 6):
            v = V_DMA[i]
            self.e(f"""v_add_u32 v{a}, s{T3}, v{V_LANE}
v_add_u32 v{a}, {512*(i-2)}, v{a}
v_mul_u32_u24 v{b}, 2185, v{a}
v_lshrrev_b32 v{b}, 16, v{b}
v_mul_u32_u24 v{c}, 30, v{b}
v_sub_u32 v{a}, v{a}, v{c}""")
            self.kperm(c, b, d)
            self.e(f"""v_mul_u32_u24 v{v}, 3840, v{c}
v_mul_u32_u24 v{b}, 26, v{a}
v_lshrrev_b32 v{b}, 8, v{b}
v_mul_u32_u24 v{b}, {1280-160}, v{b}
v_lshl_add_u32 v{a}, v{a}, 4, v{b}
v_add_u32 v{v}, v{v}, v{a}""")
        self.e(f"""s_mul_i32 s{SOU[2]}, s{S_NT}, 160
s_mov_b32 s{SOU[5]}, s{SOU[2]}
s_mov_b32 s{STEP[2]}, {64*3840}
s_mov_b32 s{STEP[5]}, {64*3840}
s_waitcnt lgkmcnt(0)""")
        self.mksrd(SRD0, P_X, 2048 * 1280); self.mksrd(SRD1, P_WQKV, 640 * 3840); self.mksrd(SRD2, P_WQKV, 640 * 3840)
        self.e(f"""s_cmp_lt_u32 s{S_W}, 6
s_cbranch_scc1 L_a_go
s_mov_b32 s{SRD2}, s{P_X}
s_mov_b32 s{SRD2+1}, s{P_X+1}
s_mov_b32 s{SRD2+2}, {2048*1280}
v_mov_b32 v{V_DMA[5]}, v{V_DMA[0]}
s_mov_b32 s{STEP[5]}, 128
s_sub_u32 s{DD[5]}, s{T2}, 6144
s_sub_u32 s{SOU[5]}, s{SOU[0]}, {64*2560}
s_cmp_eq_u32 s{T1}, 0
s_cselect_b32 s{SOU[5]}, s{SOU[0]}, s{SOU[5]}
L_a_go:""")
        self.start("a", 6)
        self.start2("a", 6)
        self.e(f"s_cmp_eq_u32 s{S_TG}, 1\ns_cbranch_scc1 L_a1")
        self.main_loop("a0")
        self.e("@chk a\ns_branch L_aepi\nL_a1:")
        self.main_loop("a1")
        self.e("@chk a\nL_aepi:")
        self.attn_epi()
        self.p2(4, 1)
        self.e(self.slow); self.slow = []
        self.e("L_mlp:\n@load entry")
        for i in range(2, 5):
            v = V_DMA[i]
            self.e(f"""v_add_u32 v{a}, s{T3}, v{V_LANE}
v_add_u32 v{a}, {512*(i-2)}, v{a}
v_mul_u32_u24 v{b}, 2731, v{a}
v_lshrrev_b32 v{b}, 16, v{b}
v_mul_u32_u24 v{c}, 24, v{b}
v_sub_u32 v{a}, v{a}, v{c}""")
            self.kperm(c, b, d)
            self.e(f"""v_mul_u32_u24 v{v}, 3072, v{c}
v_and_b32 v{b}, 6, v{b}
v_xor_b32 v{a}, v{a}, v{b}
v_lshl_add_u32 v{v}, v{a}, 4, v{v}""")
        self.e(f"""s_mul_i32 s{SOU[2]}, s{S_NT}, 384
s_mov_b32 s{STEP[2]}, {64*3072}
s_waitcnt lgkmcnt(0)""")
        self.mksrd(SRD0, P_X, 2048 * 1280); self.mksrd(SRD1, P_W1, 640 * 3072)
        self.start("m", 5)
        self.start2("m", 5)
        self.main_loop("m")
        self.mlp_epi()
        self.p2(6, 0)
        self.e(self.slow); self.slow = []
        self.e("L_exit:\ns_endpgm")
        self.join_check()
        lines = self.resolve([x for x in self.L if not x.startswith("@chk")])
        lines, nn = hz.fix(lines)
        hdr = open("cdna_kernels/" + NAME + ".s.ref").read().split("; Override")[0]
        s = hdr + f"; @launch grid=(256,1,1) block=(512,1,1) lds=163840\n" + TARGET + head(n) + "\n".join(lines) + "\n" + kd(n, 256, 100, 256)
        return s, nn
    def join_check(self):
        vm = lg = 0; tv = {}; tl = {}; saved = {}; snaps = []
        for x in self.L:
            if x.startswith("@save"): saved[x.split()[1]] = (vm, lg, dict(tv), dict(tl)); continue
            if x.startswith("@load"): vm, lg, tv, tl = saved[x.split()[1]]; tv = dict(tv); tl = dict(tl); continue
            if x.startswith("@chk"): snaps.append(({k: vm - v for k, v in tv.items()}, {k: lg - v for k, v in tl.items()})); continue
            tag = None
            if x.startswith("@t "): _, tag, x = x.split(None, 2)
            if x.startswith("buffer_"):
                vm += 1
                if tag: tv[tag] = vm
            elif x.startswith("ds_"):
                lg += 1
                if tag: tl[tag] = lg
        (v0, l0), (v1, l1) = snaps
        for k in v1: assert v1[k] <= v0[k], ("vm", k, v0[k], v1[k])

if __name__ == "__main__":
    diag = "--diag" in sys.argv
    out = [a for a in sys.argv[1:] if not a.startswith("--")]
    opt = {}
    for a in sys.argv[1:]:
        if a.startswith("--") and "=" in a:
            k, v = a[2:].split("="); opt[k] = int(v)
    s, nn = G(diag=diag, **opt).gen()
    open(out[0] if out else "cdna_kernels/" + NAME + ".s", "w").write(s)
    print("nops inserted:", nn, "lines:", s.count("\n"))
```

```python
import sys, math, struct
from asmlib import NAME, kd, head, TARGET
import hz

def f2u(x): return struct.unpack("<I", struct.pack("<f", x))[0]
SPIN = 0x40000
SLOT = 49152; XREG = 18432
S1 = 32768; S2 = 147456
L_STAT = S2; L_CS = S2 + 1280; L_CP = S2 + 2304; L_DUMMY = L_CP; L_REC = S2 + 4352; REC = 272
L_CNT = S2 + 15360
A2_BLK = 9216; A2_RT = 8 * A2_BLK
FLAG_BASE = 128 * A2_RT
ROWT = FLAG_BASE + 65536; COLT = ROWT + 65536
STAMP_BASE = COLT + 131072
WS_BYTES = STAMP_BASE + 256 * 8 * 256
OOB = 0x40000000
ONE2 = 0x3f803f80; NEGBIG = f2u(-1.0e30); LOG2E = math.log2(math.e)
DPP = "row_mask:0xf bank_mask:0xf"

SRD0, SRD1, SRD2, SRDWS, SRDDBG, SRDOUT, SRDC = 4, 8, 12, 16, 20, 24, 28
P_X, P_WQKV, P_WO, P_W1, P_W2, P_OUT, P_DBG, P_WS = 32, 34, 36, 40, 42, 44, 46, 48
SRDWO, SRDW2, SRDPF = 36, 40, 96
SOU = [50, 51, 52, 52, 52, 53]; STEP = [54, 54, 55, 55, 55, 56]; DD = [57, 58, 59, 60, 61, 62]
S_W, S_MT, S_NT, S_TG, S_H, S_CT, S_RT0, S_NONCE, S_B2H, S_B2O, S_XCD = 63, 64, 65, 66, 67, 68, 69, 70, 71, 72, 73
S_W2K, S_WB, S_ST, S_ROWS, S_COLS, S_A2, S_DELTA, S_FL = 74, 75, 76, 77, 78, 79, 80, 87
S_FOWN = 34
UN = 16384
T0, T1, T2, T3, T4, TF = 81, 82, 83, 84, 85, 86
S_M0, S_M1, S_TS = 88, 90, 92
S_PFC = 3
RSA = 210
S_J, S_O = 44, 28
V_LANE, V_L16, V_B2, V_B2L, V_G, V_I, V_TRB = 1, 2, 3, 4, 5, 6, 7
V_X0, V_X1, V_W0, V_W1, V_W2 = 8, 9, 12, 14, 173
HI = {V_X0: 10, V_X1: 11, V_W0: 13, V_W1: 15, V_W2: 174}
AR = 8
V_FA, V_FD = 12, 13
ACC = 16; SETA, SETB = 96, 132
V_DMA = [168, 168, 169, 170, 171, 172]
BHK = [176, 192, 208, 224, 240, 160]
RX, RU, RT, V_NON = 176, 186, 206, 208
RS, CA, CD, CW = 92, 60, 76, [16, 20, 24, 28, 44]
V_CPW, V_CPR, V_CST, V_RST = 218, 219, 220, 221
V_CON, V_CA, V_CB, V_CK = 222, 223, 224, 225
CC = 226
V_PF, V_PFD = 234, 235
TA, TB, TC, TD = 236, 237, 238, 239
MC, MP, MP0, MB, VC = 240, 244, 248, 252, 254

def L(s): return [x.strip() for x in s.strip("\n").split("\n") if x.strip()]
def mfma(d, a, b, c=None):
    c = f"v[{d}:{d+3}]" if c is None else (c if isinstance(c, str) else f"v[{c}:{c+3}]")
    return f"v_mfma_f32_16x16x32_bf16 v[{d}:{d+3}], v[{a}:{a+3}], v[{b}:{b+3}], {c}"
def pk(op, d, *src, neg=None):
    ops = []; lo = []; hi = []
    for x in src:
        if isinstance(x, tuple): r = x[1]; ops.append(f"v[{r & ~1}:{(r & ~1) + 1}]"); lo.append(r & 1); hi.append(r & 1)
        elif isinstance(x, str): ops.append(x); lo.append(0); hi.append(0)
        else:
            assert x % 2 == 0; ops.append(f"v[{x}:{x+1}]"); lo.append(0); hi.append(1)
    assert d % 2 == 0
    f = lambda l: "[" + ",".join(map(str, l)) + "]"
    t = f"v_pk_{op}_f32 v[{d}:{d+1}], " + ", ".join(ops) + f" op_sel:{f(lo)} op_sel_hi:{f(hi)}"
    if neg: t += f" neg_lo:{f(neg)} neg_hi:{f(neg)}"
    return t
def srd(r): return f"s[{r}:{r+3}]"
def merge(main, groups, start, step):
    out = []; g = list(groups); nxt = start
    for i, x in enumerate(main):
        out.append(x)
        while g and i >= nxt:
            out += g.pop(0); nxt += step
    for x in g: out += x
    return out

def pace(main, groups, start, end):
    w = [4 if any("buffer_" in x for x in g) else 1 for g in groups]
    tot = sum(w); pos = {}; acc = 0
    for g, k in zip(groups, w):
        pos.setdefault(start + int(acc * (end - start) / tot), []).append(g); acc += k
    out = []
    for i, x in enumerate(main):
        out.append(x)
        for g in pos.get(i, []): out += g
    return out

class G:
    def __init__(self, diag=False, **opt):
        self.L = []; self.slow = []; self.diag = diag; self.o = opt; self.uid = 0; self.bud = 2
    def e(self, s):
        self.L += L(s) if isinstance(s, str) else list(s)
    def lab(self, p):
        self.uid += 1; return f"L_{p}_{self.uid}"
    def mksrd(self, r, ptr, nbytes):
        self.e(f"s_mov_b32 s{r}, s{ptr}\ns_mov_b32 s{r+1}, s{ptr+1}\ns_mov_b32 s{r+2}, {nbytes}\ns_mov_b32 s{r+3}, 0x20000")
    def stamp(self, idx):
        if not self.diag: return []
        return L(f"""s_memrealtime s[{S_TS}:{S_TS+1}]
s_memtime s[{S_TS+2}:{S_TS+3}]
s_waitcnt lgkmcnt(0)
v_writelane_b32 v0, s{S_TS}, {idx}
v_writelane_b32 v0, s{S_TS+2}, {idx+16}""")
    def resolve(self, lines):
        import copy
        out = []; st = [dict(vm=0, lg=0, tv={}, tl={}) for _ in range(2)]; saved = {}; live = (0, 1)
        for x in lines:
            if x.startswith("@save"): saved[x.split()[1]] = copy.deepcopy(st); continue
            if x.startswith("@load"): st = copy.deepcopy(saved[x.split()[1]]); continue
            if x.startswith("@only"): live = (int(x.split()[1]),); continue
            if x.startswith("@all"): live = (0, 1); continue
            if x.startswith("@x "): out.append(x[3:]); continue
            if x.startswith("@wv"):
                p = x.split(None, 2); n = min(st[k]["vm"] - st[k]["tv"][p[1]] for k in live)
                out.append(f"s_waitcnt vmcnt({min(62, n)}) {p[2] if len(p) > 2 else ''}".strip()); continue
            if x.startswith("@wl"):
                p = x.split(); n = [st[k]["lg"] - st[k]["tl"][p[1]] for k in live if p[1] in st[k]["tl"]]
                out.append(f"s_waitcnt lgkmcnt({min(14, min(n))})"); continue
            tag = None
            if x.startswith("@t "): _, tag, x = x.split(None, 2)
            for k in live:
                if x.startswith("buffer_"):
                    st[k]["vm"] += 1
                    if tag: st[k]["tv"][tag] = st[k]["vm"]
                elif x.startswith("ds_"):
                    st[k]["lg"] += 1
                    if tag: st[k]["tl"][tag] = st[k]["lg"]
            out.append(x)
        return [x if x.endswith(":") else "  " + x for x in out]
    def only(self, tg, groups):
        sk = self.lab("skip")
        self.e(f"s_cmp_lg_u32 s{S_TG}, {tg}\ns_cbranch_scc1 {sk}\n@only {tg}")
        for g in groups: self.e(g)
        self.e(f"@all\n{sk}:")
    def spin(self, check, reload_, pro=()):
        sl, bk, lp = self.lab("slow"), self.lab("back"), self.lab("lp")
        self.slow += [f"{sl}:"] + ["@x " + x for x in pro] + [f"s_mov_b32 s{TF}, 0", f"{lp}:", f"s_add_u32 s{TF}, s{TF}, 1", f"s_cmp_gt_u32 s{TF}, {SPIN}",
                      f"s_cbranch_scc1 {bk}", f"s_sleep {self.o.get('slp', 1)}"] + ["@x " + x for x in reload_] + ["s_waitcnt vmcnt(0)"] + check + \
                     [f"s_cbranch_vccnz {lp}", f"s_branch {bk}"]
        return check + [f"s_cbranch_vccnz {sl}", f"{bk}:"]

    def u_dma(self, i, st):
        r = [SRD0, SRD0, SRD1, SRD1, SRD1, SRD2][i]
        o = [f"s_add_u32 m0, s{DD[i]}, {(st % 3) * SLOT}",
             f"@t s{st} buffer_load_dwordx4 v{V_DMA[i]}, {srd(r)}, s{SOU[i]} offen lds"]
        if i in (0, 1, 4, 5) and st < 9: o.append(f"s_add_u32 s{SOU[i]}, s{SOU[i]}, s{STEP[i]}")
        return o
    def stage(self, nd, st): return [self.u_dma(i, st) for i in range(nd)]
    def lds(self, reg, off): return f"v{reg} offset:{off}" if off < 65536 else f"v{HI[reg]} offset:{off-65536}"
    def p1_mfmas(self, kind, S, final=False, c=None):
        o = []
        if kind == "m":
            for j in range(1, 5):
                for t in range(3): o.append(mfma(ACC + 16 * j + 4 * t, S + 20 + 4 * t, S + 4 * j, c))
            return o
        jf = [(j, f) for j in (range(5) if kind == "a0" else range(1, 5)) for f in range(4) if (j, f) != (0, 0)]
        if final and kind == "a0": jf = [(4, 1), (4, 2), (4, 3)] + [x for x in jf if x not in ((4, 1), (4, 2), (4, 3))]
        for j, f in jf:
            w, x = S + 20 + 4 * f, S + 4 * j
            o.append(mfma(ACC + 16 * j + 4 * f, *((x, w) if f == 2 else (w, x)), c))
        return o
    def u_reads(self, kind, S, st, kk):
        xs = []; ws = []; sb = (st % 3) * SLOT; vx = [V_X0, V_X1][kk]
        for j in (range(5) if kind == "a0" else range(1, 5)):
            xs.append(f"ds_read_b128 v[{S+4*j}:{S+4*j+3}], {self.lds(vx, sb + 2048*j)}")
        for f in range(3 if kind == "m" else 4):
            for hf in range(2):
                r = S + 20 + 4 * f + 2 * hf; row = hf * 16 + kk * 32
                if kind == "m": a = self.lds([V_W0, V_W1, V_W2][f], sb + row * 384)
                elif f < 3: a = self.lds(V_W0, sb + row * 480 + 160 * f)
                else: a = self.lds(V_W1, sb + row * 480)
                ws.append(f"ds_read_b64_tr_b16 v[{r}:{r+1}], {a}")
        return [xs[0]] + ws + xs[1:]
    def u_phase(self, mf, reads, fill, dm, prios, last):
        reads = list(reads); n = len(mf)
        span = (n * 3) // 4 - 1 if last else n - 2
        dpos = {}
        for k in range(len(dm)): dpos.setdefault((k * span) // len(dm), []).append(dm[k])
        pend = []
        for idx, m in enumerate(mf):
            if prios and idx == 0: self.e(f"s_setprio {prios[0]}")
            if prios and idx == n // 2: self.e(f"s_setprio {prios[1]}")
            self.e(m); self.e(pend); pend = []
            if reads: self.e(reads.pop(0))
            budget = self.bud
            while fill and budget > 0 and not (last and idx > span):
                if "@fat" in fill[0] and budget < self.bud: break
                g = fill.pop(0); self.e([x for x in g if x != "@fat"])
                budget -= 9 if "@fat" in g else max(1, sum(1 for x in g if x.startswith(("v_", "ds_", "@t"))))
            ds = dpos.get(idx, [])
            for q, lines in enumerate(ds):
                bi = [i for i, x in enumerate(lines) if "buffer_" in x][0]
                if q == len(ds) - 1 and idx < n - 1: self.e(lines[:bi]); pend = lines[bi:]
                else: self.e(lines)
        assert not pend and not reads

    def hsum(self, r, t):
        return [f"v_add_f32_dpp v{r}, v{r}, v{r} {k} {DPP}" for k in ("quad_perm:[1,0,3,2]", "quad_perm:[2,3,0,1]", "row_half_mirror", "row_mirror")] + \
               L(f"v_mov_b32 v{t}, v{r}\nv_permlane16_swap_b32 v{r}, v{t}\nv_add_f32 v{r}, v{r}, v{t}")
    def gsum(self, r, t):
        return [[x] for x in L(f"""v_mov_b32 v{t}, v{r}
v_permlane16_swap_b32 v{r}, v{t}
v_add_f32 v{r}, v{r}, v{t}
v_mov_b32 v{t}, v{r}
v_permlane32_swap_b32 v{r}, v{t}
v_add_f32 v{r}, v{r}, v{t}""")]
    def prod1(self):
        s, q, t = RS, RS + 2, RT
        if self.o.get("rowa", 0):
            return ["@wv side"] + [mfma(CD, CA, CW[k], "0" if k == 0 else None) for k in range(5)] + \
                   [f"v_add_f32_dpp v{CD+r}, v{CD+r}, v{CD+r} row_ror:8 {DPP}" for r in range(4)] + [f"ds_write_b128 v{V_CPW}, v[{CD}:{CD+3}]"]
        o = ["@wv rows"]
        for k in range(10): o += [f"v_lshlrev_b32 v{RU+2*k}, 16, v{RX+k}", f"v_and_b32 v{RU+2*k+1}, 0xffff0000, v{RX+k}"]
        o += [pk("add", s, RU, RU + 2), pk("add", t, RU + 4, RU + 6)]
        for k in range(4, 10): o.append(pk("add", [s, t][k & 1], [s, t][k & 1], RU + 2 * k))
        o += [pk("add", s, s, t), f"v_add_f32 v{s}, v{s}, v{s+1}"] + self.hsum(s, t)
        o.append(f"v_mul_f32 v{s}, {hex(f2u(1.0/640))}, v{s}")
        for k in range(10): o.append(pk("add", RU + 2 * k, RU + 2 * k, ("b", s), neg=[0, 1]))
        o += [pk("mul", q, RU, RU), pk("mul", t, RU + 2, RU + 2)]
        for k in range(2, 10): o.append(pk("fma", [q, t][k & 1], RU + 2 * k, RU + 2 * k, [q, t][k & 1]))
        o += [pk("add", q, q, t), f"v_add_f32 v{q}, v{q}, v{q+1}"]
        o += ["@wv side"] + [mfma(CD, CA, CW[k], "0" if k == 0 else None) for k in range(5)]
        o += self.hsum(q, t)
        o += L(f"""v_mul_f32 v{q}, {hex(f2u(1.0/640))}, v{q}
v_cvt_pk_bf16_f32 v{t}, v{s}, v{q}
v_lshlrev_b32 v{s}, 16, v{t}
v_and_b32 v{q}, 0xffff0000, v{t}
v_xor_b32 v{s}, 0x80000000, v{s}
v_add_f32 v{q}, {hex(f2u(1e-5))}, v{q}
v_cvt_pk_bf16_f32 v{t}, v{q}, v{q}
v_and_b32 v{q}, 0xffff0000, v{t}
v_sqrt_f32 v{q}, v{q}""")
        for r in range(4): o.append(f"v_add_f32_dpp v{CD+r}, v{CD+r}, v{CD+r} row_ror:8 {DPP}")
        o += L(f"""v_cvt_pk_bf16_f32 v{t}, v{q}, v{q}
ds_write_b128 v{V_CPW}, v[{CD}:{CD+3}]
v_and_b32 v{q}, 0xffff0000, v{t}
v_rcp_f32 v{q}, v{q}""")
        return o
    def prod_rows(self):
        s, q, t = RSA, RSA + 2, RT
        o = []
        for k in range(10): o += [f"v_lshlrev_b32 v{RU+2*k}, 16, v{RX+k}", f"v_and_b32 v{RU+2*k+1}, 0xffff0000, v{RX+k}"]
        o += [f"v_add_f32 v{s}, v{RU}, v{RU+1}", f"v_add_f32 v{t}, v{RU+2}, v{RU+3}"]
        for k in range(4, 20): o.append(f"v_add_f32 v{[s, t][k & 1]}, v{[s, t][k & 1]}, v{RU+k}")
        o += [f"v_add_f32 v{s}, v{s}, v{t}"] + ["!" + x for x in self.hsum(s, t)]
        o.append(f"v_mul_f32 v{s}, {hex(f2u(1.0/640))}, v{s}")
        for k in range(20): o.append(f"v_sub_f32 v{RU+k}, v{RU+k}, v{s}")
        o += [f"v_mul_f32 v{q}, v{RU}, v{RU}", f"v_mul_f32 v{t}, v{RU+1}, v{RU+1}"]
        for k in range(2, 20): o.append(f"v_fmac_f32 v{[q, t][k & 1]}, v{RU+k}, v{RU+k}")
        o += [f"v_add_f32 v{q}, v{q}, v{t}"] + ["!" + x for x in self.hsum(q, t)]
        o += L(f"""v_mul_f32 v{q}, {hex(f2u(1.0/640))}, v{q}
v_cvt_pk_bf16_f32 v{t}, v{s}, v{q}
v_lshlrev_b32 v{s}, 16, v{t}
v_and_b32 v{q}, 0xffff0000, v{t}
v_xor_b32 v{s}, 0x80000000, v{s}
v_add_f32 v{q}, {hex(f2u(1e-5))}, v{q}
v_cvt_pk_bf16_f32 v{t}, v{q}, v{q}
v_and_b32 v{q}, 0xffff0000, v{t}
!v_sqrt_f32 v{q}, v{q}
v_cvt_pk_bf16_f32 v{t}, v{q}, v{q}
v_and_b32 v{q}, 0xffff0000, v{t}
!v_rcp_f32 v{q}, v{q}
v_mov_b32 v{RSA+1}, v{V_NON}
v_mov_b32 v{RSA+3}, v{V_NON}
buffer_store_dwordx4 v[{RSA}:{RSA+3}], v{V_RST}, {srd(SRDWS)}, s{S_ROWS} offen sc1""")
        g = [[x.lstrip("!"), "@fat"] if x[0] == "!" else [x] for x in o]
        g[0] = ["@wv rows"] + g[0]
        return g
    def nonce_ld(self): return f"buffer_load_dword v{V_NON}, off, {srd(SRDDBG)}, 0 sc1"
    def nonce_chk(self): return self.spin([f"v_cmp_eq_u32 vcc, 0, v{V_NON}"], [self.nonce_ld()]) + [f"v_readfirstlane_b32 s{S_NONCE}, v{V_NON}"]
    def prod2(self):
        a = [f"@t cp ds_read_b32 v{CD}, v{V_CPR}"] + self.nonce_chk() + [f"v_mov_b32 v{RS+1}, v{V_NON}", f"v_mov_b32 v{RS+3}, v{V_NON}",
             f"buffer_store_dwordx4 v[{RS}:{RS+3}], v{V_RST}, {srd(SRDWS)}, s{S_ROWS} offen sc1"]
        if self.o.get("rowa", 0): a = a[:-3]
        b = [[f"v_add_f32_dpp v{CD}, v{CD}, v{CD} row_ror:8 {DPP}"], [f"v_mov_b32 v{CD+1}, v{V_NON}"]] + self.gsum(CD, CD + 2)
        b += [[f"buffer_store_dwordx2 v[{CD}:{CD+1}], v{V_CST}, {srd(SRDWS)}, s{S_COLS} offen sc1"]]
        return a, b
    def cons_load(self): return f"buffer_load_dwordx4 v[{CC}:{CC+3}], v{V_CON}, {srd(SRDWS)}, 0 offen sc1"
    def cons(self):
        chk = L(f"""v_cmp_ne_u32 vcc, s{S_NONCE}, v{CC+1}
v_cmp_ne_u32 s[{S_M0}:{S_M0+1}], s{S_NONCE}, v{CC+3}
s_or_b64 vcc, vcc, s[{S_M0}:{S_M0+1}]""")
        return [["@wv con"] + self.spin(chk, [self.cons_load()]),
                [f"ds_write_b32 v{V_CB}, v{CC+2}"], [f"v_fmac_f32 v{CC}, v{V_CK}, v{CC+2}"], [f"ds_write_b32 v{V_CA}, v{CC}"]]

    def b2_dma(self, n):
        if n < 8: r, base, ro, v = SRDW2, S_B2H, 96 * (n >> 2) + 32 + 48 * (n & 1) + 8 * ((n >> 1) & 1), V_B2
        elif n < 24: r, base, ro, v = SRDW2, S_B2H, 48 * ((n - 8) >> 2) + 8 * (n & 3), V_B2
        elif n < 32:
            m = n - 24; r, base, ro, v = SRDWO, S_B2O, 40 * (m >> 2) + 20 * (m & 1) + 8 * ((m >> 1) & 1), V_B2
        else: r, base, ro, v = SRDWO, S_B2O, 16 + 40 * (n - 32), V_B2L
        hh = n >> 1; u = self.place[hh]
        prev = [k for k in range(hh) if self.place[k] == u]
        w = [f"@wl r{prev[-1]}"] if prev and n & 1 == 0 else []
        return w + [f"s_add_u32 m0, s{S_W2K}, {UN * u + 1024 * (n & 1)}", f"s_add_u32 s{TF}, s{base}, {ro*1280}",
                    f"@t h{hh} buffer_load_dwordx4 v{v}, {srd(r)}, s{TF} offen lds"]
    def b2_read(self, halves):
        o = []; lo = None
        for hh in halves:
            u = self.place[hh]; base = BHK[(hh >> 1) % 6]
            if lo is None or not lo <= u < lo + 4:
                rest = [self.place[k] for k in halves[halves.index(hh):]]
                lo = min([k for k in rest if 0 <= u - k < 4 and max(x for x in rest if x >= k and x - k < 4) >= u])
                o += [[f"v_add_u32 v{AR}, {UN * lo}, v{V_TRB}", f"v_xor_b32 v{AR+1}, 32, v{AR}"],
                      [f"v_xor_b32 v{AR+2}, 64, v{AR}", f"v_xor_b32 v{AR+3}, 0x60, v{AR}"]]
            assert 0 <= u - lo < 4
            for t in range(4):
                r = base + 4 * t + 2 * (hh & 1)
                o.append(([f"@wv h{hh}"] if t == 0 else []) + [f"@t r{hh} ds_read_b64_tr_b16 v[{r}:{r+1}], v{AR+t} offset:{UN * (u - lo)}"])
                if hh == 16: o.append([f"@t r{hh} ds_read_b64_tr_b16 v[{r+2}:{r+3}], v{AR+t} offset:{UN * (u - lo)}"])
        return o
    def b2_refill(self, halves): return [self.b2_dma(n) for hh in halves for n in (2 * hh, 2 * hh + 1)]

    QA, CS, VA = 96, 106, [156, 120, 132, 140, 148]
    def stat_reads(self, kind, which):
        t0, t1 = 14, 15
        if kind == "m":
            o = [L(f"s_lshl_b32 s{TF}, s{S_TG}, 8\ns_add_u32 s{TF}, s{TF}, {L_STAT+64}\nv_lshl_add_u32 v{t0}, v{V_I}, 2, s{TF}"),
                 L(f"s_lshl_b32 s{TF}, s{S_H}, 8\ns_add_u32 s{TF}, s{TF}, {L_CS}\nv_lshl_add_u32 v{t1}, v{V_G}, 4, s{TF}")]
            for j in range(4): o.append([f"ds_read2_b32 v[{96+2*j}:{97+2*j}], v{t0} offset0:{16*j} offset1:{160+16*j}"])
            for t in range(3): o.append([f"@t st ds_read_b128 v[{104+4*t}:{107+4*t}], v{t1} offset:{64*t}"])
            return o
        QA, CS, VA = self.QA, self.CS, self.VA
        def va(j): return [[f"ds_read_b128 v[{VA[j]}:{VA[j]+3}], v{t1} offset:{64*j}"], [f"@t va{j} ds_read_b128 v[{VA[j]+4}:{VA[j]+7}], v{t1} offset:{640+64*j}"]]
        if which == 0:
            o = [L(f"s_lshl_b32 s{TF}, s{S_H}, 8\ns_add_u32 s{TF}, s{TF}, {L_CS}\nv_lshl_add_u32 v{t0}, v{V_G}, 4, s{TF}\nv_lshl_add_u32 v{t1}, v{V_I}, 2, s{TF}")]
            o += [[f"ds_read_b128 v[{CS}:{CS+3}], v{t0}"], [f"ds_read_b128 v[{CS+4}:{CS+7}], v{t0} offset:64"],
                  [f"ds_read_b128 v[{CS+8}:{CS+11}], v{t0} offset:192"], [f"ds_read_b32 v{CS+12}, v{t1} offset:128"]]
            o += [L(f"s_lshl_b32 s{TF}, s{S_TG}, 8\ns_add_u32 s{TF}, s{TF}, {L_STAT}\nv_lshl_add_u32 v{t0}, v{V_I}, 2, s{TF}\nv_lshl_add_u32 v{t1}, v{V_G}, 4, s{TF}")]
            for j in range(5): o.append([f"ds_read2_b32 v[{QA+2*j}:{QA+2*j+1}], v{t0} offset0:{16*j} offset1:{160+16*j}"])
            return o + va(1)
        return [x for g in va(which % 5) for x in g]

    def main_loop(self, kind):
        M = kind == "m"; nd = 5 if M else 6; o = self.o
        P = (lambda a, b: (a, b)) if o.get("prio", 1) else (lambda a, b: None)
        self.e("@wv s0 lgkmcnt(0)\ns_barrier"); self.e(self.stamp(1))
        fill = []
        self.e(self.u_reads(kind, SETA, 0, 0))
        if M:
            self.e(self.u_reads(kind, SETB, 0, 1))
            p2a, p2b = self.prod2()
            s1 = self.stage(nd, 1); s1[-1:-1] = [[self.nonce_ld()]]
            self.e("s_waitcnt lgkmcnt(%d)" % len(self.u_reads(kind, SETB, 0, 1)))
            self.u_phase(self.p1_mfmas(kind, SETA, c="0"), [], [], s1[:o.get("km", 0)], None, False)
            self.e("s_waitcnt lgkmcnt(0)")
            self.u_phase(self.p1_mfmas(kind, SETB), [], [], [], None, False)
            for g in s1[o.get("km", 0):]: self.e(g)
            self.e(self.stamp(8)); self.e(self.prod1()); self.e(self.stamp(10))
            for g in self.stage(nd, 2): self.e(g)
        else:
            self.e("s_waitcnt lgkmcnt(0)")
            self.u_phase(self.p1_mfmas(kind, SETA, c="0"), self.u_reads(kind, SETB, 0, 1), [], ([["@t non " + self.nonce_ld()]] if o.get("rowa", 0) else []) + self.stage(nd, 1)[o.get("k1", 3):] + self.stage(nd, 2), None, False)
        for it in range(1, 10):
            if it <= 7: dm = self.stage(nd, it + 2)
            else: dm = [self.b2_dma(6 * (it - 8) + n) for n in range(6)]
            if it == (7 if M else 6): dm = [["@t con " + self.cons_load()]] + dm
            if it == 1 and not M and o.get("rowa", 0): fill = [["@wv non"] + self.nonce_chk()] + self.prod_rows(); self.bud = o.get("bud", 2)
            if it == 3 and not M and not o.get("rowa", 0): dm = [[self.nonce_ld()]] + dm
            if it == 5 and not M and not o.get("rowa", 0): fill = [self.nonce_chk()]
            if it == 8: assert not fill; self.bud = 2
            if it == (9 if M else 8): fill = self.cons()
            if it == o.get("pf0", 2) and o.get("pfwho", 1) == (0 if M else 1): dm = dm + [self.pfl]
            if o.get("its"): self.e(f"s_memtime s[{S_TS+2}:{S_TS+3}]")
            self.e(f"@wv s{it} lgkmcnt(0)\ns_barrier")
            if o.get("its"): self.e(f"s_memtime s[{S_TS}:{S_TS+1}]\nv_writelane_b32 v0, s{S_TS+2}, {48+it}")
            h = (len(dm) * 4 + 3) // 7
            if it == 1 and M:
                self.e(self.u_reads(kind, SETA, it, 0)); self.e(p2a); fill = p2b; h = 0
            else:
                self.u_phase(self.p1_mfmas(kind, SETB), self.u_reads(kind, SETA, it, 0), fill, dm[:h], P(3, 2), False)
            self.e("s_waitcnt lgkmcnt(0)")
            if o.get("its"): self.e(f"v_writelane_b32 v0, s{S_TS}, {32+it}")
            self.u_phase(self.p1_mfmas(kind, SETA), self.u_reads(kind, SETB, it, 1), fill, dm[h:], P(1, 0), not (it == 1 and M))
        assert not fill
        self.e("s_waitcnt lgkmcnt(0)\ns_barrier")
        self.e(self.stamp(9))
        fill = self.stat_reads(kind, 0)
        if kind == "a0":
            hw = [L(f"s_mul_i32 s{TF}, s{S_H}, 3072\ns_add_u32 s{TF}, s{TF}, {S1}\nv_add_u32 v13, s{TF}, v{V_L16}")]
            hw += [[f"@t hw ds_write_b128 v13, v[{ACC+64+4*f}:{ACC+67+4*f}] offset:{1024*(f-1)}", "s_nop 0"] for f in (1, 2, 3)]
            fill = fill[:7] + hw + fill[7:]
        self.u_phase(self.p1_mfmas(kind, SETB, True), [], fill, [self.b2_dma(12 + i) for i in range(4)], P(1, 0), False)
        for g in fill: self.e(g)
        if kind == "a0": self.e("@wl hw\ns_barrier")
        elif kind == "a1":
            self.e(f"s_barrier\ns_mul_i32 s{TF}, s{S_H}, 3072\ns_add_u32 s{TF}, s{TF}, {S1}\nv_add_u32 v13, s{TF}, v{V_L16}")
            for f in (1, 2, 3): self.e(f"@t halo ds_read_b128 v[{ACC+4*f}:{ACC+4*f+3}], v13 offset:{1024*(f-1)}")
        self.e(self.stamp(2))

    def flag_setup(self, n):
        return L(f"""v_and_b32 v{V_FA}, 1, v{V_LANE}
v_mul_u32_u24 v{V_FA}, {n-1}, v{V_FA}
v_add_u32 v{V_FA}, s{S_RT0}, v{V_FA}
v_and_b32 v{V_FA}, 0xf8, v{V_FA}
v_add_u32 v{V_FA}, s{S_W}, v{V_FA}
v_lshlrev_b32 v{V_FA}, 7, v{V_FA}""")
    def flag_load(self): return f"buffer_load_dword v{V_FD}, v{V_FA}, {srd(SRDWS)}, s{S_FL} offen sc1"
    def flag_issue(self, p): return [f"s_mov_b32 s{S_FL}, {FLAG_BASE + p*16384}", f"@t fl{p} " + self.flag_load()]
    def flag_check(self, p, pro=()): return [f"@wv fl{p}"] + self.spin([f"v_cmp_ne_u32 vcc, s{S_NONCE}, v{V_FD}"], [self.flag_load()], pro)
    def flag_store(self, p, t):
        sk = self.lab("nofl")
        return L(f"""v_mov_b32 v{t}, {L_CNT + 4*p}
v_mov_b32 v{t+1}, 1
s_mov_b64 exec, 1
ds_add_rtn_u32 v{t+1}, v{t}, v{t+1}
v_mov_b32 v{t}, s{S_NONCE}
s_add_u32 s{TF}, s{S_FOWN}, {p*16384}
s_waitcnt lgkmcnt(0)
v_cmp_eq_u32 vcc, 7, v{t+1}
s_cbranch_vccz {sk}
@x buffer_store_dword v{t}, off, {srd(SRDWS)}, s{TF} sc1
{sk}:
s_mov_b64 exec, -1""")

    def attn_epi(self):
        QA, CS, VA = self.QA, self.CS, self.VA
        VOP, ON = 164, 128
        t0, t1, t2 = 174, 175, 255
        m = L(f"""s_mul_i32 s{T0}, s{S_W}, {5*REC}
s_add_u32 s{T0}, s{T0}, {L_REC}
v_lshlrev_b32 v{t0}, 6, v{V_G}
v_lshl_add_u32 v{t0}, v{V_I}, 3, v{t0}
v_add_u32 v{t1}, {L_DUMMY}, v{t0}
v_add_u32 v{t0}, s{T0}, v{t0}
s_mov_b32 s{S_M0}, 0xffff
s_mov_b32 s{S_M0+1}, 0xffff
v_cndmask_b32 v{t0}, v{t1}, v{t0}, s[{S_M0}:{S_M0+1}]
v_lshl_add_u32 v{t1}, v{V_I}, 3, s{T0}
s_add_u32 s{T0}, s{T0}, 256
v_mov_b32 v{t2}, s{T0}
s_mov_b32 s{S_M0}, 0xffff0000
s_mov_b32 s{S_M0+1}, 0
v_cndmask_b32 v{t1}, v{t2}, v{t1}, s[{S_M0}:{S_M0+1}]""")
        for r in range(4): m.append(f"v_mov_b32 v{ON+r}, {hex(ONE2)}")
        for j in (1, 2, 3, 4, 0):
            A = ACC + 16 * j
            if self.o.get("eprio", 1) and j == 1: m.append("s_setprio 3")
            if j: m += self.stat_reads("a", j + 1)
            m += [f"@wl va{j}"] + ([] if j else ["@wl halo"])
            for f, cs in ((3, CS + 8), (1, CS + 4), (0, CS)):
                if j == 0 and f == 0: continue
                for r in (0, 2): m.append(pk("fma", A+4*f+r, ("b", QA+2*j), cs+r, A+4*f+r))
                for r in (0, 2): m.append(pk("mul", A+4*f+r, ("b", QA+2*j+1), A+4*f+r))
            m += L(f"""v_cvt_pk_bf16_f32 v{A+4}, v{A+4}, v{A+5}
v_cvt_pk_bf16_f32 v{A+5}, v{A+6}, v{A+7}
v_cvt_pk_bf16_f32 v{A+6}, v{A+12}, v{A+13}
v_cvt_pk_bf16_f32 v{A+7}, v{A+14}, v{A+15}
ds_write_b64 v{t0}, v[{A+6}:{A+7}] offset:{REC*j}""")
            if j:
                m += L(f"v_cvt_pk_bf16_f32 v{A}, v{A}, v{A+1}\nv_cvt_pk_bf16_f32 v{A+1}, v{A+2}, v{A+3}\n@t ql{j} ds_read_b64 v[{A+2}:{A+3}], v{t1} offset:{REC*j}")
            for r in (0, 2): m.append(pk("fma", A+8+r, VA[j]+r, ("b", CS+12), A+8+r))
            for r in (0, 2): m.append(pk("mul", A+8+r, VA[j]+4+r, A+8+r))
            m += L(f"v_cvt_pk_bf16_f32 v{VOP+2*j}, v{A+8}, v{A+9}\nv_cvt_pk_bf16_f32 v{VOP+2*j+1}, v{A+10}, v{A+11}")
            if j >= 2 or j == 0:
                jj = j - 1 if j else 4
                B = ACC + 16 * jj
                m += [f"@wl ql{jj}", mfma(B + 8, B + 4, B, MC)]
                if jj >= 2: m.append(mfma(B + 12, B - 12, B, MP))
        m.append(mfma(ACC + 16 + 12, ACC + 4, ACC + 16, MP0))
        self.blk = self.b2_block(); k = self.cut(self.o.get("nia1", 5))
        self.e(pace(m, k, 10, len(m) - 1) if k else m)
        self.e(self.stamp(11))
        VL, MX, OL, RR, RL, D = 96, 112, 116, 120, 124, 132
        m = (["s_setprio 2"] if self.o.get("eprio", 1) else []) + L(f"""v_lshrrev_b32 v{t0}, 2, v{V_LANE}
v_lshlrev_b32 v{t0}, 3, v{t0}
v_add_u32 v{t0}, s{T0}, v{t0}
v_subrev_u32 v{t0}, 0x80, v{t0}""")
        for j in range(1, 5):
            k = 0x11111111 << (j - 1)
            m += L(f"""s_mov_b32 s{S_M0}, {hex(k)}
s_mov_b32 s{S_M0+1}, {hex(k)}
v_cndmask_b32 v{t1}, v{t2}, v{t0}, s[{S_M0}:{S_M0+1}]
ds_read_b64_tr_b16 v[{VL+4*(j-1)}:{VL+4*(j-1)+1}], v{t1} offset:{REC*(j-1)}
@t vl ds_read_b64_tr_b16 v[{VL+4*(j-1)+2}:{VL+4*(j-1)+3}], v{t1} offset:{REC*j}""")
        for j in (2, 3, 4, 1):
            A = ACC + 16 * j
            for r in range(4): m.append(f"v_max_f32 v{A+8+r}, v{A+8+r}, v{A+12+r}")
            m += L(f"v_max3_f32 v{MX+j-1}, v{A+8}, v{A+9}, v{A+10}\nv_max_f32 v{MX+j-1}, v{MX+j-1}, v{A+11}")
        m0, m1, m2, m3 = MX, MX + 1, MX + 2, MX + 3
        red = L(f"""v_permlane16_swap_b32 v{m2}, v{m3}
v_permlane16_swap_b32 v{m0}, v{m1}
v_max_f32 v{m2}, v{m2}, v{m3}
v_max_f32 v{m0}, v{m0}, v{m1}
v_permlane32_swap_b32 v{m0}, v{m2}
v_max_f32 v{m0}, v{m0}, v{m2}
v_mul_f32 v{m0}, v{m0}, v{VC}
v_mov_b32 v{m2}, v{m0}
v_permlane32_swap_b32 v{m0}, v{m2}
v_mov_b32 v{m1}, v{m0}
v_mov_b32 v{m3}, v{m2}
v_permlane16_swap_b32 v{m0}, v{m1}
v_permlane16_swap_b32 v{m2}, v{m3}""")
        adr = L(f"""v_and_b32 v{t0}, 31, v{V_LANE}
v_lshlrev_b32 v{t0}, 4, v{t0}
v_lshrrev_b32 v{t1}, 5, v{V_LANE}
s_mov_b32 s{T0}, {A2_RT}
v_mad_u32_u24 v{t0}, v{t1}, s{T0}, v{t0}
v_lshlrev_b32 v{t1}, 4, v{V_I}
v_mad_u32_u24 v{t1}, v{V_G}, s{T0}, v{t1}
s_lshl_b32 s{T0}, s{S_MT}, 1
s_add_u32 s{T0}, s{T0}, s{S_TG}
s_lshl_b32 s{T0}, s{T0}, 5
s_add_u32 s{T0}, s{T0}, s{S_NT}
s_mul_i32 s{T0}, s{T0}, {A2_BLK}
s_lshl_b32 s{T1}, s{S_H}, 9
s_add_u32 s{T1}, s{T1}, s{T0}
s_add_u32 s{T1}, s{T1}, 6144
s_lshl_b32 s{T2}, s{S_H}, 8
s_add_u32 s{T2}, s{T2}, s{T0}
s_add_u32 s{T2}, s{T2}, 8192""")
        m += merge(red, [adr[i:i+2] for i in range(0, len(adr), 2)], 1, 1)
        m.append("@wl vl")
        for j in range(1, 5):
            A = ACC + 16 * j
            for r in (0, 2): m.append(pk("fma", A+8+r, A+8+r, ("b", VC), ("b", MX+j-1), neg=[0, 0, 1]))
            for r in range(4): m.append(f"v_exp_f32 v{A+8+r}, v{A+8+r}")
            m += L(f"""v_cvt_pk_bf16_f32 v{A+12}, v{A+8}, v{A+9}
v_cvt_pk_bf16_f32 v{A+13}, v{A+10}, v{A+11}
v_and_b32 v{A+14}, v{A+12}, v{MB}
v_and_b32 v{A+15}, v{A+13}, v{MB+1}
v_xor_b32 v{A+12}, v{A+12}, v{A+14}
v_xor_b32 v{A+13}, v{A+13}, v{A+15}""")
            if j == 2 and self.o.get("eprio", 1): m.append("s_setprio 1")
            if j > 1: m.append(f"v_rcp_f32 v{RR+j-2}, v{A-16+4}")
            m += [mfma(A + 4, ON, A + 12, "0"), mfma(A, VOP + 2 * (j - 1), A + 12, "0"), mfma(OL, VL + 4 * (j - 1), A + 12, "0" if j == 1 else OL)]
        k = self.cut(self.o.get("nia2", 5)) + [self.flag_setup(4), self.flag_issue(0 if self.o.get("split1", 0) else 1)]
        m = pace(m, k, 2, len(m) - 10)
        self.e(m)
        m = []
        for pr in range(2):
            Dp = ACC + 4 * pr
            for u in range(2):
                j = 1 + 2 * pr + u; A = ACC + 16 * j
                if j == 4: m.append(f"v_rcp_f32 v{RR+3}, v{A+4}")
                for r in (0, 2): m.append(pk("mul", A+r, A+r, ("b", RR+j-1)))
                m += L(f"v_cvt_pk_bf16_f32 v{Dp+2*u}, v{A}, v{A+1}\nv_cvt_pk_bf16_f32 v{Dp+2*u+1}, v{A+2}, v{A+3}")
                m.append(f"v_mov_b32_dpp v{RL}, v{RR+j-1} quad_perm:[0,1,2,3] row_mask:{hex(1<<(j-1))} bank_mask:0xf")
            m += L(f"""v_permlane32_swap_b32 v{Dp}, v{Dp+2}
v_permlane32_swap_b32 v{Dp+1}, v{Dp+3}
buffer_store_dwordx4 v[{Dp}:{Dp+3}], v{t0}, {srd(SRDWS)}, s{T1} offen sc1
s_add_u32 s{T1}, s{T1}, {2*A2_RT}""")
        for r in (0, 2): m.append(pk("mul", OL+r, OL+r, ("b", RL)))
        Dp = ACC + 8
        m += L(f"""v_cvt_pk_bf16_f32 v{Dp}, v{OL}, v{OL+1}
v_cvt_pk_bf16_f32 v{Dp+1}, v{OL+2}, v{OL+3}
v_mov_b32 v{Dp+2}, 0
v_mov_b32 v{Dp+3}, 0
@t st buffer_store_dwordx4 v[{Dp}:{Dp+3}], v{t1}, {srd(SRDWS)}, s{T2} offen sc1""")
        self.e(m); self.e(self.stamp(3))

    def mlp_epi(self):
        QA, CS, SD, E, D, a0, a1 = 96, 104, 116, 136, 16, 174, 175
        ep = self.o.get("eprio", 1)
        m = L(f"""v_and_b32 v{a0}, 31, v{V_LANE}
v_lshlrev_b32 v{a0}, 4, v{a0}
v_lshrrev_b32 v{a1}, 5, v{V_LANE}
s_mov_b32 s{T0}, {A2_RT}
v_mad_u32_u24 v{a0}, v{a1}, s{T0}, v{a0}
s_lshl_b32 s{T0}, s{S_MT}, 1
s_add_u32 s{T0}, s{T0}, s{S_TG}
s_lshl_b32 s{T0}, s{T0}, 5
s_add_u32 s{T0}, s{T0}, s{S_NT}
s_mul_i32 s{T0}, s{T0}, {A2_BLK}
s_lshl_b32 s{T1}, s{S_H}, 10
s_add_u32 s{T1}, s{T1}, s{T0}
s_add_u32 s{T1}, s{T1}, 2048
s_lshl_b32 s{T2}, s{S_H}, 9
s_add_u32 s{T2}, s{T2}, s{T0}
@wl st""")
        for j in range(4): m.append(f"v_rcp_f32 v{SD+j}, v{QA+2*j+1}")
        for j in range(4): m.append(f"v_mul_f32 v{QA+2*j+1}, {hex(f2u(-LOG2E))}, v{QA+2*j+1}")
        def silu(items):
            o = [pk("fma", A, ("b", QA+2*j), c, A) for A, j, c in items]
            o += [pk("mul", E+2*k, ("b", QA+2*j+1), A) for k, (A, j, c) in enumerate(items)]
            o += [f"v_exp_f32 v{E+k}, v{E+k}" for k in range(2 * len(items))]
            o += [pk("fma", E+2*k, E+2*k, ("b", SD+j), ("b", SD+j)) for k, (A, j, c) in enumerate(items)]
            o += [f"v_rcp_f32 v{E+k}, v{E+k}" for k in range(2 * len(items))]
            return o + [pk("mul", A, A, E+2*k) for k, (A, j, c) in enumerate(items)]
        for pr in range(2):
            if ep and pr == 0: m.append("s_setprio 3")
            it = [(ACC + 16 * (j + 1) + 8 + r, j, CS + 8 + r) for j in (2 * pr, 2 * pr + 1) for r in (0, 2)]
            Dd = D + 4 * pr
            m += silu(it) + [f"v_cvt_pk_bf16_f32 v{Dd+k}, v{A}, v{A+1}" for k, (A, j, c) in enumerate(it)]
            m += L(f"""v_permlane32_swap_b32 v{Dd}, v{Dd+2}
v_permlane32_swap_b32 v{Dd+1}, v{Dd+3}
@t st0 buffer_store_dwordx4 v[{Dd}:{Dd+3}], v{a0}, {srd(SRDWS)}, s{T2} offen sc1
s_add_u32 s{T2}, s{T2}, {2*A2_RT}""")
        for j in range(4):
            if ep and j in (0, 2): m.append(f"s_setprio {[2, 2, 1, 1][j]}")
            if j == self.o.get("jf0", 2): m.append("\n".join(["@wv st0"] + self.flag_store(0, 24)))
            A = ACC + 16 * (j + 1)
            if j == 0: m += self.flag_setup(6)
            m += silu([(A + r, j, CS + r) for r in (0, 2, 4, 6)]) + [f"v_cvt_pk_bf16_f32 v{A+k}, v{A+2*k}, v{A+2*k+1}" for k in range(4)]
            if j == self.o.get("jpoll", 9): m += self.flag_issue(0)
            m += L(f"@t st1 buffer_store_dwordx4 v[{A}:{A+3}], v{V_L16}, {srd(SRDWS)}, s{T1} offen sc1\ns_add_u32 s{T1}, s{T1}, {A2_RT}")
        self.blk = self.b2_block(); k = self.cut(self.o.get("nim", 6), True)
        m = pace(m, k, 10, len(m) * 7 // 8)
        for x in m: self.e(x)
        self.e(self.stamp(3))
    def cut(self, ndma, more=False):
        o = []
        while ndma > 0 and self.blk:
            g = self.blk.pop(0); o.append(g); ndma -= any("buffer_" in x for x in g)
        while more and not any("buffer_" in x or "@t r8 " in y for x in self.blk[0] for y in self.blk[2]): o.append(self.blk.pop(0))
        return o
    def b2_block(self):
        return self.b2_read([0, 1, 2]) + self.b2_refill([8, 9, 10]) + self.b2_read([3, 4, 5]) + self.b2_refill([11]) + self.b2_read([6, 7]) + \
               self.b2_refill([12, 13, 14, 15]) + self.b2_read([8, 9, 10, 11]) + self.b2_refill([16])

    def p2_scalars(self, n):
        o = [[f"s_mov_b32 s{T0}, s{S_CT}"]]
        for k in range(2): o.append(L(f"s_cmp_ge_u32 s{T0}, {n}\ns_cselect_b32 s{T1}, {n}, 0\ns_sub_u32 s{T0}, s{T0}, s{T1}"))
        for j in range(n):
            o.append(L(f"s_mul_i32 s{S_J+j}, s{T0}, {A2_RT}\ns_add_u32 s{S_J+j}, s{S_J+j}, s{S_A2}"))
            if j & 1 == 0: o.append([f"s_mov_b32 s{S_O+j//2}, s{T0}"])
            else: o.append(L(f"s_cmp_eq_u32 s{S_TG}, 1\ns_cselect_b32 s{S_O+j//2}, s{T0}, s{S_O+j//2}\ns_mul_i32 s{S_O+j//2}, s{S_O+j//2}, {16*2560}"))
            if j < n - 1: o.append(L(f"s_add_u32 s{T0}, s{T0}, 1\ns_cmp_eq_u32 s{T0}, {n}\ns_cselect_b32 s{T0}, 0, s{T0}"))
        o += [L(f"s_and_b32 s{T3}, s{S_RT0}, 63\ns_mul_i32 s{T3}, s{T3}, {16*2560}\ns_lshr_b32 s{T0}, s{S_RT0}, 6"),
              L(f"s_mul_i32 s{T0}, s{T0}, 1280\ns_add_u32 s{T3}, s{T3}, s{T0}\ns_lshl_b32 s{T0}, s{S_CT}, 7\ns_add_u32 s{T3}, s{T3}, s{T0}")]
        for m in range(n // 2): o.append(L(f"s_add_u32 s{S_O+m}, s{S_O+m}, s{T3}"))
        return o
    def p2(self, n, typ):
        STG, NS = 112, self.o.get("ns", 6); assert NS <= 6
        lead = self.o.get("lead", 3)
        SEL, RW, RRD, V_OUT, XR = 136, 154, 155, 156, [152, 158, 14]
        sp = self.o.get("split%d" % typ, 2 if typ == 0 else 0)
        seq = [(j, k) for j in range(n) for k in range(sp)] + [(j, k) for j in range(n) for k in range(sp, 6)] + [(j, ks) for j in range(n) for ks in range(6, 9)]
        f0 = 0 if sp else 1
        last = {k: max(q for q, (j, ks) in enumerate(seq) if ks == k) for k in range(3)}
        q2 = 6 * n
        cur = [None]
        def issue(q):
            j, ks = seq[q]; off = (j, ks >> 2); r = STG + 4 * (q % NS); o = []; so = S_J + j
            if ks >= 4:
                so = S_DELTA
                if cur[0] != off: o.append(f"s_add_u32 s{S_DELTA}, s{S_J+j}, {(ks >> 2) * 4096}"); cur[0] = off
            return o + [f"@t a{q} buffer_load_dwordx4 v[{r}:{r+3}], v{V_L16}, {srd(SRDWS)}, s{so} offen offset:{1024*(ks&3)} sc1"]
        isd = lambda g: any("buffer_" in x for x in g)
        first = [issue(q) for q in range(NS)]
        ta, tb = 157, 153
        RWX, RDX = [RW, BHK[4], BHK[4] + 1, BHK[4] + 2], [RRD, BHK[4] + 3, BHK[4] + 4, BHK[4] + 5]
        setup = [L(f"s_bfe_u32 s{T0}, s{S_W}, 0x10001\nv_xor_b32 v{RW}, v{V_I}, v{V_G}\nv_xor_b32 v{RW}, s{T0}, v{RW}"),
                 L(f"v_lshlrev_b32 v{RW}, 3, v{RW}\nv_lshl_add_u32 v{RW}, v{V_G}, 7, v{RW}"),
                 L(f"s_add_u32 s{T0}, s{S_W2K}, {3*UN}\nv_add_u32 v{RW}, s{T0}, v{RW}\ns_lshl_b32 s{T0}, s{S_H}, 2\nv_and_or_b32 v{RRD}, v{V_G}, 1, s{T0}"),
                 L(f"v_xor_b32 v{RRD}, v{RRD}, v{V_I}\nv_lshlrev_b32 v{RRD}, 3, v{RRD}"),
                 L(f"v_lshl_add_u32 v{RRD}, v{V_I}, 7, v{RRD}\nv_lshlrev_b32 v{ta}, 12, v{V_G}"),
                 L(f"s_lshl_b32 s{T0}, s{S_TG}, 14\ns_add_u32 s{T0}, s{T0}, {3*UN}\nv_add3_u32 v{RRD}, v{RRD}, v{ta}, s{T0}\n"
                   f"s_lshl_b32 s{T0}, s{S_H}, 2\nv_add_u32 v{ta}, s{T0}, v{V_G}"),
                 L(f"v_mul_u32_u24 v{V_OUT}, 2560, v{ta}\nv_lshl_add_u32 v{V_OUT}, v{V_I}, 3, v{V_OUT}"),
                 L(f"v_and_b32 v{ta}, 1, v{V_LANE}"),
                 L(f"v_lshlrev_b32 v{ta}, 4, v{ta}\nv_mov_b32 v{tb}, 0x3f80"), L(f"v_lshlrev_b32 v{ta}, v{ta}, v{tb}")]
        setup2 = [[f"v_xor_b32 v{RWX[k]}, {32*k}, v{RW}", f"v_xor_b32 v{RDX[k]}, {8*k}, v{RRD}"] for k in (1, 2, 3)]
        for c in range(4):
            for hh in range(2):
                k = (3 << (4 * c + 2 * hh)) * 0x10001
                setup.append(L(f"""s_mov_b32 s{S_M0}, {hex(k)}
s_mov_b32 s{S_M0+1}, {hex(k)}
v_cndmask_b32 v{SEL+4*c+hh}, 0, v{ta}, s[{S_M0}:{S_M0+1}]
v_cndmask_b32 v{SEL+4*c+hh+2}, 0, v{ta}, s[{S_M0}:{S_M0+1}]"""))
        xl = [[f"@t x{m} buffer_load_dwordx2 v[{XR[m]}:{XR[m]+1}], v{V_OUT}, {srd(SRD0)}, s{S_O+m} offen"] for m in range(n // 2)]
        own = {}
        if typ == 1:
            if self.o.get("na", 3): self.e(self.flag_check(f0)); self.e(self.stamp(13))
            od = [g for g in self.blk if isd(g) and any(f"@t h{k} " in x for x in g for k in range(12, 17))]
            k = self.o.get("nod", 3)
            na = self.o.get("na", 3)
            self.e("s_setprio 0")
            for g in first[:na] + [g for g in self.blk if g not in od]: self.e(g)
            self.e(["@wv st", "s_setprio 3"] + self.flag_store(3, 158) + ["s_setprio 0"]); self.e(self.stamp(4))
            if not na: self.e(self.flag_check(f0)); self.e(self.stamp(13))
            for g in first[na:] + od[:k]: self.e(g)
            self.blk = od[k:]
        else:
            self.e("s_setprio 0")
            fs = ["s_setprio 3"] + self.flag_store(1, 110) + ["s_setprio 0"]
            if self.o.get("jpoll", 9) < 4:
                for g in self.cut(self.o.get("npre", 0)): self.e(g)
                self.e(self.flag_check(0)); self.e(self.stamp(13))
                for g in first + self.cut(self.o.get("npost", 2)) + setup + xl: self.e(g)
                self.e(["@wv st1"] + fs); self.e(self.stamp(4))
            else:
                for g in self.cut(self.o.get("npre", 4)): self.e(g)
                self.e(["@wv st1"] + fs); self.e(self.stamp(4))
                for g in self.cut(self.o.get("nmid", 2)): self.e(g)
                self.e(self.flag_issue(f0))
                for g in self.cut(self.o.get("npost", 2)) + setup + xl: self.e(g)
                self.e(self.flag_check(f0)); self.e(self.stamp(13))
                for g in first: self.e(g)
            setup = []; xl = []
        slow = self.blk + self.b2_read([12, 13]) + self.b2_read([14, 15]) + self.b2_read([16])
        dq = [g for g in slow if isd(g)]; rq = [g for g in slow if not isd(g)]
        when = {}
        gap, dper = self.o.get("gap", NS + 1), self.o.get("dper%d" % typ, 2)
        def pending(tag): return any(f"@t {tag} " in x for g in dq + rq for x in g)
        def ready(g, q):
            if free_at(g) >= q: return False
            for x in g:
                if x.startswith(("@wv", "@wl")):
                    tag = x.split()[1]
                    if pending(tag) or when.get(tag, -99) + (gap if x[2] == "v" else 1) > q: return False
            return True
        def put(g, q):
            self.e(g)
            for x in g:
                if x.startswith("@t "): when[x.split()[1]] = q
        def force(tag, q):
            while pending(tag):
                need = [x.split()[1] for x in rq[0] if x.startswith("@wv")] if tag[0] == "r" else [x.split()[1] for x in dq[0] if x.startswith("@wl")]
                for t in need: force(t, q)
                put((rq if tag[0] == "r" else dq).pop(0), q)
        fill = setup + xl
        self.e(self.stamp(5))
        def write(j, t):
            d = ACC + 16 * j + 4 * t
            return [f"v_cvt_pk_bf16_f32 v{d}, v{d}, v{d+1}", f"v_cvt_pk_bf16_f32 v{d+1}, v{d+2}, v{d+3}",
                    f"@t w{j} ds_write_b64 v{RWX[t]}, v[{d}:{d+1}] offset:{UN*(j&3) + 512*t}"] + ([f"v_add_u32 v{RWX[t]}, 0x10000, v{RWX[t]}"] if j == 3 and n > 4 else [])
        def reads(m):
            T = ACC + 32 * m
            return [[f"@t p{m}_{c} ds_read_b64 v[{T+4*c+2*u}:{T+4*c+2*u+1}], v{RDX[c]} offset:{2*UN*(m&1) + 2048*u}" for u in range(2)] +
                    ([f"v_add_u32 v{RDX[c]}, 0x10000, v{RDX[c]}"] if m == 1 and n > 4 else []) for c in range(4)]
        def unpack(m, C):
            x = XR[m]
            return [[f"@wv x{m}", f"v_lshlrev_b32 v{C}, 16, v{x}", f"v_and_b32 v{C+1}, 0xffff0000, v{x}"],
                    [f"v_lshlrev_b32 v{C+2}, 16, v{x+1}", f"v_and_b32 v{C+3}, 0xffff0000, v{x+1}"]]
        def redm(m, C): return [[f"@wl p{m}_{c}", mfma(C, SEL + 4 * c, ACC + 32 * m + 4 * c)] for c in range(4)]
        def fin(m, C):
            fl = ["", " sc1", " nt", " sc0 sc1", " sc1 nt"][self.o.get("ost", 1) if m in done else self.o.get("ost2", 4)]
            return [f"v_cvt_pk_bf16_f32 v{C}, v{C}, v{C+1}", f"v_cvt_pk_bf16_f32 v{C+1}, v{C+2}, v{C+3}",
                    f"buffer_store_dwordx2 v[{C}:{C+1}], v{V_OUT}, {srd(SRDOUT)}, s{S_O+m} offen" + fl]
        pp = self.o.get("pprio", 1); M = n // 2 - 1; CL = BHK[3]
        nq = len(seq); bk = self.o.get("bk", 7); wr = []; seen = set(); done = set()
        def free_at(g):
            for x in g:
                for hh, q in ((12, last[0]), (13, last[0]), (14, last[1]), (15, last[1]), (16, last[2])):
                    if f"@t r{hh} " in x: return q
            return -1
        for q in range(nq):
            j, ks = seq[q]; r = STG + 4 * (q % NS)
            if q == q2:
                self.e(self.stamp(6)); assert not fill
                fill = list(setup2) + [unpack(m, CL + 4 * m)[k] for m in range(n // 2) for k in range(2)]
            if ks not in seen:
                seen.add(ks); hh = 2 * ks + 1 if ks < 8 else 16
                if pending(f"r{hh}"): print("forced", typ, hh, q)
                force(f"r{hh}", q)
                self.e(f"@wl r{hh}")
            if q > q2 and ks == 6: wr = [[], []] + [write(j - 1, t) for t in range(4)]
            if pp == 1 and q % 3 == 0 and q >= self.o.get("qp", 12): self.e(f"s_setprio {3 - ((q // 3) & 3)}" if q < nq - 12 else f"s_setprio {(nq - q) // 3 - 1}")
            if q == nq - 1:
                for g in fill: self.e(g)
                fill = []
            self.e(f"@wv a{q}")
            if self.o.get("qst") and q % 2 == 0: self.e(f"s_memtime s[{S_TS}:{S_TS+1}]\ns_waitcnt lgkmcnt(0)\nv_writelane_b32 v0, s{S_TS}, {32 + q // 2}")
            if q in own: self.e(own[q]); self.e(self.stamp(4))
            nd = 0
            for t in range(4):
                self.e(mfma(ACC + 16 * j + 4 * t, BHK[ks % 6] + 4 * t, r, "0" if ks == 0 else None))
                g = wr.pop(0) if wr else []
                self.e(g)
                if t == 1 and dq and q % dper == 0 and ready(dq[0], q): put(dq.pop(0), q)
                elif rq and ready(rq[0], q) and ready(rq[min(2, len(rq) - 1)], q + 1):
                    put(rq.pop(0), q)
                    if rq and q >= q2 - 6 and ready(rq[0], q): put(rq.pop(0), q)
                elif fill and not g: self.e(fill.pop(0))
            for p in ((1, 3) if sp else (3,)):
                if q + NS == 2 * n * p - min(lead, 2 * n - NS): self.e(self.flag_issue(p))
                if q + NS == 2 * n * p: self.e(self.flag_check(p))
            if q + NS < nq: self.e(issue(q + NS))
            if q > q2 and ks == bk and j >= 2 and not (j & 1) and j // 2 - 1 < self.o.get("nmb%d" % typ, 0):
                m = j // 2 - 1; done.add(m)
                for g in fill: self.e(g)
                self.e(f"@wl w{j-1}\ns_barrier")
                if m == M - 1: self.e(self.stamp(15))
                rd = reads(m)
                self.e(rd[0])
                fill = rd[1:] + [[]] * self.o.get("rdly", 1) + redm(m, CL + 4 * m) + [[], [], fin(m, CL + 4 * m)]
        self.e(self.stamp(14))
        for t in range(4): self.e(write(n - 1, t))
        self.e(f"@wl w{n-1}\ns_barrier")
        todo = [m for m in range(M + 1) if m not in done]
        for m in todo:
            for g in reads(m): self.e(g)
        for c in range(4):
            for m in todo: self.e(redm(m, CL + 4 * m)[c]) if self.o.get("ril", 0) else None
        for m in todo:
            if not self.o.get("ril", 0):
                for g in redm(m, CL + 4 * m): self.e(g)
            if m != todo[0]: self.e(fin(m - 1, CL + 4 * (m - 1)))
        self.e(fin(M, CL + 4 * M))
        self.e(self.stamp(7))
        if self.o.get("fixdur"):
            lp = self.lab("fix")
            self.e(f"{lp}:\ns_memrealtime s[{S_TS}:{S_TS+1}]\ns_waitcnt lgkmcnt(0)\ns_sub_u32 s{S_TS}, s{S_TS}, s{S_NONCE}\ns_cmp_lt_u32 s{S_TS}, {self.o['fixdur']}\ns_cbranch_scc1 {lp}")
        if self.diag:
            self.e(f"""s_lshl_b32 s{T0}, s2, 3
s_add_u32 s{T0}, s{T0}, s{S_W}
s_lshl_b32 s{T0}, s{T0}, 8
s_add_u32 s{T0}, s{T0}, {STAMP_BASE}
v_lshlrev_b32 v{V_L16}, 2, v{V_LANE}
buffer_store_dword v0, v{V_L16}, {srd(SRDWS)}, s{T0} offen""")
        self.e("s_endpgm")

    def kperm(self, dst, rho, t):
        self.e(f"""v_and_b32 v{dst}, 35, v{rho}
v_bfe_u32 v{t}, v{rho}, 2, 2
v_lshl_add_u32 v{dst}, v{t}, 3, v{dst}
v_bfe_u32 v{t}, v{rho}, 4, 1
v_lshl_add_u32 v{dst}, v{t}, 2, v{dst}""")
    def pfa(self):
        a, b, c = TA, TB, TC
        lo, n = self.o.get("pflo", 1), self.o.get("pfn", 0)
        if n == 0: return
        lw, le = self.lab("pfw"), self.lab("pfe")
        self.e(f"""s_cmp_ge_u32 s{S_H}, {n}
s_cbranch_scc1 {le}
s_add_u32 s{T0}, s{S_H}, {lo}
s_cmp_eq_u32 s{S_TG}, 1
s_cbranch_scc1 {lw}
s_lshl_b32 s{T0}, s{T0}, 7
s_and_b32 s{T1}, s{S_MT}, 7
s_lshl_b32 s{T1}, s{T1}, 1
s_bfe_u32 s{T2}, s2, 0x10006
s_add_u32 s{T1}, s{T1}, s{T2}
s_mul_i32 s{T1}, s{T1}, {64*2560}
s_add_u32 s{T0}, s{T0}, s{T1}
s_lshr_b32 s{T1}, s{S_MT}, 3
s_mul_i32 s{T1}, s{T1}, 1280
s_add_u32 s{T0}, s{T0}, s{T1}
v_mul_u32_u24 v{a}, 2560, v{V_LANE}
@x buffer_load_dword v{V_PFD}, v{a}, {srd(SRD0)}, s{T0} offen
s_branch {le}
{lw}:
s_mov_b32 s{SRDPF}, s{P_WQKV}
s_mov_b32 s{SRDPF+1}, s{P_WQKV+1}
s_mov_b32 s{SRDPF+2}, {640*3840}
s_mov_b32 s{SRDPF+3}, 0x20000
s_lshl_b32 s{T0}, s{T0}, 4
s_bfe_u32 s{T1}, s2, 0x40003
s_add_u32 s{T0}, s{T0}, s{T1}
s_mul_i32 s{T0}, s{T0}, {4*3840}
s_and_b32 s{T1}, s2, 3
s_mul_i32 s{T1}, s{T1}, 5
s_lshr_b32 s{T1}, s{T1}, 1
s_lshl_b32 s{T1}, s{T1}, 7
s_add_u32 s{T0}, s{T0}, s{T1}
v_mul_u32_u24 v{a}, 86, v{V_LANE}
v_lshrrev_b32 v{a}, 8, v{a}
v_mul_u32_u24 v{a}, {1280-384}, v{a}
v_lshl_add_u32 v{a}, v{V_LANE}, 7, v{a}
s_mov_b32 exec_hi, 15
@x buffer_load_dword v{V_PFD}, v{a}, {srd(SRDPF)}, s{T0} offen
s_mov_b32 exec_hi, -1
{le}:""")
    def row_loads(self):
        a, b, c, d = TA, TB, TC, TD
        self.e(f"""v_lshrrev_b32 v{c}, 5, v{V_LANE}
v_and_b32 v{d}, 31, v{V_LANE}
v_lshlrev_b32 v{V_RST}, 4, v{c}
v_lshl_add_u32 v{V_RST}, v{d}, 25, v{V_RST}
v_mul_u32_u24 v{c}, 2560, v{c}
v_lshl_add_u32 v{a}, v{d}, 4, v{c}
v_lshl_add_u32 v{b}, v{d}, 3, v{c}
s_and_b32 s{T0}, s2, 3
s_lshl_b32 s{T1}, s{T0}, 7
s_and_b32 s{T2}, s2, 0x78
s_add_u32 s{T1}, s{T1}, s{T2}
s_add_u32 s{T1}, s{T1}, s{S_W}
s_lshl_b32 s{T1}, s{T1}, 1
s_bfe_u32 s{T2}, s2, 0x10002
s_lshl_b32 s{T3}, s{T2}, 10
s_add_u32 s{T3}, s{T3}, s{T1}
s_lshl_b32 s{S_ROWS}, s{T3}, 4
s_add_u32 s{S_ROWS}, s{S_ROWS}, {ROWT}
s_mul_i32 s{T1}, s{T1}, 2560
s_mul_i32 s{T3}, s{T2}, 1280
s_add_u32 s{T1}, s{T1}, s{T3}
buffer_load_dwordx4 v[{RX}:{RX+3}], v{a}, {srd(SRD0)}, s{T1} offen
buffer_load_dwordx4 v[{RX+4}:{RX+7}], v{a}, {srd(SRD0)}, s{T1} offen offset:512
@t rows buffer_load_dwordx2 v[{RX+8}:{RX+9}], v{b}, {srd(SRD0)}, s{T1} offen offset:1024""")
    def side_loads(self):
        a, b, c, d = TA, TB, TC, TD
        if not self.o.get("rowa", 0): self.row_loads()
        self.e(f"""s_and_b32 s{T0}, s2, 3
s_bfe_u32 s{T2}, s2, 0x10002
s_bfe_u32 s{T1}, s2, 0x40003
s_min_u32 s{T1}, s{T1}, 14
s_mul_i32 s{T3}, s{T1}, 86
s_lshr_b32 s{T3}, s{T3}, 8
s_mul_i32 s{T3}, s{T3}, 7
s_add_u32 s{T3}, s{T3}, s{T1}
s_mul_i32 s{T4}, s{T0}, 5
s_lshr_b32 s{T4}, s{T4}, 1
s_add_u32 s{T3}, s{T3}, s{T4}
s_mul_i32 s{T4}, s{T0}, 6
s_add_u32 s{T4}, s{T4}, s{T1}
s_sub_u32 s{T4}, s{T4}, 9
s_cmp_lt_u32 s{T1}, 9
s_cselect_b32 s{SRDC}, s{P_WQKV}, s{P_W1}
s_cselect_b32 s{SRDC+1}, s{P_WQKV+1}, s{P_W1+1}
s_cselect_b32 s{T3}, s{T3}, s{T4}
s_cselect_b32 s{T4}, 0, 30
s_cselect_b32 s{TF}, 15, 12
s_lshl_b32 s{TF}, s{TF}, 8
s_mul_i32 s{SRDC+2}, s{TF}, 640
s_mov_b32 s{SRDC+3}, 0x20000
s_add_u32 s{T4}, s{T4}, s{T3}
s_lshl_b32 s{T4}, s{T4}, 3
s_add_u32 s{T4}, s{T4}, s{S_W}
s_lshl_b32 s{T4}, s{T4}, 7
s_lshl_b32 s{S_COLS}, s{T2}, 3
s_add_u32 s{S_COLS}, s{S_COLS}, s{T4}
s_add_u32 s{S_COLS}, s{S_COLS}, {COLT}
s_lshl_b32 s{T2}, s{T2}, 3
s_add_u32 s{T2}, s{T2}, s{S_W}
s_lshl_b32 s{T2}, s{T2}, 3
s_mul_i32 s{T2}, s{T2}, s{TF}
s_lshl_b32 s{T3}, s{T3}, 7
s_add_u32 s{T2}, s{T2}, s{T3}
v_lshrrev_b32 v{a}, 3, v{V_LANE}
v_mul_lo_u32 v{a}, v{a}, s{TF}
v_and_b32 v{b}, 7, v{V_LANE}
v_lshl_add_u32 v{a}, v{b}, 4, v{a}
s_lshl_b32 s{TF}, s{TF}, 7""")
        for k in range(5):
            self.e(f"@t side buffer_load_dwordx4 v[{CW[k]}:{CW[k]+3}], v{a}, {srd(SRDC)}, s{T2} offen")
            if k < 4: self.e(f"s_add_u32 s{T2}, s{T2}, s{TF}")
    def b2_pf(self):
        a = TA; al = False; k = 1 if al else 2
        self.e(f"""s_and_b32 s{T2}, s2, {255 if al else 127}
s_mul_i32 s{T0}, s{T2}, 6
s_add_u32 s{T0}, s{T0}, s{S_W}
s_mul_i32 s{T0}, s{T0}, {1280*k}
s_lshl_b32 s{T1}, s{T2}, 1
s_add_u32 s{T1}, s{T1}, s{S_W}
s_sub_u32 s{T1}, s{T1}, 6
s_mul_i32 s{T1}, s{T1}, {13*128*k}
s_cmp_lt_u32 s{S_W}, 6
s_cselect_b32 s{SRDPF}, s{SRDW2}, s{SRDWO}
s_cselect_b32 s{SRDPF+1}, s{SRDW2+1}, s{SRDWO+1}
s_cselect_b32 s{SRDPF+2}, s{SRDW2+2}, s{SRDWO+2}
s_mov_b32 s{SRDPF+3}, 0x20000
s_cselect_b32 s{S_PFC}, s{T0}, s{T1}
s_cselect_b32 s{T1}, {10*k}, {13*k}
v_lshlrev_b32 v{V_PF}, 7, v{V_LANE}
v_mov_b32 v{a}, {hex(OOB)}
v_cmp_gt_u32 s[{S_M1}:{S_M1+1}], s{T1}, v{V_LANE}
v_cndmask_b32 v{V_PF}, v{a}, v{V_PF}, s[{S_M1}:{S_M1+1}]""")
        self.pfl = [f"buffer_load_dword v{V_PFD}, v{V_PF}, {srd(SRDPF)}, s{S_PFC} offen"]
    def min_init(self, kind):
        a, b, c, d = TA, TB, TC, TD
        self.e(f"""v_lshrrev_b32 v{V_G}, 4, v{V_LANE}
v_and_b32 v{V_I}, 15, v{V_LANE}
v_lshlrev_b32 v{V_L16}, 4, v{V_LANE}
v_lshrrev_b32 v{a}, 1, v{V_I}
v_xor_b32 v{a}, v{a}, v{V_G}
v_lshlrev_b32 v{a}, 4, v{a}
v_lshl_add_u32 v{a}, v{V_I}, 7, v{a}
s_lshl_b32 s{T0}, s{S_TG}, 13
v_add_u32 v{V_X0}, s{T0}, v{a}
v_xor_b32 v{V_X1}, 64, v{V_X0}
v_lshrrev_b32 v{a}, 2, v{V_LANE}
v_and_b32 v{b}, 3, v{V_LANE}
v_bfe_u32 v{c}, v{V_LANE}, 3, 2
v_lshlrev_b32 v{V_TRB}, 7, v{a}
v_lshl_add_u32 v{V_TRB}, v{c}, 5, v{V_TRB}
v_lshl_add_u32 v{V_TRB}, v{b}, 3, v{V_TRB}""")
        if kind == "a":
            self.e(f"""v_mul_u32_u24 v{a}, 480, v{a}
s_mul_i32 s{T0}, s{S_H}, 40
s_add_u32 s{T0}, s{T0}, {XREG}
v_add_u32 v{a}, s{T0}, v{a}
v_lshl_add_u32 v{V_W0}, v{b}, 3, v{a}
v_min_u32 v{b}, 2, v{b}
v_mul_u32_u24 v{c}, 160, v{b}
v_add3_u32 v{V_W1}, v{a}, v{c}, 32""")
        else:
            self.e(f"""v_mul_u32_u24 v{a}, 384, v{a}
v_lshl_add_u32 v{a}, v{b}, 3, v{a}
v_add_u32 v{a}, {XREG}, v{a}
s_mul_i32 s{T0}, s{S_H}, 3""")
            for t in range(3):
                self.e(f"""s_add_u32 s{T1}, s{T0}, {t}
s_lshr_b32 s{T2}, s{T1}, 2
s_lshl_b32 s{T2}, s{T2}, 7
s_and_b32 s{T1}, s{T1}, 3
v_xor_b32 v{b}, s{T1}, v{c}
v_lshl_add_u32 v{b}, v{b}, 5, v{a}
v_add_u32 v{[V_W0, V_W1, V_W2][t]}, s{T2}, v{b}""")
        self.e(f"s_lshl_b32 s{S_W2K}, s{S_W}, 11\nv_add_u32 v{V_TRB}, s{S_W2K}, v{V_TRB}")
    def late_init(self, kind):
        a, b, c, d = TA, TB, TC, TD
        self.mksrd(SRDWS, P_WS, WS_BYTES); self.mksrd(SRDOUT, P_OUT, 2048 * 1280)
        self.e(f"s_mov_b32 s38, {640*1280}\ns_mov_b32 s39, 0x20000\ns_mov_b32 s40, s42\ns_mov_b32 s41, s43\ns_mov_b32 s42, {1536*1280}\ns_mov_b32 s43, 0x20000")
        if kind == "a":
            self.e(f"""s_mul_i32 s{T0}, s{S_W}, {5*REC}
s_add_u32 s{T0}, s{T0}, {L_REC + 256}
v_min_u32 v{a}, 4, v{V_LANE}
v_mul_u32_u24 v{a}, {REC}, v{a}
v_add_u32 v{a}, s{T0}, v{a}
v_mov_b32 v{ACC}, 0
v_mov_b32 v{ACC+1}, 0
ds_write_b64 v{a}, v[{ACC}:{ACC+1}]""")
            his = [V_X0, V_X1, V_W0, V_W1]
            self.e(f"""v_lshlrev_b32 v{c}, 2, v{V_G}
v_sub_u32 v{c}, v{V_I}, v{c}
v_mov_b32 v{VC}, {hex(NEGBIG)}
v_mov_b32 v{MB}, 0
v_mov_b32 v{MB+1}, 0
s_and_b32 s{T0}, s{S_MT}, 7
s_or_b32 s{T0}, s{T0}, s{S_TG}
s_cmp_eq_u32 s{T0}, 0
s_cselect_b64 s[{S_M1}:{S_M1+1}], 0, -1""")
            for r in range(4):
                self.e(f"""v_subrev_u32 v{a}, {r}, v{c}
v_cmp_gt_u32 s[{S_M0}:{S_M0+1}], 8, v{a}
v_mov_b32 v{b}, {hex(0xffff << (16*(r&1)))}
v_cmp_gt_i32 vcc, -8, v{a}
v_cndmask_b32 v{MC+r}, v{VC}, 0, s[{S_M0}:{S_M0+1}]
v_cndmask_b32 v{b}, 0, v{b}, s[{S_M0}:{S_M0+1}]
v_or_b32 v{MB+(r>>1)}, v{MB+(r>>1)}, v{b}
v_cndmask_b32 v{MP+r}, v{VC}, 0, vcc
v_cndmask_b32 v{MP0+r}, v{VC}, v{MP+r}, s[{S_M1}:{S_M1+1}]""")
            self.e(f"v_mov_b32 v{VC}, {hex(f2u(20**-0.5 * LOG2E))}")
            self.e(f"""v_lshrrev_b32 v{a}, 2, v{V_I}
v_min_u32 v{a}, 2, v{a}
v_and_or_b32 v{b}, v{V_I}, 3, 16
v_cmp_eq_u32 s[{S_M0}:{S_M0+1}], 3, v{V_G}
s_lshl_b32 s{T0}, s{S_NT}, 2
s_add_u32 s{T0}, s{T0}, s{S_H}
s_mul_i32 s{T0}, s{T0}, 20
v_cndmask_b32 v{a}, v{V_G}, v{a}, s[{S_M0}:{S_M0+1}]
v_cndmask_b32 v{b}, v{V_I}, v{b}, s[{S_M0}:{S_M0+1}]
v_mul_u32_u24 v{a}, 640, v{a}
v_add3_u32 v{d}, v{a}, v{b}, s{T0}""")
        else:
            his = [V_X0, V_X1, V_W0, V_W1, V_W2]
            self.e(f"""s_lshl_b32 s{T0}, s{S_NT}, 2
s_add_u32 s{T0}, s{T0}, s{S_H}
s_mul_i32 s{T0}, s{T0}, 48
s_add_u32 s{T0}, s{T0}, 1920
v_min_u32 v{d}, 47, v{V_LANE}
v_add_u32 v{d}, s{T0}, v{d}""")
        for r in his: self.e(f"v_add_u32 v{HI[r]}, 0x10000, v{r}")
        lr, le = self.lab("crow"), self.lab("cend")
        self.e(f"""v_lshlrev_b32 v{c}, 2, v{V_LANE}
v_add_u32 v{V_CB}, {L_DUMMY}, v{c}
s_lshl_b32 s{T0}, s{S_H}, 8
s_cmp_eq_u32 s{S_TG}, 0
s_cbranch_scc1 {lr}
v_lshlrev_b32 v{V_CON}, 4, v{d}
v_add_u32 v{V_CON}, {COLT}, v{V_CON}
s_add_u32 s{T0}, s{T0}, {L_CS}
v_add_u32 v{V_CA}, s{T0}, v{c}
v_mov_b32 v{V_CK}, 1.0
s_branch {le}
{lr}:
s_lshl_b32 s{T1}, s{S_H}, 6
v_add_u32 v{a}, s{T1}, v{V_LANE}
v_cmp_gt_u32 vcc, 0x90, v{a}
v_min_u32 v{a}, 0x8f, v{a}
s_add_u32 s{T0}, s{T0}, {L_STAT}
v_add_u32 v{b}, s{T0}, v{c}
v_cndmask_b32 v{V_CA}, v{V_CB}, v{b}, vcc
v_add_u32 v{V_CB}, 640, v{V_CA}
s_and_b32 s{T0}, s{S_MT}, 7
s_lshl_b32 s{T0}, s{T0}, 7
s_sub_u32 s{T0}, s{T0}, 16
v_add_u32 v{a}, s{T0}, v{a}
v_max_i32 v{a}, 0, v{a}
s_lshr_b32 s{T0}, s{S_MT}, 3
s_lshl_b32 s{T0}, s{T0}, 14
s_add_u32 s{T0}, s{T0}, {ROWT}
v_lshl_add_u32 v{V_CON}, v{a}, 4, s{T0}
v_mov_b32 v{V_CK}, 0
{le}:""")
        if kind == "m": self.e(f"""v_and_b32 v{a}, 7, v{V_LANE}
v_and_b32 v{b}, 1, v{V_G}
v_lshlrev_b32 v{b}, 4, v{b}
v_lshl_add_u32 v{b}, v{a}, 5, v{b}
s_lshl_b32 s{T0}, s{S_W}, 8
s_add_u32 s{T0}, s{T0}, {L_CP}
v_add_u32 v{V_CPW}, s{T0}, v{b}
v_lshrrev_b32 v{b}, 3, v{V_LANE}
v_lshlrev_b32 v{c}, 8, v{b}
v_lshl_add_u32 v{c}, v{a}, 2, v{c}
s_lshl_b32 s{T0}, s{S_W}, 5
s_add_u32 s{T0}, s{T0}, {L_CP}
v_add_u32 v{V_CPR}, s{T0}, v{c}
v_lshl_add_u32 v{V_CST}, v{b}, 27, v{V_L16}
v_and_b32 v{b}, 1, v{V_LANE}
v_lshlrev_b32 v{b}, 4, v{b}
v_mov_b32 v{c}, 0x3f80
v_lshlrev_b32 v{c}, v{b}, v{c}
v_lshrrev_b32 v{a}, 1, v{a}""")
        for p in (range(4) if kind == "m" else []):
            self.e(f"v_cmp_eq_u32 s[{S_M0}:{S_M0+1}], {p}, v{a}\nv_cndmask_b32 v{CA+p}, 0, v{c}, s[{S_M0}:{S_M0+1}]")
        self.e(f"""v_lshrrev_b32 v{a}, 3, v{V_LANE}
v_lshlrev_b32 v{b}, 1, v{V_G}
v_and_b32 v{c}, 7, v{V_LANE}
v_xor_b32 v{b}, v{b}, v{c}
v_lshlrev_b32 v{b}, 4, v{b}
v_mul_u32_u24 v{V_B2}, 1280, v{a}
v_add_u32 v{V_B2}, v{V_B2}, v{b}
v_lshrrev_b32 v{c}, 5, v{V_LANE}
v_mul_u32_u24 v{c}, {16*1280}, v{c}
v_add_u32 v{V_B2L}, v{V_B2}, v{c}
s_lshl_b32 s{T0}, s{S_CT}, 7
s_mul_i32 s{S_B2H}, s{S_W}, {192*1280}
s_add_u32 s{S_B2H}, s{S_B2H}, s{T0}
s_mul_i32 s{S_B2O}, s{S_W}, {80*1280}
s_add_u32 s{S_B2O}, s{S_B2O}, s{T0}
s_lshl_b32 s{T0}, s{S_MT}, 3
s_add_u32 s{T0}, s{T0}, s{S_NT}
s_lshl_b32 s{T0}, s{T0}, 7
s_add_u32 s{S_FOWN}, s{T0}, {FLAG_BASE}
v_and_b32 v{a}, 3, v{V_LANE}
v_lshlrev_b32 v{a}, 2, v{a}
v_add_u32 v{a}, {L_CNT}, v{a}
v_mov_b32 v{b}, 0
ds_write_b32 v{a}, v{b}
s_lshl_b32 s{S_A2}, s{S_RT0}, 3
s_add_u32 s{S_A2}, s{S_A2}, s{S_W}
s_mul_i32 s{S_A2}, s{S_A2}, {A2_BLK}""")
    def start(self, kind, nd):
        sk = self.lab("non"); ini = self.o.get("init", 0)
        self.mksrd(SRDDBG, P_DBG, 256)
        if kind == "a":
            self.e(f"""s_or_b32 s{T0}, s2, s{S_W}
s_cmp_lg_u32 s{T0}, 0
s_cbranch_scc1 {sk}
s_or_b32 s{T0}, s{S_M0}, 1
v_mov_b32 v{TA}, s{T0}
s_mov_b64 exec, 1
@x buffer_store_dword v{TA}, off, {srd(SRDDBG)}, 0 sc1
s_mov_b64 exec, -1
{sk}:""")
        if self.diag: self.e(f"v_writelane_b32 v0, s{S_M0}, 12")
        self.e(self.stamp(0))
        o = self.o
        cp = o.get("cpf", 6)
        def codepf():
            lb = self.lab("pc"); nl = (49152 >> cp) // 256 + 1
            self.e(f"""s_getpc_b64 s[{S_M1}:{S_M1+1}]
{lb}:
s_sub_u32 s{S_M1}, s{S_M1}, {lb}-L_code0
s_subb_u32 s{S_M1+1}, s{S_M1+1}, 0
s_and_b32 s{T0}, s2, 0xf8
s_add_u32 s{T0}, s{T0}, s{S_W}
s_lshl_b32 s{T0}, s{T0}, {cp}""")
            for k in range(nl):
                self.e(f"s_min_u32 s{T4}, s{T0}, L_exit-L_code0\ns_load_dword s{100+(k&1)}, s[{S_M1}:{S_M1+1}], s{T4}\ns_add_u32 s{T0}, s{T0}, {256 << cp}")
        if cp and o.get("cpfirst", 0): codepf()
        if kind == "m" and o.get("pfirst", 0): self.pfa()
        if kind == "a" and o.get("rowa", 0) == 2: self.row_loads()
        for g in self.stage(nd, 0): self.e(g)
        if cp and not o.get("cpfirst", 0): codepf()
        if kind == "m":
            if not o.get("pfirst", 0): self.pfa()
            self.side_loads()
        self.min_init(kind)
        self.p2_tile(0 if kind == "m" else 1)
        self.late_init(kind)
        if kind == "a" and o.get("rowa", 0) == 1: self.row_loads()
        for g in self.p2_scalars(6 if kind == "m" else 4): self.e(g)
        if o.get("pfwho", 1) == (0 if kind == "m" else 1): self.b2_pf()
        if kind == "a":
            for g in self.stage(nd, 1)[:o.get("k1", 3)]: self.e(g)
    def p2_tile(self, typ):
        m = self.o.get("map", 0)
        if m == 0:
            tab = [[(j & 7, 4 + 6 * (j >> 3)) for j in range(16)],
                   [(j, 0) for j in range(8)] + [(8 + (j >> 2), 4 * (j & 3)) for j in range(8)]][typ]
        else:
            t6 = [(c, 6 * k) for c in range(3) for k in range(4)] + [(c, 6 * k) for c in (3, 4) for k in range(2)]
            t4 = [(c, 24 + 4 * k) for c in range(3) for k in range(2)] + [(c, 12 + 4 * k) for c in (3, 4) for k in range(5)]
            tab = [t6, t4][typ]
        by = [c | ((r // 2) << 4) for c, r in tab]
        w = [sum(by[4 * k + i] << (8 * i) for i in range(4)) for k in range(4)]
        self.e(f"""s_mov_b32 s{S_M1}, {hex(w[0])}
s_mov_b32 s{S_M1+1}, {hex(w[1])}
s_mov_b32 s{T1}, {hex(w[2])}
s_mov_b32 s{T2}, {hex(w[3])}
s_bitcmp1_b32 s2, 6
s_cselect_b32 s{S_M1}, s{T1}, s{S_M1}
s_cselect_b32 s{S_M1+1}, s{T2}, s{S_M1+1}
s_and_b32 s{T0}, s2, 0x38
s_lshr_b64 s[{S_M1}:{S_M1+1}], s[{S_M1}:{S_M1+1}], s{T0}
s_and_b32 s{S_CT}, s{S_M1}, 15
s_bfe_u32 s{S_RT0}, s{S_M1}, 0x40004
s_lshl_b32 s{S_RT0}, s{S_RT0}, 1""")
        if m == 0:
            self.e(f"s_lshl_b32 s{T0}, s{S_XCD}, 4\ns_add_u32 s{S_RT0}, s{S_RT0}, s{T0}")
        else:
            self.e(f"""s_lshr_b32 s{T0}, s{S_XCD}, 1
s_lshl_b32 s{T0}, s{T0}, 5
s_add_u32 s{S_RT0}, s{S_RT0}, s{T0}
s_and_b32 s{T0}, s{S_XCD}, 1
s_mul_i32 s{T0}, s{T0}, 5
s_add_u32 s{S_CT}, s{S_CT}, s{T0}""")

    def gen(self):
        n = NAME + "_kernel"
        self.place = [3, 4, 5, 6, 7, 8, 0, 1, 3, 4, 5, 6, 7, 8, 0, 1, 3]
        a, b, c, d = TA, TB, TC, TD
        self.e(f"""L_code0:
s_memrealtime s[{S_M0}:{S_M0+1}]
s_cmp_ge_u32 s2, 256
s_cbranch_scc1 L_exit
s_load_dwordx16 s[32:47], s[0:1], 0
s_load_dwordx2 s[48:49], s[0:1], 64
v_lshrrev_b32 v{a}, 6, v0
v_and_b32 v{V_LANE}, 63, v0
v_readfirstlane_b32 s{S_W}, v{a}
s_and_b32 s{S_XCD}, s2, 7
s_lshr_b32 s{T0}, s2, 3
s_and_b32 s{S_MT}, s{T0}, 7
s_and_b32 s{T1}, s2, 4
s_lshl_b32 s{T1}, s{T1}, 1
s_or_b32 s{S_MT}, s{S_MT}, s{T1}
s_and_b32 s{S_NT}, s2, 3
s_lshl_b32 s{S_NT}, s{S_NT}, 1
s_bfe_u32 s{T1}, s2, 0x10006
s_or_b32 s{S_NT}, s{S_NT}, s{T1}
s_lshr_b32 s{S_TG}, s{S_W}, 2
s_and_b32 s{S_H}, s{S_W}, 3""")
        if self.diag: self.e("v_mov_b32 v0, 0")
        self.e(f"""v_lshrrev_b32 v{a}, 3, v{V_LANE}
s_and_b32 s{T1}, s{S_W}, 1
s_lshl_b32 s{T1}, s{T1}, 2
v_lshrrev_b32 v{b}, 4, v{V_LANE}
v_or_b32 v{b}, s{T1}, v{b}
v_and_b32 v{c}, 7, v{V_LANE}
v_xor_b32 v{b}, v{b}, v{c}
s_lshl_b32 s{T1}, s{S_W}, 3
v_add_u32 v{a}, s{T1}, v{a}
v_mul_u32_u24 v{a}, 2560, v{a}
v_lshl_add_u32 v{V_DMA[0]}, v{b}, 4, v{a}
s_and_b32 s{T1}, s{S_MT}, 7
s_mul_i32 s{SOU[0]}, s{T1}, {128*2560}
s_lshr_b32 s{T2}, s{S_MT}, 3
s_mul_i32 s{T2}, s{T2}, 1280
s_add_u32 s{SOU[0]}, s{SOU[0]}, s{T2}
s_add_u32 s{SOU[1]}, s{SOU[0]}, {64*2560}
s_mov_b32 s{STEP[0]}, 128
s_lshl_b32 s{T2}, s{S_W}, 10
s_add_u32 s{DD[0]}, s{T2}, 2048
s_add_u32 s{DD[1]}, s{T2}, {2048+8192}
s_add_u32 s{DD[2]}, s{T2}, {XREG}
s_add_u32 s{DD[3]}, s{T2}, {XREG+8192}
s_add_u32 s{DD[4]}, s{T2}, {XREG+16384}
s_add_u32 s{DD[5]}, s{T2}, {XREG+24576}
s_lshl_b32 s{T3}, s{S_W}, 6
@save entry
s_cmp_ge_u32 s2, 128
s_cbranch_scc1 L_mlp""")
        for i in range(2, 6):
            v = V_DMA[i]
            self.e(f"""v_add_u32 v{a}, s{T3}, v{V_LANE}
v_add_u32 v{a}, {512*(i-2)}, v{a}
v_mul_u32_u24 v{b}, 2185, v{a}
v_lshrrev_b32 v{b}, 16, v{b}
v_mul_u32_u24 v{c}, 30, v{b}
v_sub_u32 v{a}, v{a}, v{c}""")
            self.kperm(c, b, d)
            self.e(f"""v_mul_u32_u24 v{v}, 3840, v{c}
v_mul_u32_u24 v{b}, 26, v{a}
v_lshrrev_b32 v{b}, 8, v{b}
v_mul_u32_u24 v{b}, {1280-160}, v{b}
v_lshl_add_u32 v{a}, v{a}, 4, v{b}
v_add_u32 v{v}, v{v}, v{a}""")
        self.e(f"""s_mul_i32 s{SOU[2]}, s{S_NT}, 160
s_mov_b32 s{SOU[5]}, s{SOU[2]}
s_mov_b32 s{STEP[2]}, {64*3840}
s_mov_b32 s{STEP[5]}, {64*3840}
s_waitcnt lgkmcnt(0)""")
        self.mksrd(SRD0, P_X, 2048 * 1280); self.mksrd(SRD1, P_WQKV, 640 * 3840); self.mksrd(SRD2, P_WQKV, 640 * 3840)
        self.e(f"""s_cmp_lt_u32 s{S_W}, 6
s_cbranch_scc1 L_a_go
s_mov_b32 s{SRD2}, s{P_X}
s_mov_b32 s{SRD2+1}, s{P_X+1}
s_mov_b32 s{SRD2+2}, {2048*1280}
v_mov_b32 v{V_DMA[5]}, v{V_DMA[0]}
s_mov_b32 s{STEP[5]}, 128
s_sub_u32 s{DD[5]}, s{T2}, 6144
s_sub_u32 s{SOU[5]}, s{SOU[0]}, {64*2560}
s_cmp_eq_u32 s{T1}, 0
s_cselect_b32 s{SOU[5]}, s{SOU[0]}, s{SOU[5]}
L_a_go:""")
        self.start("a", 6)
        self.e(f"s_cmp_eq_u32 s{S_TG}, 1\ns_cbranch_scc1 L_a1\n@only 0")
        self.main_loop("a0")
        self.e("s_branch L_aepi\nL_a1:\n@only 1")
        self.main_loop("a1")
        self.e("@all\nL_aepi:")
        self.attn_epi()
        self.p2(4, 1)
        self.e(self.slow); self.slow = []
        self.e("L_mlp:\n@load entry")
        for i in range(2, 5):
            v = V_DMA[i]
            self.e(f"""v_add_u32 v{a}, s{T3}, v{V_LANE}
v_add_u32 v{a}, {512*(i-2)}, v{a}
v_mul_u32_u24 v{b}, 2731, v{a}
v_lshrrev_b32 v{b}, 16, v{b}
v_mul_u32_u24 v{c}, 24, v{b}
v_sub_u32 v{a}, v{a}, v{c}""")
            self.kperm(c, b, d)
            self.e(f"""v_mul_u32_u24 v{v}, 3072, v{c}
v_and_b32 v{b}, 6, v{b}
v_xor_b32 v{a}, v{a}, v{b}
v_lshl_add_u32 v{v}, v{a}, 4, v{v}""")
        self.e(f"""s_mul_i32 s{SOU[2]}, s{S_NT}, 384
s_mov_b32 s{STEP[2]}, {64*3072}
s_waitcnt lgkmcnt(0)""")
        self.mksrd(SRD0, P_X, 2048 * 1280); self.mksrd(SRD1, P_W1, 640 * 3072)
        self.start("m", 5)
        self.main_loop("m")
        self.mlp_epi()
        self.p2(6, 0)
        self.e(self.slow); self.slow = []
        self.e("L_exit:\ns_endpgm")
        nt = self.o.get("nt", 0)
        def addnt(x):
            if "buffer_load" not in x or "sc1" in x: return x
            if x.endswith(" lds"):
                b2 = f"{srd(SRDW2)}," in x or f"{srd(SRDWO)}," in x
                return x[:-4] + " nt lds" if nt & (2 if b2 else 1) else x
            return x + " nt" if nt & 4 and "dwordx" in x else x
        self.L = [addnt(x) for x in self.L]
        lines = self.resolve(self.L)
        lines, nn = hz.fix(lines)
        hdr = open("cdna_kernels/" + NAME + ".s.ref").read().split("; Override")[0]
        s = hdr + f"; @launch grid=(256,1,1) block=(512,1,1) lds=163840\n" + TARGET + head(n) + "\n".join(lines) + "\n" + kd(n, 256, 102, 256)
        return s, nn

if __name__ == "__main__":
    diag = "--diag" in sys.argv
    out = [a for a in sys.argv[1:] if not a.startswith("--")]
    opt = {}
    for a in sys.argv[1:]:
        if a.startswith("--") and "=" in a:
            k, v = a[2:].split("="); opt[k] = int(v)
    s, nn = G(diag=diag, **opt).gen()
    open(out[0] if out else "cdna_kernels/" + NAME + ".s", "w").write(s)
    print("nops inserted:", nn, "lines:", s.count("\n"))
```

```python
import sys, math, struct
from asmlib import NAME, kd, head, TARGET
import hz

def f2u(x): return struct.unpack("<I", struct.pack("<f", x))[0]
SPIN = 0x40000
SLOT = 49152; XREG = 18432
S1 = 32768; S2 = 147456
L_STAT = S2; L_CS = S2 + 1280; L_CP = S2 + 2304; L_DUMMY = L_CP; L_REC = S2 + 4352; REC = 272
L_CNT = S2 + 15360
A2_BLK = 9216; A2_RT = 8 * A2_BLK
FLAG_BASE = 128 * A2_RT
ROWT = FLAG_BASE + 65536; COLT = ROWT + 65536
STAMP_BASE = COLT + 131072
WS_BYTES = STAMP_BASE + 256 * 8 * 256
OOB = 0x40000000
ONE2 = 0x3f803f80; NEGBIG = f2u(-1.0e30); LOG2E = math.log2(math.e)
DPP = "row_mask:0xf bank_mask:0xf"

SRD0, SRD1, SRD2, SRDWS, SRDDBG, SRDOUT, SRDC = 4, 8, 12, 16, 20, 24, 12
P_X, P_WQKV, P_WO, P_W1, P_W2, P_OUT, P_DBG, P_WS = 32, 34, 36, 40, 42, 44, 46, 48
SRDWO, SRDW2, SRDPF = 36, 40, 96
SOU = [50, 51, 52, 52, 52, 53]; STEP = [54, 54, 55, 55, 55, 56]; DD = [57, 58, 59, 60, 61, 62]
S_W, S_MT, S_NT, S_TG, S_H, S_CT, S_RT0, S_NONCE, S_B2H, S_B2O, S_XCD = 63, 64, 65, 66, 67, 68, 69, 70, 71, 72, 73
S_W2K, S_WB, S_ST, S_ROWS, S_COLS, S_A2, S_DELTA, S_FL = 74, 75, 76, 77, 78, 79, 80, 87
S_FOWN = 34
UN = 16384
T0, T1, T2, T3, T4, TF = 81, 82, 83, 84, 85, 86
S_M0, S_M1, S_TS = 88, 90, 92
S_PFC = 3
V_ZL = 209
VZL = [209, 216, 217, 218, 219, 220, 230, 231]
S_E0 = 75
RSA = 210
S_J, S_O = 44, 28
V_LANE, V_L16, V_B2, V_B2L, V_G, V_I, V_TRB = 1, 2, 3, 4, 5, 6, 7
V_X0, V_X1, V_W0, V_W1, V_W2 = 8, 9, 12, 14, 173
HI = {V_X0: 10, V_X1: 11, V_W0: 13, V_W1: 15, V_W2: 174}
AR = 8
V_FA, V_FD = 12, 13
ACC = 16; SETA, SETB = 96, 132
V_DMA = [168, 168, 169, 170, 171, 172]
BHK = [176, 192, 208, 224, 240, 160]
RX, RU, RT, V_NON = 176, 186, 206, 208
RS, CA, CD, CW = 92, 60, 76, [16, 20, 24, 28, 44]
V_CPW, V_CPR, V_CST, V_RST = 218, 219, 220, 221
V_CON, V_CA, V_CB, V_CK = 222, 223, 224, 225
CC = 226
V_PF, V_PFD = 234, 235
TA, TB, TC, TD = 236, 237, 238, 239
MC, MP, MP0, MB, VC = 240, 244, 248, 252, 254

def L(s): return [x.strip() for x in s.strip("\n").split("\n") if x.strip()]
def mfma(d, a, b, c=None):
    c = f"v[{d}:{d+3}]" if c is None else (c if isinstance(c, str) else f"v[{c}:{c+3}]")
    return f"v_mfma_f32_16x16x32_bf16 v[{d}:{d+3}], v[{a}:{a+3}], v[{b}:{b+3}], {c}"
def pk(op, d, *src, neg=None):
    ops = []; lo = []; hi = []
    for x in src:
        if isinstance(x, tuple): r = x[1]; ops.append(f"v[{r & ~1}:{(r & ~1) + 1}]"); lo.append(r & 1); hi.append(r & 1)
        elif isinstance(x, str): ops.append(x); lo.append(0); hi.append(0)
        else:
            assert x % 2 == 0; ops.append(f"v[{x}:{x+1}]"); lo.append(0); hi.append(1)
    assert d % 2 == 0
    f = lambda l: "[" + ",".join(map(str, l)) + "]"
    t = f"v_pk_{op}_f32 v[{d}:{d+1}], " + ", ".join(ops) + f" op_sel:{f(lo)} op_sel_hi:{f(hi)}"
    if neg: t += f" neg_lo:{f(neg)} neg_hi:{f(neg)}"
    return t
def srd(r): return f"s[{r}:{r+3}]"
def merge(main, groups, start, step):
    out = []; g = list(groups); nxt = start
    for i, x in enumerate(main):
        out.append(x)
        while g and i >= nxt:
            out += g.pop(0); nxt += step
    for x in g: out += x
    return out

def pace(main, groups, start, end):
    w = [4 if any("buffer_" in x for x in g) else 1 for g in groups]
    tot = sum(w); pos = {}; acc = 0
    for g, k in zip(groups, w):
        pos.setdefault(start + int(acc * (end - start) / tot), []).append(g); acc += k
    out = []
    for i, x in enumerate(main):
        out.append(x)
        for g in pos.get(i, []): out += g
    return out

class G:
    def __init__(self, diag=False, **opt):
        self.L = []; self.slow = []; self.diag = diag; self.o = opt; self.uid = 0; self.bud = 2
    def e(self, s):
        self.L += L(s) if isinstance(s, str) else [y for x in s for y in L(x)]
    def lab(self, p):
        self.uid += 1; return f"L_{p}_{self.uid}"
    def mksrd(self, r, ptr, nbytes):
        self.e(f"s_mov_b32 s{r}, s{ptr}\ns_mov_b32 s{r+1}, s{ptr+1}\ns_mov_b32 s{r+2}, {nbytes}\ns_mov_b32 s{r+3}, 0x20000")
    def stamp(self, idx):
        if not self.diag: return []
        return L(f"""s_memrealtime s[{S_TS}:{S_TS+1}]
s_memtime s[{S_TS+2}:{S_TS+3}]
s_waitcnt lgkmcnt(0)
v_writelane_b32 v0, s{S_TS}, {idx}
v_writelane_b32 v0, s{S_TS+2}, {idx+16}""")
    def resolve(self, lines):
        import copy
        out = []; st = [dict(vm=0, lg=0, tv={}, tl={}) for _ in range(2)]; saved = {}; live = (0, 1)
        for x in lines:
            if x.startswith("@save"): saved[x.split()[1]] = copy.deepcopy(st); continue
            if x.startswith("@load"): st = copy.deepcopy(saved[x.split()[1]]); continue
            if x.startswith("@only"): live = (int(x.split()[1]),); continue
            if x.startswith("@all"): live = (0, 1); continue
            if x.startswith("@x "): out.append(x[3:]); continue
            if x.startswith("@wv"):
                p = x.split(None, 2); n = min(st[k]["vm"] - st[k]["tv"][p[1]] for k in live)
                out.append(f"s_waitcnt vmcnt({min(62, n)}) {p[2] if len(p) > 2 else ''}".strip()); continue
            if x.startswith("@wl"):
                p = x.split(); n = [st[k]["lg"] - st[k]["tl"][p[1]] for k in live if p[1] in st[k]["tl"]]
                out.append(f"s_waitcnt lgkmcnt({min(14, min(n))})"); continue
            tag = None
            if x.startswith("@t "): _, tag, x = x.split(None, 2)
            for k in live:
                if x.startswith("buffer_"):
                    st[k]["vm"] += 1
                    if tag: st[k]["tv"][tag] = st[k]["vm"]
                elif x.startswith("ds_"):
                    st[k]["lg"] += 1
                    if tag: st[k]["tl"][tag] = st[k]["lg"]
            out.append(x)
        return [x if x.endswith(":") else "  " + x for x in out]
    def only(self, tg, groups):
        sk = self.lab("skip")
        self.e(f"s_cmp_lg_u32 s{S_TG}, {tg}\ns_cbranch_scc1 {sk}\n@only {tg}")
        for g in groups: self.e(g)
        self.e(f"@all\n{sk}:")
    def spin(self, check, reload_, pro=()):
        sl, bk, lp = self.lab("slow"), self.lab("back"), self.lab("lp")
        self.slow += [f"{sl}:"] + ["@x " + x for x in pro] + [f"s_mov_b32 s{TF}, 0", f"{lp}:", f"s_add_u32 s{TF}, s{TF}, 1", f"s_cmp_gt_u32 s{TF}, {SPIN}",
                      f"s_cbranch_scc1 {bk}", f"s_sleep {self.o.get('slp', 1)}"] + ["@x " + x for x in reload_] + ["s_waitcnt vmcnt(0)"] + check + \
                     [f"s_cbranch_vccnz {lp}", f"s_branch {bk}"]
        return check + [f"s_cbranch_vccnz {sl}", f"{bk}:"]

    def u_dma(self, i, st):
        r = [SRD0, SRD0, SRD1, SRD1, SRD1, SRD2][i]
        if self.M and i >= 2:
            o = [f"s_add_u32 m0, s{DD[2]}, {(st % 3) * SLOT + (8192 - 128) * (i - 2)}",
                 f"@t s{st} buffer_load_dwordx4 v{V_DMA[2]}, {srd(r)}, s{SOU[i]} offen offset:{128 * (i - 2)} lds"]
        else:
            o = [f"s_add_u32 m0, s{DD[i]}, {(st % 3) * SLOT}",
                 f"@t s{st} buffer_load_dwordx4 v{V_DMA[i]}, {srd(r)}, s{SOU[i]} offen lds"]
        if i in (0, 1, 4, 5) and st < 9: o.append(f"s_add_u32 s{SOU[i]}, s{SOU[i]}, s{STEP[i]}")
        return o
    def stage(self, nd, st): return [self.u_dma(i, st) for i in range(nd)]
    def lds(self, reg, off): return f"v{reg} offset:{off}" if off < 65536 else f"v{HI[reg]} offset:{off-65536}"
    def p1_mfmas(self, kind, S, final=False, c=None):
        o = []
        if kind == "m":
            for j in range(1, 5):
                for t in ((2, 1, 0) if j & 1 == 0 and self.o.get("snake", 1) else (0, 1, 2)): o.append(mfma(ACC + 16 * j + 4 * t, S + 20 + 4 * t, S + 4 * j, c))
            if self.o.get("snake", 1) == 2 and S == SETB: o.reverse()
            return o
        jf = [(j, f) for j in (range(5) if kind == "a0" else range(1, 5)) for f in (range(4) if not self.o.get("snake", 1) else (0, 1, 3, 2) if j & 1 else (2, 3, 1, 0)) if (j, f) != (0, 0)]
        if self.o.get("snake", 1) and kind == "a0": jf = jf[3:] + [(0, 1), (0, 3), (0, 2)]
        if self.o.get("snake", 1) == 2 and S == SETB: jf.reverse()
        if final and kind == "a0": jf = [(4, 1), (4, 2), (4, 3)] + [x for x in jf if x not in ((4, 1), (4, 2), (4, 3))]
        for j, f in jf:
            w, x = S + 20 + 4 * f, S + 4 * j
            o.append(mfma(ACC + 16 * j + 4 * f, *((x, w) if f == 2 else (w, x)), c))
        return o
    def u_reads(self, kind, S, st, kk):
        xs = []; ws = []; sb = (st % 3) * SLOT; vx = [V_X0, V_X1][kk]
        for j in (range(5) if kind == "a0" else range(1, 5)):
            xs.append(f"ds_read_b128 v[{S+4*j}:{S+4*j+3}], {self.lds(vx, sb + 2048*j)}")
        for f in range(3 if kind == "m" else 4):
            for hf in range(2):
                r = S + 20 + 4 * f + 2 * hf; row = hf * 16 + kk * 32
                if kind == "m": a = self.lds([V_W0, V_W1, V_W2][f], sb + row * 128)
                elif f < 3: a = self.lds(V_W0, sb + row * 480 + 160 * f)
                elif self.o.get("zl", 1): a = f"v{VZL[row // 16 + (4 if sb >= 65536 else 0)]} offset:{sb % 65536}"
                else: a = self.lds(V_W1, sb + row * 480)
                ws.append(f"ds_read_b64_tr_b16 v[{r}:{r+1}], {a}")
        return [xs[0]] + ws + xs[1:]
    def u_phase(self, mf, reads, fill, dm, prios, last):
        reads = list(reads); n = len(mf)
        span = (n * self.o.get('lsp', 3)) // 4 - (1 if self.o.get('lsp', 3) < 4 else 2) if last else n - 2
        dpos = {}
        for k in range(len(dm)): dpos.setdefault((k * span) // len(dm), []).append(dm[k])
        pend = []
        for idx, m in enumerate(mf):
            if prios and idx == 0: self.e(f"s_setprio {prios[0]}")
            if prios and idx == n // 2: self.e(f"s_setprio {prios[1]}")
            self.e(m); self.e(pend); pend = []
            for _ in range(self.o.get("rpm", 1)):
                if reads: self.e(reads.pop(0))
            budget = self.bud
            while fill and budget > 0 and not (last and idx > span):
                if "@fat" in fill[0] and budget < self.bud: break
                g = fill.pop(0); self.e([x for x in g if x != "@fat"])
                budget -= 9 if "@fat" in g else max(1, sum(1 for x in g if x.startswith(("v_", "ds_", "@t"))))
            ds = dpos.get(idx, [])
            for q, lines in enumerate(ds):
                bi = [i for i, x in enumerate(lines) if "buffer_" in x][0]
                if q == len(ds) - 1 and idx < n - 1: self.e(lines[:bi]); pend = lines[bi:]
                else: self.e(lines)
        assert not pend and not reads

    def hsum(self, r, t):
        return [f"v_add_f32_dpp v{r}, v{r}, v{r} {k} {DPP}" for k in ("quad_perm:[1,0,3,2]", "quad_perm:[2,3,0,1]", "row_half_mirror", "row_mirror")] + \
               L(f"v_mov_b32 v{t}, v{r}\nv_permlane16_swap_b32 v{r}, v{t}\nv_add_f32 v{r}, v{r}, v{t}")
    def gsum(self, r, t):
        return [[x] for x in L(f"""v_mov_b32 v{t}, v{r}
v_permlane16_swap_b32 v{r}, v{t}
v_add_f32 v{r}, v{r}, v{t}
v_mov_b32 v{t}, v{r}
v_permlane32_swap_b32 v{r}, v{t}
v_add_f32 v{r}, v{r}, v{t}""")]
    def prod1(self):
        s, q, t = RS, RS + 2, RT
        if self.o.get("rowa", 0):
            return ["@wv side"] + [mfma(CD, CA, CW[k], "0" if k == 0 else None) for k in range(5)] + \
                   [f"v_add_f32_dpp v{CD+r}, v{CD+r}, v{CD+r} row_ror:8 {DPP}" for r in range(4)] + [f"ds_write_b128 v{V_CPW}, v[{CD}:{CD+3}]"]
        o = ["@wv rows"]
        for k in range(10): o += [f"v_lshlrev_b32 v{RU+2*k}, 16, v{RX+k}", f"v_and_b32 v{RU+2*k+1}, 0xffff0000, v{RX+k}"]
        o += [pk("add", s, RU, RU + 2), pk("add", t, RU + 4, RU + 6)]
        for k in range(4, 10): o.append(pk("add", [s, t][k & 1], [s, t][k & 1], RU + 2 * k))
        o += [pk("add", s, s, t), f"v_add_f32 v{s}, v{s}, v{s+1}"] + self.hsum(s, t)
        o.append(f"v_mul_f32 v{s}, {hex(f2u(1.0/640))}, v{s}")
        for k in range(10): o.append(pk("add", RU + 2 * k, RU + 2 * k, ("b", s), neg=[0, 1]))
        o += [pk("mul", q, RU, RU), pk("mul", t, RU + 2, RU + 2)]
        for k in range(2, 10): o.append(pk("fma", [q, t][k & 1], RU + 2 * k, RU + 2 * k, [q, t][k & 1]))
        o += [pk("add", q, q, t), f"v_add_f32 v{q}, v{q}, v{q+1}"]
        o += ["@wv side"] + [mfma(CD, CA, CW[k], "0" if k == 0 else None) for k in range(5)]
        o += self.hsum(q, t)
        o += L(f"""v_mul_f32 v{q}, {hex(f2u(1.0/640))}, v{q}
v_cvt_pk_bf16_f32 v{t}, v{s}, v{q}
v_lshlrev_b32 v{s}, 16, v{t}
v_and_b32 v{q}, 0xffff0000, v{t}
v_xor_b32 v{s}, 0x80000000, v{s}
v_add_f32 v{q}, {hex(f2u(1e-5))}, v{q}
v_cvt_pk_bf16_f32 v{t}, v{q}, v{q}
v_and_b32 v{q}, 0xffff0000, v{t}
v_sqrt_f32 v{q}, v{q}""")
        for r in range(4): o.append(f"v_add_f32_dpp v{CD+r}, v{CD+r}, v{CD+r} row_ror:8 {DPP}")
        o += L(f"""v_cvt_pk_bf16_f32 v{t}, v{q}, v{q}
ds_write_b128 v{V_CPW}, v[{CD}:{CD+3}]
v_and_b32 v{q}, 0xffff0000, v{t}
v_rcp_f32 v{q}, v{q}""")
        return o
    def prod_rows(self):
        s, q, t = RSA, RSA + 2, RT
        o = []
        for k in range(10): o += [f"v_lshlrev_b32 v{RU+2*k}, 16, v{RX+k}", f"v_and_b32 v{RU+2*k+1}, 0xffff0000, v{RX+k}"]
        o += [f"v_add_f32 v{s}, v{RU}, v{RU+1}", f"v_add_f32 v{t}, v{RU+2}, v{RU+3}"]
        for k in range(4, 20): o.append(f"v_add_f32 v{[s, t][k & 1]}, v{[s, t][k & 1]}, v{RU+k}")
        o += [f"v_add_f32 v{s}, v{s}, v{t}"] + ["!" + x for x in self.hsum(s, t)]
        o.append(f"v_mul_f32 v{s}, {hex(f2u(1.0/640))}, v{s}")
        for k in range(20): o.append(f"v_sub_f32 v{RU+k}, v{RU+k}, v{s}")
        o += [f"v_mul_f32 v{q}, v{RU}, v{RU}", f"v_mul_f32 v{t}, v{RU+1}, v{RU+1}"]
        for k in range(2, 20): o.append(f"v_fmac_f32 v{[q, t][k & 1]}, v{RU+k}, v{RU+k}")
        o += [f"v_add_f32 v{q}, v{q}, v{t}"] + ["!" + x for x in self.hsum(q, t)]
        o += L(f"""v_mul_f32 v{q}, {hex(f2u(1.0/640))}, v{q}
v_cvt_pk_bf16_f32 v{t}, v{s}, v{q}
v_lshlrev_b32 v{s}, 16, v{t}
v_and_b32 v{q}, 0xffff0000, v{t}
v_xor_b32 v{s}, 0x80000000, v{s}
v_add_f32 v{q}, {hex(f2u(1e-5))}, v{q}
v_cvt_pk_bf16_f32 v{t}, v{q}, v{q}
v_and_b32 v{q}, 0xffff0000, v{t}
!v_sqrt_f32 v{q}, v{q}
v_cvt_pk_bf16_f32 v{t}, v{q}, v{q}
v_and_b32 v{q}, 0xffff0000, v{t}
!v_rcp_f32 v{q}, v{q}
v_mov_b32 v{RSA+1}, v{V_NON}
v_mov_b32 v{RSA+3}, v{V_NON}
buffer_store_dwordx4 v[{RSA}:{RSA+3}], v{V_RST}, {srd(SRDWS)}, s{S_ROWS} offen sc1""")
        g = [[x.lstrip("!"), "@fat"] if x[0] == "!" else [x] for x in o]
        g[0] = ["@wv rows"] + g[0]
        return g
    def nonce_ld(self): return f"buffer_load_dword v{V_NON}, off, {srd(SRDDBG)}, 0 sc1"
    def nonce_chk(self): return self.spin([f"v_cmp_eq_u32 vcc, 0, v{V_NON}"], [self.nonce_ld()]) + [f"v_readfirstlane_b32 s{S_NONCE}, v{V_NON}"]
    def prod2(self):
        a = [f"@t cp ds_read_b32 v{CD}, v{V_CPR}"] + self.nonce_chk() + [f"v_mov_b32 v{RS+1}, v{V_NON}", f"v_mov_b32 v{RS+3}, v{V_NON}",
             f"buffer_store_dwordx4 v[{RS}:{RS+3}], v{V_RST}, {srd(SRDWS)}, s{S_ROWS} offen sc1"]
        if self.o.get("rowa", 0): a = a[:-3]
        b = [[f"v_add_f32_dpp v{CD}, v{CD}, v{CD} row_ror:8 {DPP}"], [f"v_mov_b32 v{CD+1}, v{V_NON}"]] + self.gsum(CD, CD + 2)
        b += [[f"buffer_store_dwordx2 v[{CD}:{CD+1}], v{V_CST}, {srd(SRDWS)}, s{S_COLS} offen sc1"]]
        return a, b
    def cons_load(self): return f"buffer_load_dwordx4 v[{CC}:{CC+3}], v{V_CON}, {srd(SRDWS)}, 0 offen sc1"
    def cons(self):
        chk = L(f"""v_cmp_ne_u32 vcc, s{S_NONCE}, v{CC+1}
v_cmp_ne_u32 s[{S_M0}:{S_M0+1}], s{S_NONCE}, v{CC+3}
s_or_b64 vcc, vcc, s[{S_M0}:{S_M0+1}]""")
        return [["@wv con"] + self.spin(chk, [self.cons_load()]),
                [f"ds_write_b32 v{V_CB}, v{CC+2}"], [f"v_fmac_f32 v{CC}, v{V_CK}, v{CC+2}"], [f"ds_write_b32 v{V_CA}, v{CC}"]]

    def b2_dma(self, n):
        if n < 8: r, base, ro, v = SRDW2, S_B2H, 96 * (n >> 2) + 32 + 48 * (n & 1) + 8 * ((n >> 1) & 1), V_B2
        elif n < 24: r, base, ro, v = SRDW2, S_B2H, 48 * ((n - 8) >> 2) + 8 * (n & 3), V_B2
        elif n < 32:
            m = n - 24; r, base, ro, v = SRDWO, S_B2O, 40 * (m >> 2) + 20 * (m & 1) + 8 * ((m >> 1) & 1), V_B2
        else: r, base, ro, v = SRDWO, S_B2O, 16 + 40 * (n - 32), V_B2L
        hh = n >> 1; u = self.place[hh]
        prev = [k for k in range(hh) if self.place[k] == u]
        w = [f"@wl r{prev[-1]}"] if prev and n & 1 == 0 else []
        return w + [f"s_add_u32 m0, s{S_W2K}, {UN * u + 1024 * (n & 1)}", f"s_add_u32 s{TF}, s{base}, {ro*1280}",
                    f"@t h{hh} buffer_load_dwordx4 v{v}, {srd(r)}, s{TF} offen lds"]
    def b2_read(self, halves):
        o = []; lo = None
        for hh in halves:
            u = self.place[hh]; base = BHK[(hh >> 1) % 6]
            if lo is None or not lo <= u < lo + 4:
                rest = [self.place[k] for k in halves[halves.index(hh):]]
                lo = min([k for k in rest if 0 <= u - k < 4 and max(x for x in rest if x >= k and x - k < 4) >= u])
                o += [[f"v_add_u32 v{AR}, {UN * lo}, v{V_TRB}", f"v_xor_b32 v{AR+1}, 32, v{AR}"],
                      [f"v_xor_b32 v{AR+2}, 64, v{AR}", f"v_xor_b32 v{AR+3}, 0x60, v{AR}"]]
            assert 0 <= u - lo < 4
            for t in range(4):
                r = base + 4 * t + 2 * (hh & 1)
                o.append(([f"@wv h{hh}"] if t == 0 else []) + [f"@t r{hh} ds_read_b64_tr_b16 v[{r}:{r+1}], v{AR+t} offset:{UN * (u - lo)}"])
        return o
    def b2_refill(self, halves): return [self.b2_dma(n) for hh in halves for n in (2 * hh, 2 * hh + 1)]

    QA, CS, VA = 96, 106, [156, 120, 132, 140, 148]
    def stat_reads(self, kind, which):
        t0, t1 = 14, 15
        if kind == "m":
            o = [L(f"s_lshl_b32 s{TF}, s{S_TG}, 8\ns_add_u32 s{TF}, s{TF}, {L_STAT+64}\nv_lshl_add_u32 v{t0}, v{V_I}, 2, s{TF}"),
                 L(f"s_lshl_b32 s{TF}, s{S_H}, 8\ns_add_u32 s{TF}, s{TF}, {L_CS}\nv_lshl_add_u32 v{t1}, v{V_G}, 4, s{TF}")]
            for j in range(4): o.append([f"ds_read2_b32 v[{96+2*j}:{97+2*j}], v{t0} offset0:{16*j} offset1:{160+16*j}"])
            for t in range(3): o.append([f"@t st ds_read_b128 v[{104+4*t}:{107+4*t}], v{t1} offset:{64*t}"])
            return o
        QA, CS, VA = self.QA, self.CS, self.VA
        def va(j): return [[f"ds_read_b128 v[{VA[j]}:{VA[j]+3}], v{t1} offset:{64*j}"], [f"@t va{j} ds_read_b128 v[{VA[j]+4}:{VA[j]+7}], v{t1} offset:{640+64*j}"]]
        if which == 0:
            o = [L(f"s_lshl_b32 s{TF}, s{S_H}, 8\ns_add_u32 s{TF}, s{TF}, {L_CS}\nv_lshl_add_u32 v{t0}, v{V_G}, 4, s{TF}\nv_lshl_add_u32 v{t1}, v{V_I}, 2, s{TF}")]
            o += [[f"ds_read_b128 v[{CS}:{CS+3}], v{t0}"], [f"ds_read_b128 v[{CS+4}:{CS+7}], v{t0} offset:64"],
                  [f"ds_read_b128 v[{CS+8}:{CS+11}], v{t0} offset:192"], [f"ds_read_b32 v{CS+12}, v{t1} offset:128"]]
            o += [L(f"s_lshl_b32 s{TF}, s{S_TG}, 8\ns_add_u32 s{TF}, s{TF}, {L_STAT}\nv_lshl_add_u32 v{t0}, v{V_I}, 2, s{TF}\nv_lshl_add_u32 v{t1}, v{V_G}, 4, s{TF}")]
            for j in range(5): o.append([f"ds_read2_b32 v[{QA+2*j}:{QA+2*j+1}], v{t0} offset0:{16*j} offset1:{160+16*j}"])
            return o + va(1)
        return [x for g in va(which % 5) for x in g]

    def main_loop(self, kind):
        M = kind == "m"; nd = 5 if M else 6; o = self.o
        P = (lambda a, b: (a, b)) if o.get("prio", 3) >> M & 1 else (lambda a, b: None)
        self.e("@wv s0 lgkmcnt(0)\ns_barrier"); self.e(self.stamp(1))
        fill = []; carry = []; fill2 = []
        self.e(self.u_reads(kind, SETA, 0, 0))
        RST = M and not o.get("sf", 2)
        if M and not RST:
            p2a, p2b = self.prod2()
            if not o.get("paced", 1): self.e("@wv non"); self.e(p2a); fill = p2b
            self.e("s_waitcnt lgkmcnt(0)")
            self.u_phase(self.p1_mfmas(kind, SETA, c="0"), self.u_reads(kind, SETB, 0, 1), fill, self.head[:o.get("kh", 99)], None, False)
            carry = self.head[o.get("kh", 99):]
        elif M:
            self.e(self.u_reads(kind, SETB, 0, 1))
            p2a, p2b = self.prod2()
            s1 = self.stage(nd, 1); s1[-1:-1] = [[self.nonce_ld()]]
            self.e("s_waitcnt lgkmcnt(%d)" % len(self.u_reads(kind, SETB, 0, 1)))
            self.u_phase(self.p1_mfmas(kind, SETA, c="0"), [], [], s1[:o.get("km", 0)], None, False)
            self.e("s_waitcnt lgkmcnt(0)")
            self.u_phase(self.p1_mfmas(kind, SETB), [], [], [], None, False)
            for g in s1[o.get("km", 0):]: self.e(g)
            self.e(self.stamp(8)); self.e(self.prod1()); self.e(self.stamp(10))
            for g in self.stage(nd, 2): self.e(g)
        else:
            self.e("s_waitcnt lgkmcnt(0)")
            self.u_phase(self.p1_mfmas(kind, SETA, c="0"), self.u_reads(kind, SETB, 0, 1), [], ([["@t non " + self.nonce_ld()]] if o.get("rowa", 0) else []) + ([self.pfl] if o.get("pf0", 2) == -1 else []) + self.stage(nd, 1)[o.get("k1", 3):] + ([self.pfl] if o.get("pf0", 2) == -2 else []) + self.stage(nd, 2)[:o.get("ks2", 6)] + ([self.pfl] if o.get("pf0", 2) == -3 else []), None, False)
            carry = self.stage(nd, 2)[o.get("ks2", 6):]
        for it in range(1, 10):
            if it <= 7: dm = self.stage(nd, it + 2)
            else: dm = [self.b2_dma(6 * (it - 8) + n) for n in range(6)]
            if carry:
                dm = carry + dm; k = max(len(carry), min(len(dm), nd + o.get("cu", 2))); carry = dm[k:]; dm = dm[:k]
            ci = o.get("cim", 8) if M else o.get("cia", 8)
            if it == ci: dm = [["@t con " + self.cons_load()]] + dm
            if not M and o.get("rowa", 0) == 3 and it == o.get("ra", 2): dm = dm + self.arows
            if it == (o.get("rp", 4) if o.get("rowa", 0) == 3 else 1) and not M and o.get("rowa", 0): fill = [["@wv non"] + self.nonce_chk()] + self.prod_rows(); self.bud = o.get("bud", 2)
            if it == 3 and not M and not o.get("rowa", 0): dm = [[self.nonce_ld()]] + dm
            if it == 5 and not M and not o.get("rowa", 0): fill = [self.nonce_chk()]
            if it == 8: assert not fill; self.bud = 2
            if it == ci + 2: fill = self.cons()
            if it == 9 and ci == 8: fill2 = self.cons()
            PC = M and o.get("paced", 1)
            if PC:
                sr = self.side_rest; kb = len(sr) - 2
                if it == o.get("sb", 1): dm = (dm + sr[:kb]) if o.get("sback", 1) else (sr[:kb] + dm)
                if it == o.get("sc", 1): dm = (dm + sr[kb:]) if o.get("sback", 1) else (sr[kb:] + dm)
                if it == o.get("pr", 3) + 1: fill = [p2a]; fill2 = p2b
            mine = o.get("pfwho", 1) == (0 if M else 1); pfs = o.get("pfs", 0); hh = None
            if it == o.get("pf0", 2) and mine and not pfs: dm = dm + [self.pfl]
            if mine and pfs:
                ev = [o.get("pf0", 2)] + ([o.get("pf1", 4)] if pfs == 2 else [])
                if it in ev:
                    hh = len(dm)
                    if pfs == 1: dm = dm + [self.pfl]
                    else:
                        k = 0x0000ffff if it == ev[0] else 0xffff0000
                        k = 0x000007ff if it == ev[0] else 0xfffff800
                        dm = dm + [[f"s_mov_b32 exec_lo, {hex(k)}\ns_mov_b32 exec_hi, 0\n" + self.pfl[0] + "\ns_mov_b64 exec, -1"]]
                if it - 1 in ev: hh = o.get("pfh", 0)
            if o.get("its"): self.e(f"s_memtime s[{S_TS+2}:{S_TS+3}]")
            if o.get("nodma") and M and 2 < it < 8: dm = [[f"@t s{it+2} buffer_load_dword v{V_PFD}, off, {srd(SRDDBG)}, 0"]] + [d for d in dm if "con" in d[0]]
            self.e(f"@wv s{it} lgkmcnt(0)\ns_barrier")
            if o.get("its"): self.e(f"s_memtime s[{S_TS}:{S_TS+1}]\nv_writelane_b32 v0, s{S_TS+2}, {48+it}")
            h = (len(dm) * o.get('hsm' if M else 'hsa', 4) + 3) // 7 if hh is None else hh
            if it == 1 and RST:
                self.e(self.u_reads(kind, SETA, it, 0)); self.e(p2a); fill = p2b; h = 0
            else:
                self.u_phase(self.p1_mfmas(kind, SETB), self.u_reads(kind, SETA, it, 0), fill, dm[:h], P(3, 2), False)
            if PC and it == o.get("pr", 3): self.e(self.stamp(8)); self.e(self.prod1()); self.e(self.stamp(10))
            self.e("s_waitcnt lgkmcnt(0)")
            fill += fill2; fill2 = []
            if o.get("its"): self.e(f"v_writelane_b32 v0, s{S_TS}, {32+it}")
            self.u_phase(self.p1_mfmas(kind, SETA), self.u_reads(kind, SETB, it, 1), fill, dm[h:], P(1, 0), not (it == 1 and RST))
        assert not fill
        self.e("s_waitcnt lgkmcnt(0)\ns_barrier")
        self.e(self.stamp(9))
        fill = self.stat_reads(kind, 0)
        if kind == "a0":
            hw = [L(f"s_mul_i32 s{TF}, s{S_H}, 3072\ns_add_u32 s{TF}, s{TF}, {S1}\nv_add_u32 v13, s{TF}, v{V_L16}")]
            hw += [[f"@t hw ds_write_b128 v13, v[{ACC+64+4*f}:{ACC+67+4*f}] offset:{1024*(f-1)}", "s_nop 0"] for f in (1, 2, 3)]
            fill = fill[:7] + hw + fill[7:]
        self.u_phase(self.p1_mfmas(kind, SETB, True), [], fill, [self.b2_dma(12 + i) for i in range(4)], P(1, 0), False)
        for g in fill: self.e(g)
        if kind == "a0": self.e("@wl hw\ns_barrier")
        elif kind == "a1":
            self.e(f"s_barrier\ns_mul_i32 s{TF}, s{S_H}, 3072\ns_add_u32 s{TF}, s{TF}, {S1}\nv_add_u32 v13, s{TF}, v{V_L16}")
            for f in (1, 2, 3): self.e(f"@t halo ds_read_b128 v[{ACC+4*f}:{ACC+4*f+3}], v13 offset:{1024*(f-1)}")
        self.e(self.stamp(2))

    def flag_setup(self, n):
        return L(f"""v_and_b32 v{V_FA}, 1, v{V_LANE}
v_mul_u32_u24 v{V_FA}, {n//2-1}, v{V_FA}
v_add_u32 v{V_FA}, s{S_E0}, v{V_FA}
v_and_b32 v{V_FA}, 4, v{V_FA}
s_add_u32 s{TF}, s{S_RT0}, s{S_W}
v_lshl_add_u32 v{V_FA}, v{V_FA}, 1, s{TF}
v_lshlrev_b32 v{V_FA}, 7, v{V_FA}""")
    def flag_load(self): return f"buffer_load_dword v{V_FD}, v{V_FA}, {srd(SRDWS)}, s{S_FL} offen sc1"
    def flag_issue(self, p): return [f"s_mov_b32 s{S_FL}, {FLAG_BASE + p*16384}", f"@t fl{p} " + self.flag_load()]
    def flag_check(self, p, pro=()): return [f"@wv fl{p}"] + self.spin([f"v_cmp_ne_u32 vcc, s{S_NONCE}, v{V_FD}"], [self.flag_load()], pro)
    def flag_store(self, p, t):
        sk = self.lab("nofl")
        full = f"s_mov_b64 exec, 0xff\n@x buffer_store_dwordx4 v[{t}:{t+3}], v{V_L16}, {srd(SRDWS)}, s{TF} offen sc1" if self.o.get("ffl", 1) else \
               f"@x buffer_store_dword v{t}, off, {srd(SRDWS)}, s{TF} sc1"
        return L(f"""v_mov_b32 v{t}, {L_CNT + 4*p}
v_mov_b32 v{t+1}, 1
s_mov_b64 exec, 1
ds_add_rtn_u32 v{t+1}, v{t}, v{t+1}
v_mov_b32 v{t}, s{S_NONCE}
s_add_u32 s{TF}, s{S_FOWN}, {p*16384}
s_waitcnt lgkmcnt(0)
v_cmp_eq_u32 vcc, 7, v{t+1}
s_cbranch_vccz {sk}
{full}
{sk}:
s_mov_b64 exec, -1""")

    def attn_epi(self):
        QA, CS, VA = self.QA, self.CS, self.VA
        VOP, ON = 164, 152
        t0, t1, t2 = 174, 175, 255
        m = L(f"""s_mul_i32 s{T0}, s{S_W}, {5*REC}
s_add_u32 s{T0}, s{T0}, {L_REC}
v_lshlrev_b32 v{t0}, 6, v{V_G}
v_lshl_add_u32 v{t0}, v{V_I}, 3, v{t0}
v_add_u32 v{t1}, {L_DUMMY}, v{t0}
v_add_u32 v{t0}, s{T0}, v{t0}
s_mov_b32 s{S_M0}, 0xffff
s_mov_b32 s{S_M0+1}, 0xffff
v_cndmask_b32 v{t0}, v{t1}, v{t0}, s[{S_M0}:{S_M0+1}]
v_lshl_add_u32 v{t1}, v{V_I}, 3, s{T0}
s_add_u32 s{T0}, s{T0}, 256
v_mov_b32 v{t2}, s{T0}
s_mov_b32 s{S_M0}, 0xffff0000
s_mov_b32 s{S_M0+1}, 0
v_cndmask_b32 v{t1}, v{t2}, v{t1}, s[{S_M0}:{S_M0+1}]""")
        for j in (1, 2, 3, 4, 0):
            A = ACC + 16 * j
            if self.o.get("eprio", 1) and j == 1: m.append("s_setprio 3")
            if j: m += self.stat_reads("a", j + 1)
            m += [f"@wl va{j}"] + ([] if j else ["@wl halo"])
            for f, cs in ((3, CS + 8), (1, CS + 4), (0, CS)):
                if j == 0 and f == 0: continue
                for r in (0, 2): m.append(pk("fma", A+4*f+r, ("b", QA+2*j), cs+r, A+4*f+r))
                for r in (0, 2): m.append(pk("mul", A+4*f+r, ("b", QA+2*j+1), A+4*f+r))
            m += L(f"""v_cvt_pk_bf16_f32 v{A+4}, v{A+4}, v{A+5}
v_cvt_pk_bf16_f32 v{A+5}, v{A+6}, v{A+7}
v_cvt_pk_bf16_f32 v{A+6}, v{A+12}, v{A+13}
v_cvt_pk_bf16_f32 v{A+7}, v{A+14}, v{A+15}
ds_write_b64 v{t0}, v[{A+6}:{A+7}] offset:{REC*j}""")
            if j:
                m += L(f"v_cvt_pk_bf16_f32 v{A}, v{A}, v{A+1}\nv_cvt_pk_bf16_f32 v{A+1}, v{A+2}, v{A+3}\n@t ql{j} ds_read_b64 v[{A+2}:{A+3}], v{t1} offset:{REC*j}")
            for r in (0, 2): m.append(pk("fma", A+8+r, VA[j]+r, ("b", CS+12), A+8+r))
            for r in (0, 2): m.append(pk("mul", A+8+r, VA[j]+4+r, A+8+r))
            m += L(f"v_cvt_pk_bf16_f32 v{VOP+2*j}, v{A+8}, v{A+9}\nv_cvt_pk_bf16_f32 v{VOP+2*j+1}, v{A+10}, v{A+11}")
            if j >= 2 or j == 0:
                jj = j - 1 if j else 4
                B = ACC + 16 * jj
                m += [f"@wl ql{jj}", mfma(B + 8, B + 4, B, MC)]
                if jj >= 2: m.append(mfma(B + 12, B - 12, B, MP))
        m.append(mfma(ACC + 16 + 12, ACC + 4, ACC + 16, MP0))
        self.blk = self.b2_block(); k = self.cut(self.o.get("nia1", 8))
        self.e(pace(m, k, 10, len(m) - 1) if k else m)
        self.e(self.stamp(11))
        VL, MX, OL, RR, RL = 96, 136, 140, 144, 148
        m = (["s_setprio 2"] if self.o.get("eprio", 1) else []) + L(f"""v_lshrrev_b32 v{t0}, 2, v{V_LANE}
v_lshlrev_b32 v{t0}, 3, v{t0}
v_add_u32 v{t0}, s{T0}, v{t0}
v_subrev_u32 v{t0}, 0x80, v{t0}""")
        for j in range(1, 5):
            k = 0x11111111 << (j - 1)
            m += L(f"""s_mov_b32 s{S_M0}, {hex(k)}
s_mov_b32 s{S_M0+1}, {hex(k)}
v_cndmask_b32 v{t1}, v{t2}, v{t0}, s[{S_M0}:{S_M0+1}]
ds_read_b64_tr_b16 v[{VL+4*(j-1)}:{VL+4*(j-1)+1}], v{t1} offset:{REC*(j-1)}
@t vl ds_read_b64_tr_b16 v[{VL+4*(j-1)+2}:{VL+4*(j-1)+3}], v{t1} offset:{REC*j}""")
        for r in range(4): m.append(f"v_mov_b32 v{ON+r}, {hex(ONE2)}")
        for j in (2, 3, 4, 1):
            A = ACC + 16 * j
            for r in range(4): m.append(f"v_max_f32 v{A+8+r}, v{A+8+r}, v{A+12+r}")
            m += L(f"v_max3_f32 v{MX+j-1}, v{A+8}, v{A+9}, v{A+10}\nv_max_f32 v{MX+j-1}, v{MX+j-1}, v{A+11}")
        m0, m1, m2, m3 = MX, MX + 1, MX + 2, MX + 3
        red = L(f"""v_permlane16_swap_b32 v{m2}, v{m3}
v_permlane16_swap_b32 v{m0}, v{m1}
v_max_f32 v{m2}, v{m2}, v{m3}
v_max_f32 v{m0}, v{m0}, v{m1}
v_permlane32_swap_b32 v{m0}, v{m2}
v_max_f32 v{m0}, v{m0}, v{m2}
v_mul_f32 v{m0}, v{m0}, v{VC}
v_mov_b32 v{m2}, v{m0}
v_permlane32_swap_b32 v{m0}, v{m2}
v_mov_b32 v{m1}, v{m0}
v_mov_b32 v{m3}, v{m2}
v_permlane16_swap_b32 v{m0}, v{m1}
v_permlane16_swap_b32 v{m2}, v{m3}""")
        adr = L(f"""v_and_b32 v{t0}, 31, v{V_LANE}
v_lshlrev_b32 v{t0}, 4, v{t0}
v_lshrrev_b32 v{t1}, 5, v{V_LANE}
s_mov_b32 s{T0}, {A2_RT}
v_mad_u32_u24 v{t0}, v{t1}, s{T0}, v{t0}
v_lshlrev_b32 v{t1}, 26, v{t1}
v_lshl_add_u32 v{t1}, v{V_I}, 4, v{t1}
v_mad_u32_u24 v{t1}, v{V_G}, s{T0}, v{t1}
s_lshl_b32 s{T0}, s{S_MT}, 1
s_add_u32 s{T0}, s{T0}, s{S_TG}
s_lshl_b32 s{T0}, s{T0}, 5
s_add_u32 s{T0}, s{T0}, s{S_NT}
s_mul_i32 s{T0}, s{T0}, {A2_BLK}
s_lshl_b32 s{T1}, s{S_H}, 9
s_add_u32 s{T1}, s{T1}, s{T0}
s_add_u32 s{T1}, s{T1}, 6144
s_lshl_b32 s{T2}, s{S_H}, 8
s_add_u32 s{T2}, s{T2}, s{T0}
s_add_u32 s{T2}, s{T2}, 8192""")
        m += merge(red, [adr[i:i+2] for i in range(0, len(adr), 2)], 1, 1)
        m.append("@wl vl")
        for j in range(1, 5):
            A = ACC + 16 * j
            for r in (0, 2): m.append(pk("fma", A+8+r, A+8+r, ("b", VC), ("b", MX+j-1), neg=[0, 0, 1]))
            for r in range(4): m.append(f"v_exp_f32 v{A+8+r}, v{A+8+r}")
            m += L(f"""v_cvt_pk_bf16_f32 v{A+12}, v{A+8}, v{A+9}
v_cvt_pk_bf16_f32 v{A+13}, v{A+10}, v{A+11}
v_and_b32 v{A+14}, v{A+12}, v{MB}
v_and_b32 v{A+15}, v{A+13}, v{MB+1}
v_xor_b32 v{A+12}, v{A+12}, v{A+14}
v_xor_b32 v{A+13}, v{A+13}, v{A+15}""")
            if j == 2 and self.o.get("eprio", 1): m.append("s_setprio 1")
            if j > 1: m.append(f"v_rcp_f32 v{RR+j-2}, v{A-16+4}")
            m += [mfma(A + 4, ON, A + 12, "0"), mfma(A, VOP + 2 * (j - 1), A + 12, "0"), mfma(OL, VL + 4 * (j - 1), A + 12, "0" if j == 1 else OL)]
        self.p2_seq(4); f0 = 0 if self.o.get("split1", 1) else 1
        ne = self.o.get("ne", 2)
        k = [self.flag_setup(4) + self.flag_issue(f0)] + self.cut(self.o.get("nia2", 8), True)
        if ne: k += [self.flag_check(f0) + self.stamp(13) + self.first[0]] + self.first[1:ne]
        p0 = self.o.get("pp0", 2)
        self.e(pace(m, k, p0, len(m) - 1))
        m = []
        for pr in range(2):
            Dp = ACC + 4 * pr
            for u in range(2):
                j = 1 + 2 * pr + u; A = ACC + 16 * j
                if j == 4: m.append(f"v_rcp_f32 v{RR+3}, v{A+4}")
                for r in (0, 2): m.append(pk("mul", A+r, A+r, ("b", RR+j-1)))
                m += L(f"v_cvt_pk_bf16_f32 v{Dp+2*u}, v{A}, v{A+1}\nv_cvt_pk_bf16_f32 v{Dp+2*u+1}, v{A+2}, v{A+3}")
                m.append(f"v_mov_b32_dpp v{RL}, v{RR+j-1} quad_perm:[0,1,2,3] row_mask:{hex(1<<(j-1))} bank_mask:0xf")
            m += L(f"""v_permlane32_swap_b32 v{Dp}, v{Dp+2}
v_permlane32_swap_b32 v{Dp+1}, v{Dp+3}
buffer_store_dwordx4 v[{Dp}:{Dp+3}], v{t0}, {srd(SRDWS)}, s{T1} offen sc1
s_add_u32 s{T1}, s{T1}, {2*A2_RT}""")
        for r in (0, 2): m.append(pk("mul", OL+r, OL+r, ("b", RL)))
        Dp = ACC + 8
        m += L(f"""v_cvt_pk_bf16_f32 v{Dp}, v{OL}, v{OL+1}
v_cvt_pk_bf16_f32 v{Dp+1}, v{OL+2}, v{OL+3}
v_permlane32_swap_b32 v{Dp}, v{Dp+2}
v_permlane32_swap_b32 v{Dp+1}, v{Dp+3}
@t st buffer_store_dwordx4 v[{Dp}:{Dp+3}], v{t1}, {srd(SRDWS)}, s{T2} offen sc1""")
        self.e(m); self.e(self.stamp(3))

    def mlp_epi(self):
        QA, CS, SD, E, D, a0, a1 = 96, 104, 116, 136, 16, 174, 175
        ep = self.o.get("eprio", 1)
        m = L(f"""v_and_b32 v{a0}, 31, v{V_LANE}
v_lshlrev_b32 v{a0}, 4, v{a0}
v_lshrrev_b32 v{a1}, 5, v{V_LANE}
s_mov_b32 s{T0}, {A2_RT}
v_mad_u32_u24 v{a0}, v{a1}, s{T0}, v{a0}
s_lshl_b32 s{T0}, s{S_MT}, 1
s_add_u32 s{T0}, s{T0}, s{S_TG}
s_lshl_b32 s{T0}, s{T0}, 5
s_add_u32 s{T0}, s{T0}, s{S_NT}
s_mul_i32 s{T0}, s{T0}, {A2_BLK}
s_lshl_b32 s{T1}, s{S_H}, 10
s_add_u32 s{T1}, s{T1}, s{T0}
s_add_u32 s{T1}, s{T1}, 2048
s_lshl_b32 s{T2}, s{S_H}, 9
s_add_u32 s{T2}, s{T2}, s{T0}
@wl st""")
        for j in range(4): m.append(f"v_rcp_f32 v{SD+j}, v{QA+2*j+1}")
        for j in range(4): m.append(f"v_mul_f32 v{QA+2*j+1}, {hex(f2u(-LOG2E))}, v{QA+2*j+1}")
        def silu(items):
            o = [pk("fma", A, ("b", QA+2*j), c, A) for A, j, c in items]
            o += [pk("mul", E+2*k, ("b", QA+2*j+1), A) for k, (A, j, c) in enumerate(items)]
            o += [f"v_exp_f32 v{E+k}, v{E+k}" for k in range(2 * len(items))]
            o += [pk("fma", E+2*k, E+2*k, ("b", SD+j), ("b", SD+j)) for k, (A, j, c) in enumerate(items)]
            o += [f"v_rcp_f32 v{E+k}, v{E+k}" for k in range(2 * len(items))]
            return o + [pk("mul", A, A, E+2*k) for k, (A, j, c) in enumerate(items)]
        m += self.flag_setup(6)
        for j in range(4):
            if ep: m.append(f"s_setprio {[3, 3, 2, 1][j]}")
            A = ACC + 16 * (j + 1); pr = j >> 1; Dd = D + 4 * pr
            si = silu([(A + r, j, CS + r) for r in range(0, 12, 2)])
            if 2 * j == self.o.get("jf0", 6): m.append("\n".join(["@wv st0"] + self.flag_store(0, 24)))
            if 2 * j + 1 == self.o.get("jf0", 6): si[30:30] = ["\n".join(["@wv st0"] + self.flag_store(0, 24))]
            m += si + [f"v_cvt_pk_bf16_f32 v{A+k}, v{A+2*k}, v{A+2*k+1}" for k in range(4)]
            m += L(f"buffer_store_dwordx4 v[{A}:{A+3}], v{V_L16}, {srd(SRDWS)}, s{T1} offen sc1\ns_add_u32 s{T1}, s{T1}, {A2_RT}")
            m += [f"v_cvt_pk_bf16_f32 v{Dd+2*(j&1)+k}, v{A+8+2*k}, v{A+9+2*k}" for k in range(2)]
            if j & 1:
                m += L(f"""v_permlane32_swap_b32 v{Dd}, v{Dd+2}
v_permlane32_swap_b32 v{Dd+1}, v{Dd+3}
@t st{pr} buffer_store_dwordx4 v[{Dd}:{Dd+3}], v{a0}, {srd(SRDWS)}, s{T2} offen sc1
s_add_u32 s{T2}, s{T2}, {2*A2_RT}""")
        if self.o.get("jf0", 6) == 8: m.append("\n".join(["@wv st0"] + self.flag_store(0, 24)))
        self.p2_seq(6)
        self.blk = self.b2_block(); k = self.cut(self.o.get("nim", 6), True)
        m = pace(m, k, 10, len(m) * 7 // 8)
        for x in m: self.e(x)
        self.e(self.stamp(3))
    def cut(self, ndma, more=False):
        o = []
        while ndma > 0 and self.blk:
            g = self.blk.pop(0); o.append(g); ndma -= any("buffer_" in x for x in g)
        while more and not any("buffer_" in x or "@t r8 " in y for x in self.blk[0] for y in self.blk[2]): o.append(self.blk.pop(0))
        return o
    def b2_block(self):
        return self.b2_read([0, 1, 2]) + self.b2_refill([8, 9, 10]) + self.b2_read([3, 4, 5]) + self.b2_refill([11]) + self.b2_read([6, 7]) + \
               self.b2_refill([12, 13, 14, 15]) + self.b2_read([8, 9, 10, 11]) + self.b2_refill([16])

    def p2_scalars(self, n):
        h = n // 2; R = 96
        o = [[f"s_mov_b32 s{T0}, s{S_CT}"]]
        if h == 2: o.append([f"s_and_b32 s{T0}, s{T0}, 1"])
        else:
            for k in range(2): o.append(L(f"s_cmp_ge_u32 s{T0}, {h}\ns_cselect_b32 s{T1}, {h}, 0\ns_sub_u32 s{T0}, s{T0}, s{T1}"))
        for j in range(h):
            o.append(L(f"""s_add_u32 s{T1}, s{T0}, s{S_E0}
s_and_b32 s{T2}, s{T1}, 6
s_add_u32 s{R+j}, s{T1}, s{T2}
s_mul_i32 s{S_J+j}, s{R+j}, {A2_RT}
s_add_u32 s{S_J+j}, s{S_J+j}, s{S_A2}
s_add_u32 s{S_J+j+h}, s{S_J+j}, {0 if self.o.get('hotl') else 2*A2_RT}"""))
            if j < h - 1: o.append(L(f"s_add_u32 s{T0}, s{T0}, 1\ns_cmp_eq_u32 s{T0}, {h}\ns_cselect_b32 s{T0}, 0, s{T0}"))
        o += [L(f"s_and_b32 s{T3}, s{S_RT0}, 63\ns_mul_i32 s{T3}, s{T3}, {16*2560}\ns_lshr_b32 s{T0}, s{S_RT0}, 6"),
              L(f"s_mul_i32 s{T0}, s{T0}, 1280\ns_add_u32 s{T3}, s{T3}, s{T0}\ns_lshl_b32 s{T0}, s{S_CT}, 7\ns_add_u32 s{T3}, s{T3}, s{T0}")]
        for m in range(h):
            a, b = 2 * m, 2 * m + 1
            o.append(L(f"""s_cmp_eq_u32 s{S_TG}, 1
s_cselect_b32 s{T0}, s{R + b % h}, s{R + a % h}
s_cselect_b32 s{T1}, {2 * (b >= h)}, {2 * (a >= h)}
s_add_u32 s{T0}, s{T0}, s{T1}
s_mul_i32 s{T0}, s{T0}, {16*2560}
s_add_u32 s{S_O+m}, s{T0}, s{T3}"""))
        return o
    def p2_seq(self, n):
        self.NS = self.o.get("ns", 6); self.cur = None
        self.seq = [(j, k) for j in range(n) for k in range(6)] + [(j, ks) for j in range(n) for ks in range(6, 9 if j < n // 2 else 8)]
        self.first = [self.issue(q) for q in range(self.NS)]
    def issue(self, q):
        j, ks = self.seq[q]; off = (j, ks >> 2); r = 112 + 4 * (q % self.NS); o = []; so = S_J + j
        if ks >= 4:
            so = S_DELTA
            if self.cur != off: o.append(f"s_add_u32 s{S_DELTA}, s{S_J+j}, {(ks >> 2) * 4096}"); self.cur = off
        return o + [f"@t a{q} buffer_load_dwordx4 v[{r}:{r+3}], v{V_L16}, {srd(SRDWS)}, s{so} offen offset:{1024*(ks&3)} sc1"]
    def p2(self, n, typ):
        STG, NS = 112, self.o.get("ns", 6); assert NS <= 6
        lead = self.o.get("lead", 3)
        SEL, RW, RRD, V_OUT, XR = 136, 154, 155, 156, [152, 158, 14]
        seq, issue, first = self.seq, self.issue, self.first
        sp = self.o.get("split%d" % typ, 1); f0 = 0 if sp else 1
        last = {k: max(q for q, (j, ks) in enumerate(seq) if ks == k) for k in range(3)}
        q2 = 6 * n
        isd = lambda g: any("buffer_" in x for x in g)
        ta, tb = 157, 153
        RWX, RDX = [RW, BHK[4], BHK[4] + 1, BHK[4] + 2], [RRD, BHK[4] + 3, BHK[4] + 4, BHK[4] + 5]
        setup = [L(f"s_bfe_u32 s{T0}, s{S_W}, 0x10001\nv_xor_b32 v{RW}, v{V_I}, v{V_G}\nv_xor_b32 v{RW}, s{T0}, v{RW}"),
                 L(f"v_lshlrev_b32 v{RW}, 3, v{RW}\nv_lshl_add_u32 v{RW}, v{V_G}, 7, v{RW}"),
                 L(f"s_add_u32 s{T0}, s{S_W2K}, {3*UN}\nv_add_u32 v{RW}, s{T0}, v{RW}\ns_lshl_b32 s{T0}, s{S_H}, 2\nv_and_or_b32 v{RRD}, v{V_G}, 1, s{T0}"),
                 L(f"v_xor_b32 v{RRD}, v{RRD}, v{V_I}\nv_lshlrev_b32 v{RRD}, 3, v{RRD}"),
                 L(f"v_lshl_add_u32 v{RRD}, v{V_I}, 7, v{RRD}\nv_lshlrev_b32 v{ta}, 12, v{V_G}"),
                 L(f"s_lshl_b32 s{T0}, s{S_TG}, 14\ns_add_u32 s{T0}, s{T0}, {3*UN}\nv_add3_u32 v{RRD}, v{RRD}, v{ta}, s{T0}\n"
                   f"s_lshl_b32 s{T0}, s{S_H}, 2\nv_add_u32 v{ta}, s{T0}, v{V_G}"),
                 L(f"v_mul_u32_u24 v{V_OUT}, 2560, v{ta}\nv_lshl_add_u32 v{V_OUT}, v{V_I}, 3, v{V_OUT}"),
                 L(f"v_and_b32 v{ta}, 1, v{V_LANE}"),
                 L(f"v_lshlrev_b32 v{ta}, 4, v{ta}\nv_mov_b32 v{tb}, 0x3f80"), L(f"v_lshlrev_b32 v{ta}, v{ta}, v{tb}")]
        setup2 = [[f"v_xor_b32 v{RWX[k]}, {32*k}, v{RW}", f"v_xor_b32 v{RDX[k]}, {8*k}, v{RRD}"] for k in (1, 2, 3)]
        for c in range(4):
            for hh in range(2):
                k = (3 << (4 * c + 2 * hh)) * 0x10001
                setup.append(L(f"""s_mov_b32 s{S_M0}, {hex(k)}
s_mov_b32 s{S_M0+1}, {hex(k)}
v_cndmask_b32 v{SEL+4*c+hh}, 0, v{ta}, s[{S_M0}:{S_M0+1}]
v_cndmask_b32 v{SEL+4*c+hh+2}, 0, v{ta}, s[{S_M0}:{S_M0+1}]"""))
        xl = [[f"@t x{m} buffer_load_dwordx2 v[{XR[m]}:{XR[m]+1}], v{V_OUT}, {srd(SRD0)}, s{S_O+m} offen"] for m in range(n // 2)]
        own = {}
        if typ == 1:
            ne = self.o.get("ne", 2)
            if not ne: self.e(self.flag_check(f0)); self.e(self.stamp(13))
            for g in first[ne:]: self.e(g)
            self.e("s_setprio 0")
            own[self.o.get("qf", 1)] = ["@wv st", "s_setprio 3"] + self.flag_store(3, 108) + ["s_setprio 0"]
        else:
            self.e("s_setprio 0")
            fs = ["s_setprio 3"] + self.flag_store(1, 108) + ["s_setprio 0"]
            od = [g for g in self.blk if isd(g) and any(f"@t h{k} " in x for x in g for k in range(12, 17))]
            hr = [g for g in self.blk if g not in od]
            i8 = [i for i, g in enumerate(hr) if any("@t r8 " in x for x in g)][0] - 2
            a, b, c = self.o.get("npre", 2), self.o.get("nmid", 2), self.o.get("npost", 2)
            for g in hr[:i8] + od[:a]: self.e(g)
            self.e(["@wv st1"] + fs); self.e(self.stamp(4))
            for g in od[a:a+b]: self.e(g)
            self.e(self.flag_issue(f0))
            for g in hr[i8:] + od[a+b:a+b+c] + setup + xl: self.e(g)
            self.e(self.flag_check(f0)); self.e(self.stamp(13))
            for g in first: self.e(g)
            self.blk = od[a+b+c:]
            setup = []; xl = []
        slow = self.blk + self.b2_read([12, 13]) + self.b2_read([14, 15]) + self.b2_read([16])
        dq = [g for g in slow if isd(g)]; rq = [g for g in slow if not isd(g)]
        when = {}
        gap, dper = self.o.get("gap", NS + 1), self.o.get("dper%d" % typ, 2)
        def pending(tag): return any(f"@t {tag} " in x for g in dq + rq for x in g)
        def ready(g, q):
            if free_at(g) >= q: return False
            for x in g:
                if x.startswith(("@wv", "@wl")):
                    tag = x.split()[1]
                    if pending(tag) or when.get(tag, -99) + (gap if x[2] == "v" else 1) > q: return False
            return True
        def put(g, q):
            self.e(g)
            for x in g:
                if x.startswith("@t "): when[x.split()[1]] = q
        def force(tag, q):
            while pending(tag):
                need = [x.split()[1] for x in rq[0] if x.startswith("@wv")] if tag[0] == "r" else [x.split()[1] for x in dq[0] if x.startswith("@wl")]
                for t in need: force(t, q)
                put((rq if tag[0] == "r" else dq).pop(0), q)
        fill = setup + xl
        self.e(self.stamp(5))
        def write(j, t):
            d = ACC + 16 * j + 4 * t
            return [f"v_cvt_pk_bf16_f32 v{d}, v{d}, v{d+1}", f"v_cvt_pk_bf16_f32 v{d+1}, v{d+2}, v{d+3}",
                    f"@t w{j} ds_write_b64 v{RWX[t]}, v[{d}:{d+1}] offset:{UN*(j&3) + 512*t}"] + ([f"v_add_u32 v{RWX[t]}, 0x10000, v{RWX[t]}"] if j == 3 and n > 4 else [])
        def reads(m):
            T = ACC + 32 * m
            return [[f"@t p{m}_{c} ds_read_b64 v[{T+4*c+2*u}:{T+4*c+2*u+1}], v{RDX[c]} offset:{2*UN*(m&1) + 2048*u}" for u in range(2)] +
                    ([f"v_add_u32 v{RDX[c]}, 0x10000, v{RDX[c]}"] if m == 1 and n > 4 else []) for c in range(4)]
        def unpack(m, C):
            x = XR[m]
            return [[f"@wv x{m}", f"v_lshlrev_b32 v{C}, 16, v{x}", f"v_and_b32 v{C+1}, 0xffff0000, v{x}"],
                    [f"v_lshlrev_b32 v{C+2}, 16, v{x+1}", f"v_and_b32 v{C+3}, 0xffff0000, v{x+1}"]]
        def redm(m, C): return [[f"@wl p{m}_{c}", mfma(C, SEL + 4 * c, ACC + 32 * m + 4 * c)] for c in range(4)]
        def fin(m, C):
            fl = ["", " sc1", " nt", " sc0 sc1", " sc1 nt"][self.o.get("ost", 1) if m in done else self.o.get("ost2", 4)]
            return [f"v_cvt_pk_bf16_f32 v{C}, v{C}, v{C+1}", f"v_cvt_pk_bf16_f32 v{C+1}, v{C+2}, v{C+3}",
                    f"buffer_store_dwordx2 v[{C}:{C+1}], v{V_OUT}, {srd(SRDOUT)}, s{S_O+m} offen" + fl]
        pp = self.o.get("pprio", 1); M = n // 2 - 1; CL = BHK[3]
        nq = len(seq); bk = self.o.get("bk", 7); wr = []; seen = set(); done = set()
        def free_at(g):
            for x in g:
                for hh, q in ((12, last[0]), (13, last[0]), (14, last[1]), (15, last[1]), (16, last[2])):
                    if f"@t r{hh} " in x: return q
            return -1
        for q in range(nq):
            j, ks = seq[q]; r = STG + 4 * (q % NS)
            if q == q2:
                self.e(self.stamp(6)); assert not fill
                fill = list(setup2) + [unpack(m, CL + 4 * m)[k] for m in range(n // 2) for k in range(2)]
            if ks not in seen:
                seen.add(ks); hh = 2 * ks + 1 if ks < 8 else 16
                if pending(f"r{hh}"): print("forced", typ, hh, q)
                force(f"r{hh}", q)
                self.e(f"@wl r{hh}")
            if q > q2 and ks == 6: wr = [[], []] + [write(j - 1, t) for t in range(4)]
            if pp == 1 and q % 3 == 0 and q >= self.o.get("qp", 0): self.e(f"s_setprio {3 - ((q // 3) & 3)}" if q < nq - 12 else f"s_setprio {max(0, (nq - q) // 3 - 1)}")
            if q == nq - 1:
                for g in fill: self.e(g)
                fill = []
            self.e(f"@wv a{q}")
            if self.o.get("qst") and q % self.o["qst"] == 0 and q % 2 == 0: self.e(f"s_{'memtime' if self.o['qst'] == 1 else 'memrealtime'} s[{S_TS}:{S_TS+1}]\ns_waitcnt lgkmcnt(0)\nv_writelane_b32 v0, s{S_TS}, {32 + q // 2}")
            if q in own: self.e(own[q]); self.e(self.stamp(4))
            nd = 0
            for t in range(8 if ks == 8 else 4):
                if ks == 8:
                    d = ACC + 16 * (j + (t >> 2) * (n // 2)) + 4 * (t & 3); a = BHK[2] + 4 * (t & 3); b = r + 2 * (t >> 2)
                    self.e(f"v_mfma_f32_16x16x16_bf16 v[{d}:{d+3}], v[{a}:{a+1}], v[{b}:{b+1}], v[{d}:{d+3}]")
                else:
                    u = 3 - t if ks & 1 and self.o.get("snake2", 0) else t
                    self.e(mfma(ACC + 16 * j + 4 * u, BHK[ks % 6] + 4 * u, r, "0" if ks == 0 else None))
                g = wr.pop(0) if wr else []
                self.e(g)
                if t == 1 and dq and q % dper == 0 and ready(dq[0], q): put(dq.pop(0), q)
                elif rq and ready(rq[0], q) and ready(rq[min(2, len(rq) - 1)], q + 1):
                    put(rq.pop(0), q)
                    if rq and (q >= q2 - 6 or q < 6) and ready(rq[0], q): put(rq.pop(0), q)
                elif fill and not g: self.e(fill.pop(0))
            for p in ((1, 3) if sp else (3,)):
                qp = 3 * n if p == 1 else q2
                if self.o.get("nochk", 0) >> p & 1: continue
                if q + NS == qp - lead: self.e(self.flag_issue(p))
                if q + NS == qp: self.e(self.flag_check(p))
            if q + NS < nq: self.e(issue(q + NS))
            if q > q2 and ks == bk and j >= 2 and not (j & 1) and j // 2 - 1 < self.o.get("nmb%d" % typ, 0):
                m = j // 2 - 1; done.add(m)
                for g in fill: self.e(g)
                self.e(f"@wl w{j-1}\ns_barrier")
                if m == M - 1: self.e(self.stamp(15))
                rd = reads(m)
                self.e(rd[0])
                fill = rd[1:] + [[]] * self.o.get("rdly", 1) + redm(m, CL + 4 * m) + [[], [], fin(m, CL + 4 * m)]
        self.e(self.stamp(14))
        for t in range(4): self.e(write(n - 1, t))
        self.e(f"@wl w{n-1}\ns_barrier")
        todo = [m for m in range(M + 1) if m not in done]
        for m in todo:
            for g in reads(m): self.e(g)
        for c in range(4):
            for m in todo: self.e(redm(m, CL + 4 * m)[c]) if self.o.get("ril", 0) else None
        for m in todo:
            if not self.o.get("ril", 0):
                for g in redm(m, CL + 4 * m): self.e(g)
            if m != todo[0]: self.e(fin(m - 1, CL + 4 * (m - 1)))
        self.e(fin(M, CL + 4 * M))
        self.e(self.stamp(7))
        if self.o.get("fixdur"):
            lp = self.lab("fix")
            self.e(f"{lp}:\ns_memrealtime s[{S_TS}:{S_TS+1}]\ns_waitcnt lgkmcnt(0)\ns_sub_u32 s{S_TS}, s{S_TS}, s{S_NONCE}\ns_cmp_lt_u32 s{S_TS}, {self.o['fixdur']}\ns_cbranch_scc1 {lp}")
        if self.diag:
            self.e(f"""s_lshl_b32 s{T0}, s2, 3
s_add_u32 s{T0}, s{T0}, s{S_W}
s_lshl_b32 s{T0}, s{T0}, 8
s_add_u32 s{T0}, s{T0}, {STAMP_BASE}
v_lshlrev_b32 v{V_L16}, 2, v{V_LANE}
buffer_store_dword v0, v{V_L16}, {srd(SRDWS)}, s{T0} offen""")
        self.e("s_endpgm")

    def kperm(self, dst, rho, t):
        self.e(f"""v_and_b32 v{dst}, 35, v{rho}
v_bfe_u32 v{t}, v{rho}, 2, 2
v_lshl_add_u32 v{dst}, v{t}, 3, v{dst}
v_bfe_u32 v{t}, v{rho}, 4, 1
v_lshl_add_u32 v{dst}, v{t}, 2, v{dst}""")
    def pfa(self):
        a, b, c = TA, TB, TC
        lo, n = self.o.get("pflo", 1), self.o.get("pfn", 0)
        if n == 0: return
        lw, le = self.lab("pfw"), self.lab("pfe")
        self.e(f"""s_cmp_ge_u32 s{S_H}, {n}
s_cbranch_scc1 {le}
s_add_u32 s{T0}, s{S_H}, {lo}
s_cmp_eq_u32 s{S_TG}, 1
s_cbranch_scc1 {lw}
s_lshl_b32 s{T0}, s{T0}, 7
s_and_b32 s{T1}, s{S_MT}, 7
s_lshl_b32 s{T1}, s{T1}, 1
s_bfe_u32 s{T2}, s2, 0x10006
s_add_u32 s{T1}, s{T1}, s{T2}
s_mul_i32 s{T1}, s{T1}, {64*2560}
s_add_u32 s{T0}, s{T0}, s{T1}
s_lshr_b32 s{T1}, s{S_MT}, 3
s_mul_i32 s{T1}, s{T1}, 1280
s_add_u32 s{T0}, s{T0}, s{T1}
v_mul_u32_u24 v{a}, 2560, v{V_LANE}
@x buffer_load_dword v{V_PFD}, v{a}, {srd(SRD0)}, s{T0} offen
s_branch {le}
{lw}:
s_mov_b32 s{SRDPF}, s{P_WQKV}
s_mov_b32 s{SRDPF+1}, s{P_WQKV+1}
s_mov_b32 s{SRDPF+2}, {640*3840}
s_mov_b32 s{SRDPF+3}, 0x20000
s_lshl_b32 s{T0}, s{T0}, 4
s_bfe_u32 s{T1}, s2, 0x40003
s_add_u32 s{T0}, s{T0}, s{T1}
s_mul_i32 s{T0}, s{T0}, {4*3840}
s_and_b32 s{T1}, s2, 3
s_mul_i32 s{T1}, s{T1}, 5
s_lshr_b32 s{T1}, s{T1}, 1
s_lshl_b32 s{T1}, s{T1}, 7
s_add_u32 s{T0}, s{T0}, s{T1}
v_mul_u32_u24 v{a}, 86, v{V_LANE}
v_lshrrev_b32 v{a}, 8, v{a}
v_mul_u32_u24 v{a}, {1280-384}, v{a}
v_lshl_add_u32 v{a}, v{V_LANE}, 7, v{a}
s_mov_b32 exec_hi, 15
@x buffer_load_dword v{V_PFD}, v{a}, {srd(SRDPF)}, s{T0} offen
s_mov_b32 exec_hi, -1
{le}:""")
    def row_loads(self):
        a, b, c, d = 214, 215, TC, TD
        self.e(f"""v_lshrrev_b32 v{c}, 5, v{V_LANE}
v_and_b32 v{d}, 31, v{V_LANE}
v_lshlrev_b32 v{V_RST}, 4, v{c}
v_lshl_add_u32 v{V_RST}, v{d}, 25, v{V_RST}
v_mul_u32_u24 v{c}, 2560, v{c}
v_lshl_add_u32 v{a}, v{d}, 4, v{c}
v_lshl_add_u32 v{b}, v{d}, 3, v{c}
s_and_b32 s{T0}, s2, 3
s_lshl_b32 s{T1}, s{T0}, 7
s_and_b32 s{T2}, s2, 0x78
s_add_u32 s{T1}, s{T1}, s{T2}
s_add_u32 s{T1}, s{T1}, s{S_W}
s_lshl_b32 s{T1}, s{T1}, 1
s_bfe_u32 s{T2}, s2, 0x10002
s_lshl_b32 s{T3}, s{T2}, 10
s_add_u32 s{T3}, s{T3}, s{T1}
s_lshl_b32 s{S_ROWS}, s{T3}, 4
s_add_u32 s{S_ROWS}, s{S_ROWS}, {ROWT}
s_mul_i32 s{T1}, s{T1}, 2560
s_mul_i32 s{T3}, s{T2}, 1280
s_add_u32 s{T1}, s{T1}, s{T3}
buffer_load_dwordx4 v[{RX}:{RX+3}], v{a}, {srd(SRD0)}, s{T1} offen
buffer_load_dwordx4 v[{RX+4}:{RX+7}], v{a}, {srd(SRD0)}, s{T1} offen offset:512
@t rows buffer_load_dwordx2 v[{RX+8}:{RX+9}], v{b}, {srd(SRD0)}, s{T1} offen offset:1024""")
    def side_loads(self, early=False):
        a, b, c, d = 214, 215, 216, TD
        self.keep = self.L; self.L = []
        self.row_loads(); rows = self.L; self.L = self.keep
        if self.o.get("rowa", 0) in (1, 2): rows = []
        R = S_DELTA
        self.e([x.replace(f"s_add_u32 s{T1}, s{T1}, s{T3}", f"s_add_u32 s{R}, s{T1}, s{T3}") for x in rows[:-3]])
        rl = [x.replace(f"s{T1} offen", f"s{R} offen") for x in rows[-3:]]
        if not early: self.e(rl)
        self.e(f"""s_and_b32 s{T0}, s2, 3
s_bfe_u32 s{T2}, s2, 0x10002
s_bfe_u32 s{T1}, s2, 0x40003
s_min_u32 s{T1}, s{T1}, 14
s_mul_i32 s{T3}, s{T1}, 86
s_lshr_b32 s{T3}, s{T3}, 8
s_mul_i32 s{T3}, s{T3}, 7
s_add_u32 s{T3}, s{T3}, s{T1}
s_mul_i32 s{T4}, s{T0}, 5
s_lshr_b32 s{T4}, s{T4}, 1
s_add_u32 s{T3}, s{T3}, s{T4}
s_mul_i32 s{T4}, s{T0}, 6
s_add_u32 s{T4}, s{T4}, s{T1}
s_sub_u32 s{T4}, s{T4}, 9
s_cmp_lt_u32 s{T1}, 9
s_cselect_b32 s{T3}, s{T3}, s{T4}
s_cselect_b32 s{T4}, 0, 30
s_cselect_b32 s{TF}, 15, 12
s_lshl_b32 s{TF}, s{TF}, 8
s_mul_i32 s{SRDC+2}, s{TF}, 640
s_mov_b32 s{SRDC+3}, 0x20000
v_lshrrev_b32 v{c}, 3, v{V_LANE}
v_mul_u32_u24 v{c}, s{TF}, v{c}
v_and_b32 v{d}, 7, v{V_LANE}
v_lshl_add_u32 v{c}, v{d}, 4, v{c}
s_add_u32 s{T4}, s{T4}, s{T3}
s_lshl_b32 s{T4}, s{T4}, 3
s_add_u32 s{T4}, s{T4}, s{S_W}
s_lshl_b32 s{T4}, s{T4}, 7
s_lshl_b32 s{T2}, s{T2}, 3
s_add_u32 s{S_COLS}, s{T2}, s{T4}
s_add_u32 s{S_COLS}, s{S_COLS}, {COLT}
s_add_u32 s{T2}, s{T2}, s{S_W}
s_lshl_b32 s{T2}, s{T2}, 3
s_mul_i32 s{T2}, s{T2}, s{TF}
s_lshl_b32 s{T3}, s{T3}, 7
s_add_u32 s{S_FL}, s{T2}, s{T3}
s_lshl_b32 s76, s{TF}, 7""")
        if early:
            self.e(f"s_mov_b32 s{SRD0+2}, {2048*1280}\ns_mov_b32 s{SRD0+3}, 0x20000\ns_waitcnt lgkmcnt(0)\ns_mov_b64 s[{SRD0}:{SRD0+1}], s[{P_X}:{P_X+1}]")
        self.e(f"s_cmp_lt_u32 s{T1}, 9\ns_cselect_b64 s[{SRDC}:{SRDC+1}], s[{P_WQKV}:{P_WQKV+1}], s[{P_W1}:{P_W1+1}]")
        cl = [[f"@t side buffer_load_dwordx4 v[{CW[k]}:{CW[k]+3}], v{c}, {srd(SRDC)}, s{S_FL} offen", f"s_add_u32 s{S_FL}, s{S_FL}, s76"] for k in range(5)]
        if early and rl:
            if self.o.get("kord", 1): cl = [cl[0], rl[:1], cl[1], cl[2], rl[1:2], cl[3], rl[2:], cl[4]]
            else: cl = [[x] for x in rl] + cl
        ne = self.o.get("nearly", 3) if early else 8
        self.side_rest = cl[ne:]
        for g in cl[:ne]: self.e(g)
        if self.o.get("swarm", 0) & 1:
            self.e(f"s_load_dword s100, s[{P_WS}:{P_WS+1}], s{S_ROWS}\ns_load_dword s101, s[{P_WS}:{P_WS+1}], s{S_COLS}")
    def codepf(self):
        cp = self.o.get("cpf", 6)
        if not cp: return
        lb = self.lab("pc"); nl = (49152 >> cp) // 256
        self.e(f"""s_getpc_b64 s[{S_M1}:{S_M1+1}]
{lb}:
s_sub_u32 s{S_M1}, s{S_M1}, {lb}-L_code0
s_subb_u32 s{S_M1+1}, s{S_M1+1}, 0
s_and_b32 s{T0}, s2, 0xf8
s_add_u32 s{T0}, s{T0}, s{S_W}
s_lshl_b32 s{T0}, s{T0}, {cp}""")
        for k in range(nl):
            self.e(f"s_min_u32 s{T4}, s{T0}, L_exit-L_code0\ns_load_dword s{100+(k&1)}, s[{S_M1}:{S_M1+1}], s{T4}\ns_add_u32 s{T0}, s{T0}, {256 << cp}")
    def b2_pf(self):
        a = TA; al = False; k = 1 if al else 2
        self.e(f"""s_and_b32 s{T2}, s2, {255 if al else 127}
s_mul_i32 s{T0}, s{T2}, 6
s_add_u32 s{T0}, s{T0}, s{S_W}
s_mul_i32 s{T0}, s{T0}, {1280*k}
s_lshl_b32 s{T1}, s{T2}, 1
s_add_u32 s{T1}, s{T1}, s{S_W}
s_sub_u32 s{T1}, s{T1}, 6
s_mul_i32 s{T1}, s{T1}, {13*128*k}
s_cmp_lt_u32 s{S_W}, 6
s_cselect_b32 s{SRDPF}, s{SRDW2}, s{SRDWO}
s_cselect_b32 s{SRDPF+1}, s{SRDW2+1}, s{SRDWO+1}
s_cselect_b32 s{SRDPF+2}, s{SRDW2+2}, s{SRDWO+2}
s_mov_b32 s{SRDPF+3}, 0x20000
s_cselect_b32 s{S_PFC}, s{T0}, s{T1}
s_cselect_b32 s{T1}, {10*k}, {13*k}
v_lshlrev_b32 v{V_PF}, 7, v{V_LANE}
v_mov_b32 v{a}, {hex(OOB)}
v_cmp_gt_u32 s[{S_M1}:{S_M1+1}], s{T1}, v{V_LANE}
v_cndmask_b32 v{V_PF}, v{a}, v{V_PF}, s[{S_M1}:{S_M1+1}]""")
        self.pfl = [f"buffer_load_dword v{V_PFD}, v{V_PF}, {srd(SRDPF)}, s{S_PFC} offen"]
    def min_init(self, kind):
        a, b, c, d = TA, TB, TC, TD
        self.e(f"""v_lshrrev_b32 v{V_G}, 4, v{V_LANE}
v_and_b32 v{V_I}, 15, v{V_LANE}
v_lshlrev_b32 v{V_L16}, 4, v{V_LANE}
v_lshrrev_b32 v{a}, 1, v{V_I}
v_xor_b32 v{a}, v{a}, v{V_G}
v_lshlrev_b32 v{a}, 4, v{a}
v_lshl_add_u32 v{a}, v{V_I}, 7, v{a}
s_lshl_b32 s{T0}, s{S_TG}, 13
v_add_u32 v{V_X0}, s{T0}, v{a}
v_xor_b32 v{V_X1}, 64, v{V_X0}
v_lshrrev_b32 v{a}, 2, v{V_LANE}
v_and_b32 v{b}, 3, v{V_LANE}
v_bfe_u32 v{c}, v{V_LANE}, 3, 2
v_lshlrev_b32 v{V_TRB}, 7, v{a}
v_lshl_add_u32 v{V_TRB}, v{c}, 5, v{V_TRB}
v_lshl_add_u32 v{V_TRB}, v{b}, 3, v{V_TRB}""")
        if kind == "a":
            self.e(f"""v_mul_u32_u24 v{a}, 480, v{a}
s_mul_i32 s{T0}, s{S_H}, 40
s_add_u32 s{T0}, s{T0}, {XREG}
v_add_u32 v{a}, s{T0}, v{a}
v_lshl_add_u32 v{V_W0}, v{b}, 3, v{a}
v_min_u32 v{b}, 2, v{b}
v_mul_u32_u24 v{c}, 160, v{b}
v_add3_u32 v{V_W1}, v{a}, v{c}, 32""")
            if self.o.get("zl", 1):
                self.e(f"s_mov_b32 s{S_M1}, 0x77777777\ns_mov_b32 s{S_M1+1}, 0x77777777")
                for k in range(4):
                    self.e(f"v_add_u32 v{a}, {7680*k}, v{V_W1}\nv_cndmask_b32 v{VZL[k]}, 0, v{a}, s[{S_M1}:{S_M1+1}]\nv_add_u32 v{VZL[4+k]}, 0x10000, v{VZL[k]}")
        else:
            self.e(f"s_mul_i32 s{T0}, s{S_H}, 3")
            for t in range(3):
                self.e(f"""s_add_u32 s{T1}, s{T0}, {t}
s_lshr_b32 s{T2}, s{T1}, 2
s_lshl_b32 s{T2}, s{T2}, 13
s_add_u32 s{T2}, s{T2}, {XREG}
s_and_b32 s{T1}, s{T1}, 3
s_lshl_b32 s{T1}, s{T1}, 5
v_xor_b32 v{b}, s{T1}, v{V_TRB}
v_add_u32 v{[V_W0, V_W1, V_W2][t]}, s{T2}, v{b}""")
        self.e(f"s_lshl_b32 s{S_W2K}, s{S_W}, 11\nv_add_u32 v{V_TRB}, s{S_W2K}, v{V_TRB}")
    def late_init(self, kind):
        a, b, c, d = TA, TB, TC, TD
        self.mksrd(SRDWS, P_WS, WS_BYTES); self.mksrd(SRDOUT, P_OUT, 2048 * 1280)
        self.e(f"s_mov_b32 s38, {640*1280}\ns_mov_b32 s39, 0x20000\ns_mov_b32 s40, s42\ns_mov_b32 s41, s43\ns_mov_b32 s42, {1536*1280}\ns_mov_b32 s43, 0x20000")
        if kind == "a":
            self.e(f"""s_mul_i32 s{T0}, s{S_W}, {5*REC}
s_add_u32 s{T0}, s{T0}, {L_REC + 256}
v_min_u32 v{a}, 4, v{V_LANE}
v_mul_u32_u24 v{a}, {REC}, v{a}
v_add_u32 v{a}, s{T0}, v{a}
v_mov_b32 v{ACC}, 0
v_mov_b32 v{ACC+1}, 0
ds_write_b64 v{a}, v[{ACC}:{ACC+1}]""")
            his = [V_X0, V_X1, V_W0, V_W1]
            self.e(f"""v_lshlrev_b32 v{c}, 2, v{V_G}
v_sub_u32 v{c}, v{V_I}, v{c}
v_mov_b32 v{VC}, {hex(NEGBIG)}
v_mov_b32 v{MB}, 0
v_mov_b32 v{MB+1}, 0
s_and_b32 s{T0}, s{S_MT}, 7
s_or_b32 s{T0}, s{T0}, s{S_TG}
s_cmp_eq_u32 s{T0}, 0
s_cselect_b64 s[{S_M1}:{S_M1+1}], 0, -1""")
            for r in range(4):
                self.e(f"""v_subrev_u32 v{a}, {r}, v{c}
v_cmp_gt_u32 s[{S_M0}:{S_M0+1}], 8, v{a}
v_mov_b32 v{b}, {hex(0xffff << (16*(r&1)))}
v_cmp_gt_i32 vcc, -8, v{a}
v_cndmask_b32 v{MC+r}, v{VC}, 0, s[{S_M0}:{S_M0+1}]
v_cndmask_b32 v{b}, 0, v{b}, s[{S_M0}:{S_M0+1}]
v_or_b32 v{MB+(r>>1)}, v{MB+(r>>1)}, v{b}
v_cndmask_b32 v{MP+r}, v{VC}, 0, vcc
v_cndmask_b32 v{MP0+r}, v{VC}, v{MP+r}, s[{S_M1}:{S_M1+1}]""")
            self.e(f"v_mov_b32 v{VC}, {hex(f2u(20**-0.5 * LOG2E))}")
            self.e(f"""v_lshrrev_b32 v{a}, 2, v{V_I}
v_min_u32 v{a}, 2, v{a}
v_and_or_b32 v{b}, v{V_I}, 3, 16
v_cmp_eq_u32 s[{S_M0}:{S_M0+1}], 3, v{V_G}
s_lshl_b32 s{T0}, s{S_NT}, 2
s_add_u32 s{T0}, s{T0}, s{S_H}
s_mul_i32 s{T0}, s{T0}, 20
v_cndmask_b32 v{a}, v{V_G}, v{a}, s[{S_M0}:{S_M0+1}]
v_cndmask_b32 v{b}, v{V_I}, v{b}, s[{S_M0}:{S_M0+1}]
v_mul_u32_u24 v{a}, 640, v{a}
v_add3_u32 v{d}, v{a}, v{b}, s{T0}""")
        else:
            his = [V_X0, V_X1, V_W0, V_W1, V_W2]
            self.e(f"""s_lshl_b32 s{T0}, s{S_NT}, 2
s_add_u32 s{T0}, s{T0}, s{S_H}
s_mul_i32 s{T0}, s{T0}, 48
s_add_u32 s{T0}, s{T0}, 1920
v_min_u32 v{d}, 47, v{V_LANE}
v_add_u32 v{d}, s{T0}, v{d}""")
        for r in his: self.e(f"v_add_u32 v{HI[r]}, 0x10000, v{r}")
        lr, le = self.lab("crow"), self.lab("cend")
        self.e(f"""v_lshlrev_b32 v{c}, 2, v{V_LANE}
v_add_u32 v{V_CB}, {L_DUMMY}, v{c}
s_lshl_b32 s{T0}, s{S_H}, 8
s_cmp_eq_u32 s{S_TG}, 0
s_cbranch_scc1 {lr}
v_lshlrev_b32 v{V_CON}, 4, v{d}
v_add_u32 v{V_CON}, {COLT}, v{V_CON}
s_add_u32 s{T0}, s{T0}, {L_CS}
v_add_u32 v{V_CA}, s{T0}, v{c}
v_mov_b32 v{V_CK}, 1.0
s_branch {le}
{lr}:
s_lshl_b32 s{T1}, s{S_H}, 6
v_add_u32 v{a}, s{T1}, v{V_LANE}
v_cmp_gt_u32 vcc, 0x90, v{a}
v_min_u32 v{a}, 0x8f, v{a}
s_add_u32 s{T0}, s{T0}, {L_STAT}
v_add_u32 v{b}, s{T0}, v{c}
v_cndmask_b32 v{V_CA}, v{V_CB}, v{b}, vcc
v_add_u32 v{V_CB}, 640, v{V_CA}
s_and_b32 s{T0}, s{S_MT}, 7
s_lshl_b32 s{T0}, s{T0}, 7
s_sub_u32 s{T0}, s{T0}, 16
v_add_u32 v{a}, s{T0}, v{a}
v_max_i32 v{a}, 0, v{a}
s_lshr_b32 s{T0}, s{S_MT}, 3
s_lshl_b32 s{T0}, s{T0}, 14
s_add_u32 s{T0}, s{T0}, {ROWT}
v_lshl_add_u32 v{V_CON}, v{a}, 4, s{T0}
v_mov_b32 v{V_CK}, 0
{le}:""")
        if kind == "m": self.e(f"""v_and_b32 v{a}, 7, v{V_LANE}
v_and_b32 v{b}, 1, v{V_G}
v_lshlrev_b32 v{b}, 4, v{b}
v_lshl_add_u32 v{b}, v{a}, 5, v{b}
s_lshl_b32 s{T0}, s{S_W}, 8
s_add_u32 s{T0}, s{T0}, {L_CP}
v_add_u32 v{V_CPW}, s{T0}, v{b}
v_lshrrev_b32 v{b}, 3, v{V_LANE}
v_lshlrev_b32 v{c}, 8, v{b}
v_lshl_add_u32 v{c}, v{a}, 2, v{c}
s_lshl_b32 s{T0}, s{S_W}, 5
s_add_u32 s{T0}, s{T0}, {L_CP}
v_add_u32 v{V_CPR}, s{T0}, v{c}
v_lshl_add_u32 v{V_CST}, v{b}, 27, v{V_L16}
v_and_b32 v{b}, 1, v{V_LANE}
v_lshlrev_b32 v{b}, 4, v{b}
v_mov_b32 v{c}, 0x3f80
v_lshlrev_b32 v{c}, v{b}, v{c}
v_lshrrev_b32 v{a}, 1, v{a}""")
        for p in (range(4) if kind == "m" else []):
            self.e(f"v_cmp_eq_u32 s[{S_M0}:{S_M0+1}], {p}, v{a}\nv_cndmask_b32 v{CA+p}, 0, v{c}, s[{S_M0}:{S_M0+1}]")
        self.e(f"""v_lshrrev_b32 v{a}, 3, v{V_LANE}
v_lshlrev_b32 v{b}, 1, v{V_G}
v_and_b32 v{c}, 7, v{V_LANE}
v_xor_b32 v{b}, v{b}, v{c}
v_lshlrev_b32 v{b}, 4, v{b}
v_mul_u32_u24 v{V_B2}, 1280, v{a}
v_add_u32 v{V_B2}, v{V_B2}, v{b}
v_lshrrev_b32 v{c}, 5, v{V_LANE}
v_mul_u32_u24 v{c}, {16*1280}, v{c}
v_add_u32 v{V_B2L}, v{V_B2}, v{c}
s_lshl_b32 s{T0}, s{S_CT}, 7
s_mul_i32 s{S_B2H}, s{S_W}, {192*1280}
s_add_u32 s{S_B2H}, s{S_B2H}, s{T0}
s_mul_i32 s{S_B2O}, s{S_W}, {80*1280}
s_add_u32 s{S_B2O}, s{S_B2O}, s{T0}
s_lshl_b32 s{T0}, s{S_MT}, 3
s_add_u32 s{T0}, s{T0}, s{S_NT}
s_lshl_b32 s{T0}, s{T0}, 7
s_add_u32 s{S_FOWN}, s{T0}, {FLAG_BASE}
v_and_b32 v{a}, 3, v{V_LANE}
v_lshlrev_b32 v{a}, 2, v{a}
v_add_u32 v{a}, {L_CNT}, v{a}
v_mov_b32 v{b}, 0
ds_write_b32 v{a}, v{b}
s_lshl_b32 s{S_A2}, s{S_RT0}, 3
s_add_u32 s{S_A2}, s{S_A2}, s{S_W}
s_mul_i32 s{S_A2}, s{S_A2}, {A2_BLK}""")
    def start(self, kind, nd):
        sk = self.lab("non"); ini = self.o.get("init", 0)
        self.mksrd(SRDDBG, P_DBG, 256)
        if kind == "a":
            self.e(f"""s_or_b32 s{T0}, s2, s{S_W}
s_cmp_lg_u32 s{T0}, 0
s_cbranch_scc1 {sk}
s_or_b32 s{T0}, s{S_M0}, 1
v_mov_b32 v{TA}, s{T0}
s_mov_b64 exec, 1
@x buffer_store_dword v{TA}, off, {srd(SRDDBG)}, 0 sc1
s_mov_b64 exec, -1
{sk}:""")
        if self.diag: self.e(f"v_writelane_b32 v0, s{S_M0}, 12")
        self.e(self.stamp(0))
        o = self.o
        sf = kind == "m" and o.get("sf", 2)
        if kind == "a" and o.get("rowa", 0) == 2: self.row_loads()
        if sf != 1:
            for g in self.stage(nd, 0): self.e(g)
        if not sf:
            self.codepf()
            if kind == "m": self.side_loads()
        self.min_init(kind)
        self.p2_tile(0 if kind == "m" else 1)
        self.late_init(kind)
        if o.get("swarm", 0) & 2:
            self.e(f"s_and_b32 s{T0}, s{S_W}, {1 if kind == 'm' else 0}\ns_add_u32 s{T0}, s{T0}, {0 if kind == 'm' else 3}\ns_lshl_b32 s{T0}, s{T0}, 14\ns_add_u32 s{T0}, s{T0}, s{S_FOWN}\ns_load_dword s100, s[{P_WS}:{P_WS+1}], s{T0}")
        if kind == "a" and o.get("rowa", 0) == 1: self.row_loads()
        if kind == "a" and o.get("rowa", 0) == 3:
            keep = self.L; self.L = []; self.row_loads(); rows = self.L; self.L = keep
            self.e([x.replace(f"s_add_u32 s{T1}, s{T1}, s{T3}", f"s_add_u32 s{S_DELTA}, s{T1}, s{T3}") for x in rows[:-3]])
            self.arows = [[x.replace(f"s{T1} offen", f"s{S_DELTA} offen")] for x in rows[-3:]]
        for g in self.p2_scalars(6 if kind == "m" else 4): self.e(g)
        if o.get("pfwho", 1) == (0 if kind == "m" else 1): self.b2_pf()
        if kind == "a":
            if o.get("pf0", 2) == -4: self.e(self.pfl)
            for g in self.stage(nd, 1)[:o.get("k1", 3)]: self.e(g)
        if kind == "m" and o.get("warm", 0):
            self.e(f"buffer_load_dword v{V_PFD}, off, {srd(SRDWS)}, s{S_ROWS}\nbuffer_load_dword v{V_PFD}, off, {srd(SRDWS)}, s{S_COLS}")
        if sf:
            hd = (self.stage(nd, 0) if sf == 1 else []) + [["@t non " + self.nonce_ld()]] + self.stage(nd, 1) + self.stage(nd, 2)
            k0 = o.get("k0", 0) - (0 if sf == 1 else 5); k2 = o.get("k2", 11) - (0 if sf == 1 else 5)
            if o.get("paced", 1):
                if o.get("sb", 1) == 0: hd = hd + self.side_rest[:-2] + (self.side_rest[-2:] if o.get("sc", 1) == 0 else [])
                if o.get("sb", 1) == -1: hd = hd[:-5] + self.side_rest[:-2] + (self.side_rest[-2:] if o.get("sc", 1) == -1 else []) + hd[-5:]
                for g in hd[:k2]: self.e(g)
                self.head = hd[k2:]
                return
            for g in self.side_rest + hd[:k0]: self.e(g)
            sp = []
            if o.get("pfwho", 1) == 5:
                self.e(f"""s_and_b32 s{T0}, s2, 127
s_lshl_b32 s{T0}, s{T0}, 3
s_add_u32 s{T0}, s{T0}, s{S_W}
s_mul_i32 s{T1}, s{T0}, 1920
s_add_u32 s96, s{SRDW2}, s{T1}
s_addc_u32 s97, s{SRDW2+1}, 0
s_mul_i32 s{T1}, s{T0}, 800
s_and_b32 s{T1}, s{T1}, 0xffffff80
s_min_u32 s{T1}, s{T1}, {640*1280 - 7*128}
s_add_u32 s98, s{SRDWO}, s{T1}
s_addc_u32 s99, s{SRDWO+1}, 0""")
                sp = [f"s_load_dword s100, s[96:97], {128*k}" for k in range(15)] + [f"s_load_dword s101, s[98:99], {128*k}" for k in range(7)]
            n1 = o.get("sp1", 10)
            self.e(self.stamp(8)); self.e(sp[:n1]); self.e(self.prod1()); self.e(sp[n1:]); self.e(self.stamp(10))
            for g in hd[k0:k2]: self.e(g)
            self.head = hd[k2:]
    def p2_tile(self, typ):
        if typ == 0:
            self.e(f"s_bfe_u32 s{S_CT}, s2, 0x30003\ns_bfe_u32 s{S_E0}, s2, 0x10006\ns_mul_i32 s{S_E0}, s{S_E0}, 3")
        else:
            self.e(f"""s_bfe_u32 s{T0}, s2, 0x30003
s_lshr_b32 s{T1}, s{T0}, 2
s_add_u32 s{T1}, s{T1}, 8
s_and_b32 s{T2}, s{T0}, 3
s_lshl_b32 s{T2}, s{T2}, 1
s_bitcmp1_b32 s2, 6
s_cselect_b32 s{S_CT}, s{T1}, s{T0}
s_cselect_b32 s{S_E0}, s{T2}, 6""")
        self.e(f"s_lshl_b32 s{S_RT0}, s{S_XCD}, 4")
    def common(self):
        a, b, c, d = TA, TB, TC, TD
        self.e(f"""s_and_b32 s{S_XCD}, s2, 7
s_lshr_b32 s{T0}, s2, 3
s_and_b32 s{S_MT}, s{T0}, 7
s_and_b32 s{T1}, s2, 4
s_lshl_b32 s{T1}, s{T1}, 1
s_or_b32 s{S_MT}, s{S_MT}, s{T1}
s_and_b32 s{S_NT}, s2, 3
s_lshl_b32 s{S_NT}, s{S_NT}, 1
s_bfe_u32 s{T1}, s2, 0x10006
s_or_b32 s{S_NT}, s{S_NT}, s{T1}
s_lshr_b32 s{S_TG}, s{S_W}, 2
s_and_b32 s{S_H}, s{S_W}, 3""")
        self.e(f"""v_lshrrev_b32 v{a}, 3, v{V_LANE}
s_and_b32 s{T1}, s{S_W}, 1
s_lshl_b32 s{T1}, s{T1}, 2
v_lshrrev_b32 v{b}, 4, v{V_LANE}
v_or_b32 v{b}, s{T1}, v{b}
v_and_b32 v{c}, 7, v{V_LANE}
v_xor_b32 v{b}, v{b}, v{c}
s_lshl_b32 s{T1}, s{S_W}, 3
v_add_u32 v{a}, s{T1}, v{a}
v_mul_u32_u24 v{a}, 2560, v{a}
v_lshl_add_u32 v{V_DMA[0]}, v{b}, 4, v{a}
s_and_b32 s{T1}, s{S_MT}, 7
s_mul_i32 s{SOU[0]}, s{T1}, {128*2560}
s_lshr_b32 s{T2}, s{S_MT}, 3
s_mul_i32 s{T2}, s{T2}, 1280
s_add_u32 s{SOU[0]}, s{SOU[0]}, s{T2}
s_add_u32 s{SOU[1]}, s{SOU[0]}, {64*2560}
s_mov_b32 s{STEP[0]}, 128
s_lshl_b32 s{T2}, s{S_W}, 10
s_add_u32 s{DD[0]}, s{T2}, 2048
s_add_u32 s{DD[1]}, s{T2}, {2048+8192}
s_add_u32 s{DD[2]}, s{T2}, {XREG}
s_add_u32 s{DD[3]}, s{T2}, {XREG+8192}
s_add_u32 s{DD[4]}, s{T2}, {XREG+16384}
s_add_u32 s{DD[5]}, s{T2}, {XREG+24576}
s_lshl_b32 s{T3}, s{S_W}, 6
""")
    def gen(self):
        n = NAME + "_kernel"
        self.place = [3, 4, 5, 6, 7, 8, 0, 1, 3, 4, 5, 6, 7, 8, 0, 1, 3]
        a, b, c, d = TA, TB, TC, TD
        self.e(f"""L_code0:
s_memrealtime s[{S_M0}:{S_M0+1}]
s_cmp_ge_u32 s2, 256
s_cbranch_scc1 L_exit
s_load_dwordx16 s[32:47], s[0:1], 0
s_load_dwordx2 s[48:49], s[0:1], 64
v_lshrrev_b32 v{a}, 6, v0
v_and_b32 v{V_LANE}, 63, v0
v_readfirstlane_b32 s{S_W}, v{a}""")
        sf = self.o.get("sf", 2); self.M = False
        if self.diag: self.e("v_mov_b32 v0, 0")
        self.e("@save entry0")
        self.e("s_cmp_lt_u32 s2, 128\ns_cbranch_scc1 L_attn")
        if sf: self.side_loads(True); self.codepf()
        self.e("s_branch L_mlp\nL_attn:\n@save entry\n@load entry0")
        self.common()

        for i in range(2, 6):
            v = V_DMA[i]
            self.e(f"""v_add_u32 v{a}, s{T3}, v{V_LANE}
v_add_u32 v{a}, {512*(i-2)}, v{a}
v_mul_u32_u24 v{b}, 2185, v{a}
v_lshrrev_b32 v{b}, 16, v{b}
v_mul_u32_u24 v{c}, 30, v{b}
v_sub_u32 v{a}, v{a}, v{c}""")
            self.kperm(c, b, d)
            self.e(f"""v_mul_u32_u24 v{v}, 3840, v{c}
v_mul_u32_u24 v{b}, 26, v{a}
v_lshrrev_b32 v{b}, 8, v{b}
v_mul_u32_u24 v{b}, {1280-160}, v{b}
v_lshl_add_u32 v{a}, v{a}, 4, v{b}
v_add_u32 v{v}, v{v}, v{a}""")
        self.e(f"""s_mul_i32 s{SOU[2]}, s{S_NT}, 160
s_mov_b32 s{SOU[5]}, s{SOU[2]}
s_mov_b32 s{STEP[2]}, {64*3840}
s_mov_b32 s{STEP[5]}, {64*3840}
s_waitcnt lgkmcnt(0)""")
        self.mksrd(SRD0, P_X, 2048 * 1280); self.mksrd(SRD1, P_WQKV, 640 * 3840); self.mksrd(SRD2, P_WQKV, 640 * 3840)
        self.e(f"""s_cmp_lt_u32 s{S_W}, 6
s_cbranch_scc1 L_a_go
s_mov_b32 s{SRD2}, s{P_X}
s_mov_b32 s{SRD2+1}, s{P_X+1}
s_mov_b32 s{SRD2+2}, {2048*1280}
v_mov_b32 v{V_DMA[5]}, v{V_DMA[0]}
s_mov_b32 s{STEP[5]}, 128
s_sub_u32 s{DD[5]}, s{T2}, 6144
s_sub_u32 s{SOU[5]}, s{SOU[0]}, {64*2560}
s_cmp_eq_u32 s{T1}, 0
s_cselect_b32 s{SOU[5]}, s{SOU[0]}, s{SOU[5]}
s_cmp_eq_u32 s{S_W}, {6 if self.o.get("hz", 1) else 9}
s_cselect_b32 s{SRD2+2}, 0, s{SRD2+2}
L_a_go:""")
        self.start("a", 6)
        self.e(f"s_cmp_eq_u32 s{S_TG}, 1\ns_cbranch_scc1 L_a1\n@only 0")
        self.main_loop("a0")
        self.e("s_branch L_aepi\nL_a1:\n@only 1")
        self.main_loop("a1")
        self.e("@all\nL_aepi:")
        self.attn_epi()
        self.p2(4, 1)
        self.e(self.slow); self.slow = []
        self.e("L_mlp:\n@load entry")
        self.M = True
        self.common()
        self.e(f"""v_lshrrev_b32 v{a}, 5, v{V_LANE}
v_bfe_u32 v{b}, v{V_LANE}, 3, 2
v_lshl_add_u32 v{a}, v{a}, 3, v{b}
v_mul_u32_u24 v{a}, 3072, v{a}
v_lshrrev_b32 v{b}, 3, v{V_LANE}
v_and_b32 v{b}, 6, v{b}
v_and_b32 v{c}, 7, v{V_LANE}
v_xor_b32 v{b}, v{b}, v{c}
v_lshl_add_u32 v{V_DMA[2]}, v{b}, 4, v{a}
s_lshl_b32 s{T0}, s{S_TG}, 5
s_and_b32 s{T1}, s{S_W}, 1
s_lshl_b32 s{T1}, s{T1}, 4
s_add_u32 s{T0}, s{T0}, s{T1}
s_and_b32 s{T1}, s{S_W}, 2
s_lshl_b32 s{T1}, s{T1}, 1
s_add_u32 s{T0}, s{T0}, s{T1}
s_mul_i32 s{T0}, s{T0}, 3072
s_mul_i32 s{SOU[2]}, s{S_NT}, 384
s_add_u32 s{SOU[2]}, s{SOU[2]}, s{T0}
s_mov_b32 s{STEP[2]}, {64*3072}""")
        if not sf: self.e("s_waitcnt lgkmcnt(0)"); self.mksrd(SRD0, P_X, 2048 * 1280)
        self.mksrd(SRD1, P_W1, 640 * 3072)
        self.start("m", 5)
        self.main_loop("m")
        self.mlp_epi()
        self.p2(6, 0)
        self.e(self.slow); self.slow = []
        self.e("L_exit:\ns_endpgm")
        nt = self.o.get("nt", 0)
        def addnt(x):
            if "buffer_load" not in x or "sc1" in x: return x
            if x.endswith(" lds"):
                b2 = f"{srd(SRDW2)}," in x or f"{srd(SRDWO)}," in x
                return x[:-4] + " nt lds" if nt & (2 if b2 else 1) else x
            return x + " nt" if nt & 4 and "dwordx" in x else x
        self.L = [addnt(x) for x in self.L]
        lines = self.resolve(self.L)
        lines, nn = hz.fix(lines)
        hdr = open("cdna_kernels/" + NAME + ".s.ref").read().split("; Override")[0]
        s = hdr + f"; @launch grid=(256,1,1) block=(512,1,1) lds=163840\n" + TARGET + head(n) + "\n".join(lines) + "\n" + kd(n, 256, 102, 256)
        return s, nn

if __name__ == "__main__":
    diag = "--diag" in sys.argv
    out = [a for a in sys.argv[1:] if not a.startswith("--")]
    opt = {}
    for a in sys.argv[1:]:
        if a.startswith("--") and "=" in a:
            k, v = a[2:].split("="); opt[k] = int(v)
    s, nn = G(diag=diag, **opt).gen()
    open(out[0] if out else "cdna_kernels/" + NAME + ".s", "w").write(s)
    print("nops inserted:", nn, "lines:", s.count("\n"))
```
